```python
import torch

def _softmax(x, axis=-1):
    return torch.softmax(x, dim=axis)

def _gelu(x):
    return torch.nn.functional.gelu(x, approximate='tanh')

def _silu(x):
    return torch.nn.functional.silu(x)

def _sigmoid(x):
    return torch.sigmoid(x)

def _layernorm(x, axis=-1, eps=1e-05):
    m = x.mean(dim=axis, keepdim=True)
    v = x.var(dim=axis, keepdim=True, unbiased=False)
    return (x - m) / torch.sqrt(v + eps)

def _scatter_add(tgt, idx, src, axis=0):
    return tgt.clone().index_add_(axis, idx, src)

def _segment_sum(src, seg, n):
    out = torch.zeros((n,) + src.shape[1:], dtype=src.dtype)
    return out.index_add_(0, seg, src)

def _pad(x, pw):
    flat = tuple((v for pair in reversed(pw) for v in pair))
    return torch.nn.functional.pad(x, flat)
kernel_name = 'standalone__window_attn_davit__vision'

def setup_inputs():

    _w = lambda a: (lambda t: t.to(torch.bfloat16) if t.is_floating_point() else t)(torch.as_tensor(a))
    HW = 384
    C0 = 384
    ws = 7
    nh = 4
    H = W = max(HW // ws * ws, ws)
    C = max(C0 // nh * nh, nh)
    k = 3
    return {'x': _w((lambda *s: torch.randn(*s, dtype=torch.bfloat16) * 1.6)(1, H, W, C)), 'dw_pe': _w((lambda *s: torch.randn(*s, dtype=torch.bfloat16) * 1.6)(k, k, C) * 0.1), 'w_qkv': _w((lambda *s: torch.randn(*s, dtype=torch.bfloat16) * 1.6)(C, 3 * C) * C ** (-0.5)), 'w_o': _w((lambda *s: torch.randn(*s, dtype=torch.bfloat16) * 0.8)(C, C) * C ** (-0.5))}

def reference(x, dw_pe, w_qkv, w_o):
    B, H, W, C = x.shape
    ws = 7
    nh = 4
    dh = C // nh
    kk = dw_pe.shape[0]
    pad = kk // 2
    xp = _pad(x, ((0, 0), (pad, pad), (pad, pad), (0, 0)))
    pe = torch.zeros_like(x)
    for i in range(kk):
        for j in range(kk):
            pe = pe + xp[:, i:i + H, j:j + W, :] * dw_pe[i, j][None, None, None, :]
    x0 = x + pe
    h = _layernorm(x0, axis=-1)
    hw = h.reshape(B, H // ws, ws, W // ws, ws, C)
    hw = (lambda x, *d: x.permute(*d))(hw, 0, 1, 3, 2, 4, 5)
    hw = hw.reshape(-1, ws * ws, C)
    qkv = (hw @ w_qkv).reshape(-1, ws * ws, 3, nh, dh)
    q = qkv[:, :, 0].clone()
    k = qkv[:, :, 1].clone()
    v = qkv[:, :, 2].clone()
    scale = dh ** (-0.5)
    attn = torch.einsum('wnhd,wmhd->whnm', q, k) * scale
    attn = _softmax(attn, axis=-1)
    out = torch.einsum('whnm,wmhd->wnhd', attn, v)
    out = out.reshape(-1, ws * ws, C) @ w_o
    out = out.reshape(B, H // ws, W // ws, ws, ws, C)
    out = (lambda x, *d: x.permute(*d))(out, 0, 1, 3, 2, 4, 5)
    out = out.reshape(B, H, W, C)
    return x0 + out
```

```python
HDR = """; Kernarg layout (56 bytes): x, dw_pe, w_qkv, w_o, out, debug, ws
"""
def kernel_text(name, lines, nvgpr, accum, nsgpr=102):
    body = "\n".join(lines)
    return f""".text
.globl {name}
.p2align 8
.type {name},@function
{name}:
{body}
.section .rodata,"a"
.p2align 6
.amdhsa_kernel {name}
  .amdhsa_next_free_vgpr {nvgpr}
  .amdhsa_next_free_sgpr {nsgpr}
  .amdhsa_accum_offset {accum}
  .amdhsa_group_segment_fixed_size 0
  .amdhsa_kernarg_size 56
  .amdhsa_user_sgpr_count 2
  .amdhsa_user_sgpr_kernarg_segment_ptr 1
  .amdhsa_system_sgpr_workgroup_id_x 1
  .amdhsa_float_denorm_mode_32 3
.end_amdhsa_kernel
"""
def file_text(launches, kernels, macros=()):
    s = HDR
    for (k, g, b, lds) in launches:
        s += f"; @launch kernel={k} grid=({g},1,1) block=({b},1,1) lds={lds}\n"
    s += '.amdgcn_target "amdgcn-amd-amdhsa--gfx950"\n'
    for m in macros: s += m + "\n"
    for k in kernels: s += k
    return s

import re
_MF = re.compile(r"^v_mfma_f32_16x16x32_bf16 ([va])\[(\d+):\d+\], ([va])\[(\d+):\d+\], ([va])\[(\d+):\d+\], (.*)$")
_DR = re.compile(r"^ds_read_b128 ([va])\[(\d+):\d+\], v(\d+) offset:(\d+)$")
_WL = re.compile(r"^s_waitcnt lgkmcnt\((\d+)\)$")
_WV = re.compile(r"^s_waitcnt vmcnt\((\d+)\)$")
_V3 = re.compile(r"^(v_cvt_pk_bf16_f32|v_mul_f32|v_add_f32|v_max_f32) v(\d+), v(\d+), v(\d+)$")
_AW = re.compile(r"^v_accvgpr_write_b32 a(\d+), v(\d+)$")
_AR = re.compile(r"^v_accvgpr_read_b32 v(\d+), a(\d+)$")
_EX = re.compile(r"^v_exp_f32 v(\d+), v(\d+)$")
_DMA = re.compile(r"^buffer_load_dwordx4 v(\d+), s\[(\d+):\d+\], s(\d+) offen offset:(\d+) lds$")
def compact(lines):
    used = {}
    out = []
    for l in lines:
        m = _MF.match(l)
        if m:
            dc, d, ac, a_, bc, b, c = m.groups()
            if c == "0": z = "z"
            elif c == f"{dc}[{d}:{int(d)+3}]": z = "c"
            else: out.append(l); continue
            name = f"m{dc}{ac}{bc}{z}"
            cs = "0" if z == "z" else f"{dc}[\\d:\\d+3]"
            used[name] = f".macro {name} d,a,b\nv_mfma_f32_16x16x32_bf16 {dc}[\\d:\\d+3], {ac}[\\a:\\a+3], {bc}[\\b:\\b+3], {cs}\n.endm"
            out.append(f"{name} {d},{a_},{b}"); continue
        m = _DR.match(l)
        if m:
            dc, d, ad, off = m.groups(); name = f"r{dc}"
            used[name] = f".macro {name} d,a,o\nds_read_b128 {dc}[\\d:\\d+3], v\\a offset:\\o\n.endm"
            out.append(f"{name} {d},{ad},{off}"); continue
        m = _WL.match(l)
        if m:
            used["wl"] = ".macro wl n\ns_waitcnt lgkmcnt(\\n)\n.endm"; out.append(f"wl {m.group(1)}"); continue
        m = _WV.match(l)
        if m:
            used["wv"] = ".macro wv n\ns_waitcnt vmcnt(\\n)\n.endm"; out.append(f"wv {m.group(1)}"); continue
        m = _V3.match(l)
        if m:
            op, d, x, y = m.groups()
            name = {"v_cvt_pk_bf16_f32": "cv", "v_mul_f32": "mu", "v_add_f32": "ad", "v_max_f32": "mx"}[op]
            used[name] = f".macro {name} d,x,y\n{op} v\\d, v\\x, v\\y\n.endm"
            out.append(f"{name} {d},{x},{y}"); continue
        m = _AW.match(l)
        if m:
            used["aw"] = ".macro aw d,x\nv_accvgpr_write_b32 a\\d, v\\x\n.endm"; out.append(f"aw {m.group(1)},{m.group(2)}"); continue
        m = _AR.match(l)
        if m:
            used["ar"] = ".macro ar d,x\nv_accvgpr_read_b32 v\\d, a\\x\n.endm"; out.append(f"ar {m.group(1)},{m.group(2)}"); continue
        m = _EX.match(l)
        if m:
            used["ex"] = ".macro ex d,x\nv_exp_f32 v\\d, v\\x\n.endm"; out.append(f"ex {m.group(1)},{m.group(2)}"); continue
        m = _DMA.match(l)
        if m:
            used["dm"] = ".macro dm v,r,s,o\nbuffer_load_dwordx4 v\\v, s[\\r:\\r+3], s\\s offen offset:\\o lds\n.endm"
            out.append(f"dm {m.group(1)},{m.group(2)},{m.group(3)},{m.group(4)}"); continue
        out.append(l)
    return list(used.values()), out
```

```python
from ir import *
from sched import is_pseudo

def bind(r, env):
    if is_pseudo(r) and len(r) == 2 and isinstance(r[1], int) and r[0] in env:
        return (r[0], r[1] + env[r[0]])
    return r

def insert_waits(blocks, trace, verbose=False):
    waits = {b: {} for b in blocks}
    changed = True
    it = 0
    while changed:
        changed = False; it += 1
        dsq = []; vmq = []
        for (name, env) in trace:
            ins = blocks[name].ins
            W = waits[name]
            for pos, c in enumerate(ins):
                if pos in W:
                    lg, vm = W[pos]
                    if lg is not None and len(dsq) > lg: del dsq[:len(dsq) - lg]
                    if vm is not None and len(vmq) > vm: del vmq[:len(vmq) - vm]
                if c.kind == "wait":
                    lg, vm = c.need
                    if lg is not None and len(dsq) > lg: del dsq[:len(dsq) - lg]
                    if vm is not None and len(vmq) > vm: del vmq[:len(vmq) - vm]
                    continue
                rd = set(bind(r, env) for r in c.rd); wr = set(bind(r, env) for r in c.wr)
                touch = rd | wr
                def need(q):
                    for k in range(len(q) - 1, -1, -1):
                        ow, orr, okind = q[k]
                        conflict = False
                        if ow & touch:
                            x = ow & touch
                            if okind == c.kind and okind in ("dma", "dsw", "vst") and all(is_pseudo(r) for r in x) and not (x & rd): conflict = False
                            else: conflict = True
                        if orr & wr:
                            conflict = True
                        if conflict: return len(q) - 1 - k
                    return None
                nl = need(dsq); nv = need(vmq)
                if nl is not None or nv is not None:
                    lg, vm = W.get(pos, (None, None))
                    nlg, nvm = lg, vm
                    if nl is not None:
                        nl = min(nl, 15); nlg = nl if lg is None else min(lg, nl)
                    if nv is not None:
                        nv = min(nv, 63); nvm = nv if vm is None else min(vm, nv)
                    if (nlg, nvm) != (lg, vm):
                        W[pos] = (nlg, nvm); changed = True
                    if nlg is not None and len(dsq) > nlg: del dsq[:len(dsq) - nlg]
                    if nvm is not None and len(vmq) > nvm: del vmq[:len(vmq) - nvm]
                if c.kind in ("dsr", "dsp"):
                    dsq.append((set(r for r in wr), set(r for r in rd if is_pseudo(r)), c.kind))
                elif c.kind == "dsw":
                    dsq.append((set(r for r in wr), set(), c.kind))
                elif c.kind in ("dma", "vld", "vst"):
                    dsq_wr = set(wr)
                    vmq.append((dsq_wr, set(r for r in rd if is_pseudo(r)) if c.kind == "vld" else set(), c.kind))
                elif c.kind == "smem":
                    raise AssertionError("smem must be in raw text with manual waits")
        assert it < 20
    return waits

def wait_text(lg, vm):
    parts = []
    if vm is not None: parts.append(f"vmcnt({vm})")
    if lg is not None: parts.append(f"lgkmcnt({lg})")
    return "s_waitcnt " + " ".join(parts)

def apply_waits(blocks, waits, hoist=True):
    out = {}
    for name, p in blocks.items():
        ins = p.ins; W = waits[name]
        place = {}
        for pos, (lg, vm) in W.items():
            q = pos; l2, v2 = lg, vm
            if hoist and ins[pos].kind != "bar":
                nds = nvm = 0; k = pos - 1; found = None
                steps = 0
                while k >= 0 and steps < 4:
                    kk = ins[k].kind
                    if kk == "mfma": found = k + 1; break
                    if kk in ("bar", "label", "br", "wait", "raw"): break
                    if kk in DS_KINDS: nds += 1
                    if kk in VM_KINDS: nvm += 1
                    k -= 1; steps += 1
                if found is not None and found != pos:
                    a_ = None if lg is None else lg - nds
                    b_ = None if vm is None else vm - nvm
                    if (a_ is None or a_ >= 0) and (b_ is None or b_ >= 0):
                        q, l2, v2 = found, a_, b_
            cur = place.get(q)
            if cur is None: place[q] = (l2, v2)
            else:
                place[q] = (l2 if cur[0] is None else (cur[0] if l2 is None else min(l2, cur[0])),
                            v2 if cur[1] is None else (cur[1] if v2 is None else min(v2, cur[1])))
        np_ = Prog(name)
        for pos, c in enumerate(ins):
            if pos in place:
                lg, vm = place[pos]
                w = I(wait_text(lg, vm), "wait"); w.need = (lg, vm)
                np_.ins.append(w)
            np_.ins.append(c)
        if len(ins) in place:
            lg, vm = place[len(ins)]
            w = I(wait_text(lg, vm), "wait"); w.need = (lg, vm); np_.ins.append(w)
        out[name] = np_
    return out

def states(i):
    if i.kind == "nop": return int(i.text.split()[1]) + 1
    if i.kind == "label": return 0
    return 1

def hazard_need(p, c):
    pk, ck = p.kind, c.kind
    need = 0
    pw = set(p.wr); pr = set(p.rd); cr = set(c.rd); cw = set(c.wr)
    if pk == "mfma":
        if ck == "mfma":
            mc = set(c.mc or [])
            ab = cr - mc
            if pw & ab: need = max(need, 8)
            x = pw & mc
            if x and mc != pw: need = max(need, 6)
        elif ck in VALU_KINDS or ck in DS_KINDS or ck in VM_KINDS:
            if pw & (cr | cw): need = max(need, 8)
            if p.mc and ck in VALU_KINDS and (set(p.mc) & cw): need = max(need, 3)
    if pk in VALU_KINDS:
        vw = set(r for r in pw if r[0] in ("v", "a"))
        sw = set(r for r in pw if r[0] in ("s", "vcc"))
        if ck == "mfma" and (vw & cr): need = max(need, 2)
        if ck == "perm" and (vw & cr): need = max(need, 2)
        if "readlane" in c.text or "readfirstlane" in c.text:
            if vw & cr: need = max(need, 1)
            if sw & cr: need = max(need, 4)
        if "dpp" in c.text or "row_" in c.text:
            if vw & cr: need = max(need, 2)
        if sw:
            if ck in VM_KINDS and (sw & cr): need = max(need, 5)
            if ck in VALU_KINDS and (sw & cr): need = max(need, 2)
            if ck == "salu" and (sw & cr): need = max(need, 4)
            if ck == "br" and (sw & cr): need = max(need, 5)
        if ("exec", 0) in pw:
            if ck == "mfma": need = max(need, 4)
            if ck in VALU_KINDS: need = max(need, 4)
        if pk == "trans" and ck in VALU_KINDS and ck != "trans" and (vw & cr): need = max(need, 1)
        if pk == "trans" and ck == "trans" and (vw & cr): need = max(need, 1)
    if pk == "salu":
        if ("m0", 0) in pw and ck == "dma": need = max(need, 1)
    if pk == "vst" and len([r for r in p.rd if r[0] in ("v", "a")]) >= 4:
        data = set(r for r in p.rd if r[0] in ("v", "a"))
        if data & cw: need = max(need, 2)
    return need

def insert_nops(blocks, trace):
    nops = {b: {} for b in blocks}
    changed = True
    while changed:
        changed = False
        hist = []
        for (name, env) in trace:
            ins = blocks[name].ins; N = nops[name]
            for pos, c in enumerate(ins):
                if pos in N: hist.append(I(f"s_nop {N[pos]-1}", "nop"))
                need = 0; dist = 0
                for p in reversed(hist):
                    if dist >= 12: break
                    h = hazard_need(p, c)
                    if h > dist: need = max(need, h - dist)
                    dist += states(p)
                if need > 0:
                    N[pos] = N.get(pos, 0) + need; changed = True
                    hist.append(I(f"s_nop {need-1}", "nop"))
                hist.append(c)
                if len(hist) > 64: del hist[:32]
    out = {}
    tot = 0
    for name, p in blocks.items():
        np_ = Prog(name)
        for pos, c in enumerate(p.ins):
            k = nops[name].get(pos, 0)
            tot += k
            while k > 0:
                m = min(k, 16); np_.ins.append(I(f"s_nop {m-1}", "nop")); k -= m
            np_.ins.append(c)
        out[name] = np_
    return out, tot

def finalize(blocks, trace, verbose=True, hoist=True):
    w = insert_waits(blocks, trace)
    b2 = apply_waits(blocks, w, hoist)
    b3, tot = insert_nops(b2, trace)
    if verbose:
        for n, p in b3.items():
            nw = sum(1 for i in p.ins if i.kind == "wait"); nn = sum(1 for i in p.ins if i.kind == "nop")
            if len(p.ins) > 10: print(f"[fin] {n}: {len(p.ins)} instrs, waits={nw}, nops={nn}")
    return b3
```

```python
from dataclasses import dataclass, field

class R:
    __slots__ = ("c", "b", "n")
    def __init__(self, c, b, n=1):
        self.c, self.b, self.n = c, b, n
    def __str__(self):
        if self.n == 1: return f"{self.c}{self.b}"
        return f"{self.c}[{self.b}:{self.b+self.n-1}]"
    __repr__ = __str__
    def regs(self): return [(self.c, self.b + i) for i in range(self.n)]
    def __getitem__(self, i):
        if isinstance(i, slice):
            st = i.start or 0; en = i.stop if i.stop is not None else self.n
            assert 0 <= st < en <= self.n, (st, en, self.n)
            return R(self.c, self.b + st, en - st)
        assert 0 <= i < self.n, (i, self.n)
        return R(self.c, self.b + i, 1)
    def sub(self, off, n): return self[off:off + n]

def v(b, n=1): return R("v", b, n)
def a(b, n=1): return R("a", b, n)
def s(b, n=1): return R("s", b, n)

def regs_of(*ops):
    out = []
    for o in ops:
        if isinstance(o, R): out += o.regs()
        elif isinstance(o, str) and o in ("vcc", "exec", "m0", "scc"): out.append((o, 0))
        elif isinstance(o, tuple): out.append(o)
        elif isinstance(o, (list, set)):
            out += regs_of(*o)
    return out

class I:
    __slots__ = ("text", "kind", "rd", "wr", "cost", "idx", "note", "mc", "prio", "pin", "need", "lat", "svals")
    def __init__(self, text, kind, rd=(), wr=(), cost=None, note="", mc=None, prio=0, lat=None):
        self.text = text; self.kind = kind
        self.rd = list(dict.fromkeys(regs_of(*rd))); self.wr = list(dict.fromkeys(regs_of(*wr)))
        self.cost = cost; self.note = note
        self.mc = mc
        self.prio = prio
        self.idx = None; self.pin = None; self.need = None
        self.lat = lat
    def __repr__(self): return f"<{self.kind}: {self.text}>"

VALU_KINDS = ("valu", "trans", "perm")
DS_KINDS = ("dsr", "dsw", "dsp")
VM_KINDS = ("dma", "vld", "vst")
SCALAR_KINDS = ("salu", "wait", "nop", "bar", "smem", "br")

def fmt(x):
    if isinstance(x, R): return str(x)
    if isinstance(x, float):
        return repr(x)
    if isinstance(x, int):
        if -16 <= x <= 64: return str(x)
        return hex(x & 0xffffffff)
    return str(x)

class Prog:
    def __init__(self, name):
        self.name = name; self.ins = []
    def add(self, i): self.ins.append(i); return i
    def mfma(self, d, A, B, c=None, prio=0):
        cs = "0" if c is None else str(c)
        rd = [A, B] + ([c] if c is not None else [])
        i = I(f"v_mfma_f32_16x16x32_bf16 {d}, {A}, {B}, {cs}", "mfma", rd, [d], prio=prio)
        i.mc = c.regs() if c is not None else []
        return self.add(i)
    def smfmac(self, d, A, B, idx, prio=0):
        i = I(f"v_smfmac_f32_16x16x64_bf16 {d}, {A}, {B}, {idx}", "mfma", [A, B, idx, d], [d], prio=prio)
        i.mc = d.regs()
        return self.add(i)
    def valu(self, op, d, *src, rd_extra=(), wr_extra=(), kind="valu", prio=0, mods=""):
        ops = ", ".join(fmt(x) for x in ((d,) + src))
        rd = [x for x in src if isinstance(x, R) or (isinstance(x, str) and x in ("vcc",))] + list(rd_extra)
        rd = [_strip(x) for x in rd]
        for x in src:
            if isinstance(x, Neg): rd.append(x.r)
        wr = [d] if isinstance(d, R) or d == "vcc" else []
        return self.add(I(f"{op} {ops}{mods}", kind, rd, wr + list(wr_extra), prio=prio))
    def trans(self, op, d, x, prio=0): return self.valu(op, d, x, kind="trans", prio=prio)
    def mov(self, d, x, prio=0): return self.valu("v_mov_b32", d, x, prio=prio)
    def cvtpk(self, d, x, y, prio=0): return self.valu("v_cvt_pk_bf16_f32", d, x, y, prio=prio)
    def accw(self, d, x, prio=0): return self.valu("v_accvgpr_write_b32", d, x, prio=prio)
    def accr(self, d, x, prio=0): return self.valu("v_accvgpr_read_b32", d, x, prio=prio)
    def swap16(self, x, y, prio=0):
        return self.add(I(f"v_permlane16_swap_b32 {x}, {y}", "perm", [x, y], [x, y], prio=prio))
    def swap32(self, x, y, prio=0):
        return self.add(I(f"v_permlane32_swap_b32 {x}, {y}", "perm", [x, y], [x, y], prio=prio))
    def salu(self, op, d, *src, scc_w=False, scc_r=False, prio=0, rd_extra=(), wr_extra=()):
        ops = ", ".join(fmt(x) for x in ((d,) + src))
        rd = [x for x in src if isinstance(x, R) or (isinstance(x, str) and x in ("vcc", "exec", "m0"))] + list(rd_extra)
        wr = [d] if isinstance(d, R) or (isinstance(d, str) and d in ("vcc", "exec", "m0")) else []
        if op.startswith("s_cmp"):
            rd = [x for x in (d,) + src if isinstance(x, R)]; wr = ["scc"]
        else:
            if op in ("s_add_u32", "s_sub_u32", "s_lshl_b32", "s_lshr_b32", "s_and_b32", "s_or_b32", "s_addc_u32", "s_subb_u32",
                      "s_and_b64", "s_or_b64", "s_add_i32", "s_sub_i32", "s_min_u32", "s_max_u32", "s_xor_b32", "s_andn2_b64", "s_bfe_u32") or scc_w:
                wr = wr + ["scc"]
            if op in ("s_cselect_b32", "s_cselect_b64", "s_addc_u32", "s_subb_u32") or scc_r:
                rd = rd + ["scc"]
        return self.add(I(f"{op} {ops}", "salu", rd, wr + list(wr_extra), prio=prio))
    def dsr(self, d, addr, off=0, res=(), prio=0, op=None):
        if op is None: op = {1: "ds_read_b32", 2: "ds_read_b64", 4: "ds_read_b128"}[d.n]
        assert 0 <= off < 65536, off
        return self.add(I(f"{op} {d}, {addr} offset:{off}", "dsr", [addr] + list(res), [d], prio=prio))
    def dsw(self, addr, src, off=0, res=(), prio=0, op=None, rd_extra=()):
        if op is None: op = {1: "ds_write_b32", 2: "ds_write_b64", 4: "ds_write_b128"}[src.n]
        assert 0 <= off < 65536, off
        cost = {1: 8, 2: 12, 4: 20}[src.n]
        return self.add(I(f"{op} {addr}, {src} offset:{off}", "dsw", [addr, src] + list(rd_extra), list(res), cost=cost, prio=prio))
    def bperm(self, d, addr, src, prio=0):
        return self.add(I(f"ds_bpermute_b32 {d}, {addr}, {src}", "dsp", [addr, src], [d], cost=8, prio=prio))
    def dma(self, voff, srd, soff, off=0, res=(), rd_res=(), prio=0):
        assert 0 <= off < 4096
        so = fmt(soff)
        rd = [voff, srd, "m0"] + ([soff] if isinstance(soff, R) else []) + list(rd_res)
        return self.add(I(f"buffer_load_dwordx4 {voff}, {srd}, {so} offen offset:{off} lds", "dma", rd, list(res), cost=8, prio=prio))
    def vld(self, d, voff, srd, soff=0, off=0, res=(), prio=0, op=None, mods=""):
        if op is None: op = {1: "buffer_load_dword", 2: "buffer_load_dwordx2", 4: "buffer_load_dwordx4"}[d.n]
        assert 0 <= off < 4096
        rd = [voff, srd] + ([soff] if isinstance(soff, R) else []) + list(res)
        return self.add(I(f"{op} {d}, {voff}, {srd}, {fmt(soff)} offen offset:{off}{mods}", "vld", rd, [d], cost=8, prio=prio))
    def vst(self, src, voff, srd, soff=0, off=0, res=(), prio=0, op=None, rd_extra=(), mods=""):
        if op is None: op = {1: "buffer_store_dword", 2: "buffer_store_dwordx2", 4: "buffer_store_dwordx4"}[src.n]
        assert 0 <= off < 4096
        rd = [src, voff, srd] + ([soff] if isinstance(soff, R) else []) + list(rd_extra)
        cost = {1: 10, 2: 14, 4: 24}[src.n]
        return self.add(I(f"{op} {src}, {voff}, {srd}, {fmt(soff)} offen offset:{off}{mods}", "vst", rd, list(res), cost=cost, prio=prio))
    def bar(self, rd=(), wr=(), prio=0):
        return self.add(I("s_barrier", "bar", list(rd), list(wr) + [("BAR", 0)], prio=prio))
    def raw(self, text, kind="raw", rd=(), wr=(), cost=4):
        return self.add(I(text, kind, rd, wr, cost=cost))
    def label(self, name): return self.add(I(name + ":", "label"))
    def extend(self, other): self.ins += other.ins

class Neg:
    def __init__(self, r): self.r = r
    def __str__(self): return f"-{self.r}"
def _strip(x): return x
```

```python
from ir import *
from regs import *
from prep import WS_WO, WOCH, WS_END, WS_XS, TILE_B
import math

XBYTES = 378 * 378 * 768
ROWB = 378 * 768
OOB = 0x80000000
C_LOG2 = math.log2(math.e) / math.sqrt(96.0)
import struct
def f2u(x): return struct.unpack("<I", struct.pack("<f", x))[0]

def ex_bundle(p, mask, fn, kind, rd, wr, cost):
    q = Prog("tmp"); fn(q)
    txt = f"s_mov_b64 exec, {mask}\n" + "\n".join(i.text for i in q.ins) + "\ns_mov_b64 exec, -1"
    rds = [r for i in q.ins for r in i.rd] + mask.regs(); wrs = [r for i in q.ins for r in i.wr]
    return p.add(I(txt, kind, rds + list(rd), wrs + list(wr), cost=cost))

def blk_entry():
    p = Prog("entry")
    p.raw("s_cmp_lt_u32 s2, 243\ns_cbranch_scc1 L_go\ns_endpgm\nL_go:", "br", rd=[s(2)], wr=["scc"])
    p.raw("s_load_dwordx2 s[4:5], s[0:1], 0\ns_load_dwordx2 s[6:7], s[0:1], 32\ns_load_dwordx2 s[38:39], s[0:1], 48\ns_waitcnt lgkmcnt(0)",
          "salu", wr=[s(4, 2), s(6, 2), s(38, 2)])
    for dst, src, n in ((8, 4, XBYTES), (16, 6, XBYTES), (12, 38, WS_XS + 256 * 12288)):
        p.salu("s_mov_b32", s(dst), s(src)); p.salu("s_mov_b32", s(dst + 1), s(src + 1))
        p.salu("s_mov_b32", s(dst + 2), n); p.salu("s_mov_b32", s(dst + 3), 0x20000)
    p.valu("v_lshrrev_b32", TMP[0], 6, vTID)
    p.valu("v_and_b32", vTID, 63, vTID)
    p.valu("v_readfirstlane_b32", sW, TMP[0])
    p.valu("v_lshlrev_b32", vL16, 4, vTID)
    p.salu("s_and_b32", sT[0], S_WG, 7); p.salu("s_lshr_b32", sT[1], S_WG, 3)
    p.salu("s_mul_i32", sT[2], sT[0], 30); p.salu("s_min_u32", sT[3], sT[0], 3)
    p.salu("s_add_u32", sT[2], sT[2], sT[3]); p.salu("s_add_u32", sWG, sT[2], sT[1])
    p.salu("s_mul_i32", sT[0], sWG, 2428); p.salu("s_lshr_b32", sT[0], sT[0], 16)
    p.salu("s_mul_i32", sT[1], sT[0], 27); p.salu("s_sub_u32", sQX, sWG, sT[1])
    p.salu("s_mul_i32", sSR3, sT[0], 3)
    p.salu("s_mul_i32", sX0, sQX, 14)
    p.salu("s_mul_i32", sW6, sW, 6144)
    p.salu("s_mov_b32", sC, f2u(C_LOG2)); p.salu("s_mov_b32", sNegC, f2u(-C_LOG2))
    p.salu("s_mov_b32", sRound, 0)
    p.salu("s_mul_i32", sT[0], sWG, 12288); p.salu("s_mul_i32", sT[1], sW, 3072)
    p.salu("s_add_u32", sXS, sT[0], sT[1]); p.salu("s_add_u32", sXS, sXS, WS_XS)
    n_ = TMP[1]; g_ = TMP[2]
    p.valu("v_and_b32", n_, 15, vTID); p.valu("v_lshrrev_b32", g_, 4, vTID)
    p.valu("v_and_b32", TMP[3], 3, n_)
    p.valu("v_cmp_eq_u32", sM1, 1, TMP[3]); p.valu("v_cmp_eq_u32", sM2, 2, TMP[3]); p.valu("v_cmp_eq_u32", sM3, 3, TMP[3])
    p.valu("v_cmp_gt_u32", sEx, 12, n_); p.valu("v_cmp_eq_u32", sEx0, 0, n_)
    p.valu("v_cmp_eq_u32", "vcc", 0, g_)
    p.valu("v_cndmask_b32", vGM, 0, 1.0, "vcc")
    p.valu("v_mul_u32_u24", vSW, STOK, n_)
    p.valu("v_lshl_add_u32", vSW, g_, 4, vSW)
    p.valu("v_add_u32", vSW, STASH, vSW)
    for j in range(5):
        vals = []
        for w in range(4):
            u = 4 * j + w if j < 4 else 16 + (w & 1)
            ty, a_ = divmod(u, 6)
            vals.append([768, 0, 1536][ty] + (a_ >> 1) * 64 + (a_ & 1) * 8)
        d = sEoff[j]
        p.salu("s_mov_b32", d, vals[0])
        for w in range(1, 4):
            p.salu("s_cmp_eq_u32", sW, w); p.salu("s_cselect_b32", d, vals[w], d)
    return p
sEoff = [s(66 + j) for j in range(5)]
sH192 = s(71); sW1 = s(72)
sWY7 = s(73); sWX7 = s(74)

def blk_round_setup():
    p = Prog("rsetup")
    p.salu("s_add_u32", sT[0], sSR3, sRound); p.salu("s_mul_i32", sY0, sT[0], 14)
    p.salu("s_and_b32", sT[1], sW, 1); p.salu("s_mul_i32", sW1, sT[1], 12288); p.salu("s_mul_i32", sWX7, sT[1], 7)
    p.salu("s_lshr_b32", sT[1], sW, 1); p.salu("s_mul_i32", sWY7, sT[1], 7)
    p.salu("s_lshl_b32", sT[2], sRound, 2); p.salu("s_add_u32", sT[2], sT[2], sW)
    p.salu("s_mul_i32", sT[2], sT[2], STOK); p.salu("s_add_u32", sT[2], sT[2], STASH)
    n_ = TMP[1]; g_ = TMP[2]
    p.valu("v_and_b32", n_, 15, vTID); p.valu("v_lshrrev_b32", g_, 4, vTID)
    p.valu("v_lshlrev_b32", vSQ, 4, g_); p.valu("v_add_u32", vSQ, sT[2], vSQ)
    p.valu("v_lshrrev_b32", TMP[3], 2, n_); p.valu("v_lshlrev_b32", TMP[3], 4, TMP[3])
    p.valu("v_and_b32", TMP[4], 3, n_); p.valu("v_lshl_add_u32", TMP[3], TMP[4], 1, TMP[3])
    p.salu("s_add_u32", sT[2], sT[2], 1536)
    p.valu("v_add_u32", vSV, sT[2], TMP[3])
    return p

DWADDR = [[v(100 + t * 5 + pp) for pp in range(5)] for t in range(3)]
XVO = [v(115 + i) for i in range(4)]
DA = [v(120 + i * 4, 4) for i in range(10)]
DB = [v(160 + i * 4, 4) for i in range(10)]
DACC = [[v(200 + hh * 12 + t * 4, 4) for t in range(3)] for hh in range(2)]
SSUM = [v(224 + t * 4, 4) for t in range(4)]
SGRAM = [v(240 + t * 4, 4) for t in range(4)]
ONES = v(64, 4)
vDA0 = v(68); vDA1 = v(69)
DT = [v(70 + i) for i in range(12)]
EVO = [v(82 + i) for i in range(5)]
EB = [v(88 + i * 4, 4) for i in range(3)]

def tap_dydx(tap):
    if tap == 9: tap = 4
    return tap // 3 - 1, tap % 3 - 1

def gen_dw_addrs(p):
    n_ = TMP[0]; g_ = TMP[1]; hi = TMP[2]; b16 = TMP[3]
    p.valu("v_and_b32", n_, 15, vTID); p.valu("v_lshrrev_b32", g_, 4, vTID)
    p.valu("v_lshrrev_b32", hi, 1, g_)
    p.valu("v_and_b32", b16, 1, g_); p.valu("v_lshlrev_b32", b16, 4, b16)
    p.valu("v_cmp_eq_u32", "vcc", 1, hi)
    R0 = TMP[4]; C0 = TMP[5]; tR = TMP[6]; tC = TMP[7]; tL = TMP[8]; tq = TMP[9]
    for t in range(3):
        p.valu("v_add_u32", tq, 16 * t, n_)
        p.valu("v_mul_u32_u24", R0, 37, tq); p.valu("v_lshrrev_b32", R0, 8, R0)
        p.valu("v_mul_u32_u24", C0, 7, R0); p.valu("v_sub_u32", C0, tq, C0)
        p.salu("s_add_u32", sT[0], sWY7, 1); p.salu("s_add_u32", sT[1], sWX7, 1)
        p.valu("v_add_u32", R0, sT[0], R0); p.valu("v_add_u32", C0, sT[1], C0)
        for pp in range(5):
            dy0, dx0 = tap_dydx(2 * pp); dy1, dx1 = tap_dydx(2 * pp + 1)
            p.mov(tR, dy0); p.mov(tq, dy1); p.valu("v_cndmask_b32", tR, tR, tq, "vcc"); p.valu("v_add_u32", tR, tR, R0)
            p.mov(tC, dx0); p.mov(tq, dx1); p.valu("v_cndmask_b32", tC, tC, tq, "vcc"); p.valu("v_add_u32", tC, tC, C0)
            p.valu("v_mul_u32_u24", tL, 7, tR); p.valu("v_add_u32", tL, tL, tC); p.valu("v_and_b32", tL, 7, tL)
            d = DWADDR[t][pp]
            p.valu("v_lshlrev_b32", d, 10, tR)
            p.valu("v_lshl_add_u32", d, tL, 5, d)
            p.valu("v_lshrrev_b32", tC, 3, tC)
            p.valu("v_lshl_add_u32", d, tC, 8, d)
            p.valu("v_add_u32", d, d, b16)

def gen_x_voffs(p):
    u = TMP[0]; be = TMP[1]; hh = TMP[2]; chi = TMP[3]; kap = TMP[4]; base = TMP[5]; cc = TMP[6]; xx = TMP[7]; t8 = TMP[8]
    p.valu("v_lshrrev_b32", u, 4, vTID); p.valu("v_and_b32", be, 15, vTID)
    p.valu("v_lshrrev_b32", hh, 1, u); p.valu("v_and_b32", chi, 1, u)
    p.valu("v_lshrrev_b32", kap, 1, be)
    p.valu("v_and_b32", base, 1, be); p.valu("v_lshlrev_b32", base, 4, base)
    p.valu("v_lshl_add_u32", base, hh, 5, base)
    p.valu("v_lshlrev_b32", chi, 3, chi)
    p.salu("s_lshl_b32", sT[0], sW, 2)
    for i in range(4):
        p.salu("s_add_u32", sT[1], sT[0], i)
        p.valu("v_add_u32", cc, sT[1], kap); p.valu("v_and_b32", cc, 7, cc); p.valu("v_add_u32", cc, cc, chi)
        p.salu("s_add_u32", sT[2], sX0, -1 & 0xffffffff)
        p.valu("v_add_u32", xx, sT[2], cc)
        p.salu("s_add_u32", sT[3], sY0, sT[1]); p.salu("s_sub_u32", sT[3], sT[3], 1)
        p.salu("s_mul_i32", sT[4], sT[3], ROWB)
        p.valu("v_mul_u32_u24", XVO[i], 768, xx)
        p.valu("v_add_u32", XVO[i], XVO[i], base)
        p.valu("v_add_u32", XVO[i], sT[4], XVO[i])
        p.salu("s_cmp_lt_u32", sT[3], 378); p.salu("s_cselect_b32", sT[5], 378, 0)
        p.valu("v_cmp_gt_u32", "vcc", sT[5], xx)
        p.mov(t8, OOB)
        p.valu("v_cndmask_b32", XVO[i], t8, XVO[i], "vcc")

def dw_issue_loads(p, b):
    xs = (b % 4) * 16384
    p.salu("s_mov_b32", sT[6], b * 64)
    for i in range(4):
        p.salu("s_lshl_b32", sT[7], sW, 12); p.salu("s_add_u32", "m0", sT[7], xs + i * 1024)
        p.dma(XVO[i], SRD_X, sT[6], 0, res=[("xb", b)], rd_res=[("xfr", b)])
    ds_ = DWSL[b % 4]
    src = WS_WO + b * WOCH + 2 * TILE_B
    for k in range(3):
        if k < 2:
            p.salu("s_lshl_b32", sT[7], sW, 10); p.salu("s_add_u32", sT[8], sT[7], src + k * 4096); p.salu("s_add_u32", "m0", sT[7], ds_ + k * 4096)
        else:
            p.salu("s_and_b32", sT[7], sW, 1); p.salu("s_lshl_b32", sT[7], sT[7], 10)
            p.salu("s_add_u32", sT[8], sT[7], src + 8192); p.salu("s_add_u32", "m0", sT[7], ds_ + 8192)
        p.dma(vL16, SRD_WS, sT[8], 0, res=[("xb", b)], rd_res=[("xfr", b)])

def dw_block(p, b, bi):
    xs = (b % 4) * 16384
    ds_ = DWSL[b % 4]
    abase, aoff = (vDA0, ds_ - 65536) if ds_ < XST else (vDA1, ds_ - XST)
    for hh in range(2):
        A = [DA[hh * 5 + pp] for pp in range(5)]
        for pp in range(5):
            p.dsr(A[pp], abase, aoff + hh * 5120 + pp * 1024, res=[("xb", b)])
        for t in range(3):
            acc = DACC[hh][t]
            for pp in range(5):
                B = DB[bi[0] % 10]; bi[0] += 1
                p.dsr(B, DWADDR[t][pp], xs + hh * 512, res=[("xb", b)])
                p.mfma(acc, A[pp], B, None if pp == 0 else acc)
            t0 = DT[(hh * 3 + t) * 2]; t1 = DT[(hh * 3 + t) * 2 + 1]
            p.cvtpk(t0, acc[0], acc[1]); p.cvtpk(t1, acc[2], acc[3])
            p.accw(X(b, t)[2 * hh], t0); p.accw(X(b, t)[2 * hh + 1], t1)
    for t in range(3):
        p.mfma(SSUM[t], ONES, X(b, t), None if b == 0 else SSUM[t])
        p.mfma(SGRAM[t], X(b, t), X(b, t), None if b == 0 else SGRAM[t])

def stats_fin(p, t, dst_rc):
    g = SGRAM[t]; t0, t1, t2 = TMP[0], TMP[1], TMP[2]
    p.valu("v_cndmask_b32", t0, g[0], g[1], sM1)
    p.valu("v_cndmask_b32", t0, t0, g[2], sM2)
    p.valu("v_cndmask_b32", t0, t0, g[3], sM3)
    p.bperm(t1, TMP[9], t0)
    p.valu("v_mul_f32", t2, s(75), SSUM[t][0])
    p.valu("v_mul_f32", t0, t2, t2)
    p.valu("v_fma_f32", t0, t1, s(75), Neg(t0))
    p.valu("v_max_f32", t0, 0, t0)
    p.valu("v_add_f32", t0, s(76), t0)
    p.trans("v_rsq_f32", dst_rc, t0)

def blk_dw(with_extra):
    p = Prog("dwx" if with_extra else "dw")
    p.extend(blk_round_setup())
    p.salu("s_mov_b32", s(75), f2u(1.0 / 384)); p.salu("s_mov_b32", s(76), f2u(1e-5))
    for q in range(4): p.mov(ONES[q], 0x3f803f80)
    p.valu("v_add_u32", vDA0, 65536, vL16); p.valu("v_add_u32", vDA1, XST, vL16)
    gen_x_voffs(p)
    slots_setup(p, reset=True)
    p.bar(wr=[("xfr", 0), ("xfr", 1), ("xfr", 2), ("xfr", 3), ("ringall", 0)], rd=[])
    for b in range(3): dw_issue_loads(p, b)
    gen_dw_addrs(p)
    if with_extra: extra_tile_issue(p)
    bi = [0]
    for b in range(12):
        wr = [("xb", b)]
        if b + 3 < 12: wr.append(("xfr", b + 3))
        if b >= 1: wr.append(("xb", b - 1))
        if b == 10: wr += [("fr", 0), ("xb", 9), ("xb", 8)]
        if b == 11: wr += [("fr", 1), ("xb", 10)]
        p.bar(wr=wr)
        if b + 3 < 12: dw_issue_loads(p, b + 3)
        if b == 10: ring_dma(p, 0, first=True)
        if b == 11: ring_dma(p, 1)
        dw_block(p, b, bi)
        if with_extra and b == 1: extra_tile_compute(p)
        if with_extra and b == 3: extra_tile_gather(p)
    n_ = TMP[3]
    p.valu("v_and_b32", n_, 15, vTID); p.valu("v_lshrrev_b32", TMP[4], 2, n_)
    p.valu("v_lshl_add_u32", TMP[9], TMP[4], 4, n_); p.valu("v_lshlrev_b32", TMP[9], 2, TMP[9])
    p.valu("v_lshrrev_b32", TMP[8], 4, vTID); p.valu("v_lshlrev_b32", TMP[8], 4, TMP[8])
    for t in range(3):
        stats_fin(p, t, RC[t])
        for r in range(4):
            i = p.bperm(RK(t, r), TMP[8], RC[t]); i.text += f" offset:{4*r}"
    if with_extra: stats_fin(p, 3, RCE)
    p.bar(wr=[("ch", 0), ("xb", 11), ("xb", 10), ("fr", 2), ("exch", 0), ("ringall", 0)])
    ring_dma(p, 2)
    p.valu("v_add_u32", vWB[0], sSl[0], vL16)
    for f in range(NPRE): p.dsr(WR(f), vWB[0], f * 1024, res=[("ch", 0)])
    return p

NPRE = 4

EA = [v(120 + i * 4, 4) for i in range(10)]
def extra_tile_issue(p):
    n_ = TMP[0]; g_ = TMP[1]; hi = TMP[2]; ye = TMP[3]; xe = TMP[4]; yy = TMP[5]; xx = TMP[6]; tq = TMP[7]; base = TMP[8]
    p.valu("v_and_b32", n_, 15, vTID); p.valu("v_lshrrev_b32", g_, 4, vTID); p.valu("v_lshrrev_b32", hi, 1, g_)
    p.valu("v_lshrrev_b32", ye, 2, n_); p.valu("v_add_u32", ye, sSR3, ye); p.valu("v_mul_u32_u24", ye, 14, ye)
    p.valu("v_bfe_u32", tq, n_, 1, 1); p.valu("v_mul_u32_u24", tq, 7, tq); p.valu("v_add3_u32", ye, ye, tq, 6)
    p.valu("v_and_b32", tq, 1, n_); p.valu("v_mul_u32_u24", tq, 7, tq); p.valu("v_add3_u32", xe, tq, sX0, 6)
    p.valu("v_and_b32", base, 1, g_); p.valu("v_lshlrev_b32", base, 4, base)
    p.salu("s_lshl_b32", sT[0], sW, 5); p.valu("v_add_u32", base, sT[0], base)
    for pp in range(5):
        dy0, dx0 = tap_dydx(2 * pp); dy1, dx1 = tap_dydx(2 * pp + 1)
        p.valu("v_cmp_eq_u32", "vcc", 1, hi)
        p.mov(yy, dy0); p.mov(tq, dy1); p.valu("v_cndmask_b32", yy, yy, tq, "vcc"); p.valu("v_add_u32", yy, yy, ye)
        p.mov(xx, dx0); p.mov(tq, dx1); p.valu("v_cndmask_b32", xx, xx, tq, "vcc"); p.valu("v_add_u32", xx, xx, xe)
        d = EVO[pp]
        p.salu("s_mov_b32", sT[1], ROWB)
        p.valu("v_mul_lo_u32", d, yy, sT[1])
        p.valu("v_mul_u32_u24", tq, 768, xx); p.valu("v_add3_u32", d, d, tq, base)
        p.valu("v_max_u32", tq, yy, xx)
        p.salu("s_mov_b32", sT[2], 378)
        p.valu("v_cmp_gt_u32", "vcc", sT[2], tq)
        p.mov(tq, OOB); p.valu("v_cndmask_b32", d, tq, d, "vcc")
        p.valu("v_cndmask_b32", d, tq, d, sEx)

def extra_tile_compute(p):
    p.salu("s_lshr_b32", sT[9], sW, 1); p.salu("s_mul_i32", sT[9], sT[9], WOCH)
    p.salu("s_and_b32", sT[10], sW, 1); p.salu("s_mul_i32", sT[10], sT[10], 5120)
    p.salu("s_add_u32", sT[9], sT[9], sT[10]); p.salu("s_add_u32", sT[9], sT[9], WS_WO + 2 * TILE_B)
    p.salu("s_lshr_b32", sT[10], sW, 1); p.salu("s_lshl_b32", sT[10], sT[10], 10)
    p.salu("s_and_b32", sT[11], sW, 1); p.salu("s_lshl_b32", sT[11], sT[11], 3)
    p.salu("s_add_u32", sT[10], sT[10], sT[11]); p.salu("s_add_u32", sT[10], sT[10], EXCH)
    p.valu("v_add_u32", EXW, sT[10], vL16)
    p.valu("v_lshlrev_b32", EXS, 3, vTID)
    for j in range(6):
        st = (j % 2) * 5
        for pp in range(5):
            p.salu("s_add_u32", sT[11], sT[9], j * 2 * WOCH + pp * 1024)
            p.vld(EXA[st + pp], vL16, SRD_WS, sT[11], 0)
            p.vld(EXB[st + pp], EVO[pp], SRD_X, 0, j * 128)
        acc = EXACC[j % 2]
        for pp in range(5):
            p.mfma(acc, EXA[st + pp], EXB[st + pp], None if pp == 0 else acc)
        t = EXT[j % 2]
        p.cvtpk(t[0], acc[0], acc[1]); p.cvtpk(t[1], acc[2], acc[3])
        p.dsw(EXW, t, j * 2048, res=[("exch", 0)])
        p.vst(t, EXS, SRD_WS, sXS, j * 512, res=[("xs", 0)])
EXA = [a(192 + i * 4, 4) for i in range(10)]
EXB = [a(144 + i * 4, 4) for i in range(10)]
EXACC = [v(88, 4), v(92, 4)]
EXT = [v(96, 2), v(98, 2)]
EXW = v(82 + 5); EXS = v(36)

def extra_tile_gather(p):
    p.bar(wr=[("exch", 0)])
    p.valu("v_add_u32", TMP[0], EXCH, vL16)
    for kb in range(12):
        p.dsr(XE(kb), TMP[0], kb * 1024, res=[("exch", 0)])
    for kb in range(12):
        p.mfma(SSUM[3], ONES, XE(kb), None if kb == 0 else SSUM[3])
        p.mfma(SGRAM[3], XE(kb), XE(kb), None if kb == 0 else SGRAM[3])

def slots_setup(p, reset=False, adv=0):
    if reset: p.salu("s_mov_b32", sS0, 0)
    if adv: p.salu("s_add_u32", sS0, sS0, adv)
    for k in range(4):
        p.salu("s_add_u32", sT[0], sS0, k); p.salu("s_and_b32", sT[0], sT[0], 3); p.salu("s_mul_i32", sSl[k], sT[0], SLOT)

def ring_dma(p, cid, first=False, stride=None, prio=0):
    if first:
        p.salu("s_mov_b32", sSrc, sW6)
    slot = sSl[cid & 3]
    for half in range(2):
        if half == 0: p.salu("s_add_u32", "m0", slot, sW6, prio=prio)
        else:
            p.salu("s_add_u32", sT[5], slot, sW6, prio=prio); p.salu("s_add_u32", sSrc2, sSrc, 4096, prio=prio)
            p.salu("s_add_u32", "m0", sT[5], 4096, prio=prio)
        src = sSrc if half == 0 else sSrc2
        for k in range(4 if half == 0 else 2):
            p.dma(vL16, SRD_WS, src, k * 1024, res=[("ch", cid)], rd_res=[("fr", cid)], prio=prio)
    p.salu("s_add_u32", sSrc, sSrc, SLOT if stride is None else stride, prio=prio)
```

```python
from kern import *

def wbase(p, cc):
    r = vWB[cc % 3]
    p.valu("v_add_u32", r, sSl[cc & 3], vL16)
    return r

class FragStream:
    def __init__(self, p, pre): self.p = p; self.n = 0; self.pre = pre
    def get(self, base, off, res):
        w = WR(self.n)
        if self.n >= self.pre: self.p.dsr(w, base, off, res=res)
        self.n += 1
        return w

def chunk_barrier(p, c, tag_after=None, extra_wr=(), lag=2):
    wr = [("ch", c), ("ch", c - 2), ("fr", c + 2)] + list(extra_wr)
    rd = [tag_after] if tag_after else []
    return p.bar(rd=rd, wr=wr)

def gemm_tile(p, fs, base, toff, cres, kind, accset, tagk=None, tag=None):
    acc = ACC[accset]
    for kb in range(12):
        w = fs.get(base, toff + kb * 1024, [cres])
        for t in range(3):
            c = None if kb == 0 else acc[t]
            if kind == "kq": i = p.mfma(acc[t], w, X(kb, t), c)
            else: i = p.mfma(acc[t], X(kb, t), w, c)
            if tag is not None and kb == tagk and t == 0: i.wr.append(tag)

def epi_kq(p, accset, a_, dstf):
    acc = ACC[accset]
    for t in range(3):
        for r in range(4): p.valu("v_mul_f32", acc[t][r], RC[t], acc[t][r])
        d = dstf(t, a_ >> 1)
        p.cvtpk(d[2 * (a_ & 1)], acc[t][0], acc[t][1]); p.cvtpk(d[2 * (a_ & 1) + 1], acc[t][2], acc[t][3])

def epi_v(p, accset, a_):
    acc = ACC[accset]
    for t in range(3):
        d = Vf(a_, t >> 1)
        o = (t & 1) * 2
        p.cvtpk(d[o], acc[t][0], acc[t][1]); p.cvtpk(d[o + 1], acc[t][2], acc[t][3])

def extra_block(p, fs, j, cc_a, cc_b, stash_res):
    if cc_a != cc_b:
        p.salu("s_cmp_ge_u32", sW, 2); p.salu("s_cselect_b32", sT[0], sSl[cc_b & 3], sSl[cc_a & 3])
        p.salu("s_add_u32", sT[0], sT[0], sW1)
    else:
        p.salu("s_add_u32", sT[0], sSl[cc_a & 3], sW1)
    p.valu("v_add_u32", vXB, sT[0], vL16)
    for kb in range(12):
        w = fs.get(vXB, kb * 1024, [("ch", cc_a), ("ch", cc_b)])
        p.mfma(ACCE, w, XE(kb), None if kb == 0 else ACCE)
    for r in range(4): p.valu("v_mul_f32", ACCE[r], RCE, ACCE[r])
    t = v(TMP[8].b, 2)
    p.cvtpk(t[0], ACCE[0], ACCE[1]); p.cvtpk(t[1], ACCE[2], ACCE[3])
    p.salu("s_add_u32", sT[1], sEoff[j], sH192)
    p.valu("v_add_u32", TMP[7], sT[1], vSW)
    ex_bundle(p, sEx, lambda q: q.dsw(TMP[7], t, 0), "dsw", [], [stash_res], 20)

QORD = [3, 0, 1, 2]
def s_phase(p):
    order = [(3, 3), (3, 2), (0, 3), (1, 3), (2, 3)]
    order += [(3, 0), (3, 1)]
    order += [(0, 2), (1, 2), (2, 2), (0, 0), (1, 0), (2, 0), (0, 1), (1, 1), (2, 1)]
    for (kt, qt) in order:
        d = Sf(kt, qt)
        for s3 in range(3):
            A = KE(s3) if kt == 3 else Kf(kt, s3)
            B = QE(s3) if qt == 3 else Qf(qt, s3)
            p.mfma(d, A, B, None if s3 == 0 else d)

def softmax(p, qt, k):
    m = TMP[(k % 2) * 3]; m2 = TMP[(k % 2) * 3 + 1]; ng = TMP[(k % 2) * 3 + 2]; l = LINV[qt]; l2 = TMP[6]
    vals = [Sf(kt, qt)[r] for kt in range(3) for r in range(4)] + [Sf(3, qt)[0]]
    p.valu("v_max3_f32", m, vals[0], vals[1], vals[2])
    for i in range(3, 13, 2): p.valu("v_max3_f32", m, m, vals[i], vals[i + 1])
    p.mov(m2, m); p.swap16(m, m2); p.valu("v_max_f32", m, m, m2)
    p.mov(m2, m); p.swap32(m, m2); p.valu("v_max_f32", m, m, m2)
    p.valu("v_mul_f32", ng, sNegC, m)
    for x in vals:
        p.valu("v_fma_f32", x, x, sC, ng)
        p.trans("v_exp_f32", x, x)
    e = vals[12]
    p.valu("v_mul_f32", e, vGM, e)
    p.valu("v_add_f32", l, vals[0], vals[1])
    for x in vals[2:]: p.valu("v_add_f32", l, l, x)
    p.mov(l2, l); p.swap16(l, l2); p.valu("v_add_f32", l, l, l2)
    p.mov(l2, l); p.swap32(l, l2); p.valu("v_add_f32", l, l, l2)
    p.trans("v_rcp_f32", l, l)
    for kt in range(3):
        sf = Sf(kt, qt)
        for r in range(4): p.valu("v_mul_f32", sf[r], RK(kt, r), sf[r])
        d = Pf(qt, kt >> 1); o = (kt & 1) * 2
        p.cvtpk(d[o], sf[0], sf[1]); p.cvtpk(d[o + 1], sf[2], sf[3])
    d = Pf(qt, 1)
    p.cvtpk(d[2], e, 0); p.mov(d[3], 0)

def pv_phase(p, h, park):
    for a_ in range(6):
        p.dsr(Vf(a_, 1)[2], vSV, h * 192 + (a_ >> 1) * 64 + (a_ & 1) * 8, res=[("sV", 0)], op="ds_read_u16")
    for k, qt in enumerate(QORD):
        oa = OACC[k % 2]
        for a_ in range(6): p.mfma(oa[a_], Vf(a_, 0), Pf(qt, 0), None)
        for a_ in range(6): p.mfma(oa[a_], Vf(a_, 1), Pf(qt, 1), oa[a_])
        for a_ in range(6):
            o = oa[a_]
            for r in range(4): p.valu("v_mul_f32", o[r], LINV[qt], o[r])
            if qt == 3:
                t = v(TMP[8].b, 2)
                p.cvtpk(t[0], o[0], o[1]); p.cvtpk(t[1], o[2], o[3])
                off = h * 192 + (a_ >> 1) * 64 + (a_ & 1) * 8
                ex_bundle(p, sEx0, lambda q: q.dsw(vSQ, t, off), "dsw", [], [("sO", 0)], 20)
            else:
                home = OH(h, a_ >> 1, qt)
                hh = (a_ & 1) * 2
                if h == 0 and park:
                    t = v(TMP[8].b, 2)
                    p.cvtpk(t[0], o[0], o[1]); p.cvtpk(t[1], o[2], o[3])
                    p.dsw(vPK, t, ((a_ >> 1) * 3 + qt) * 1024 + (a_ & 1) * 8, res=[("park", 0)])
                elif home.c == "a":
                    t0, t1 = TMP[8], TMP[9]
                    p.cvtpk(t0, o[0], o[1]); p.cvtpk(t1, o[2], o[3])
                    p.accw(home[hh], t0); p.accw(home[hh + 1], t1)
                else:
                    p.cvtpk(home[hh], o[0], o[1]); p.cvtpk(home[hh + 1], o[2], o[3])
vPK = v(254)

TAGK = 7
def chunk_mid(p, cc, r0, fs, extra_wr=(), stride=None, last_dma=None):
    if r0:
        if cc in (1, 3, 5, 7): extra_block(p, fs, (cc - 1) // 2, cc - 1, cc, ("sKQ", 0) if cc < 7 else ("sV", 0))
        if cc == 8: extra_block(p, fs, 4, 8, 8, ("sV", 0))
    wr = [("ch", cc + 1), ("ch", cc - 1), ("fr", cc + 3)] + list(extra_wr)
    p.bar(rd=[("T", cc)], wr=wr)
    if last_dma is None or cc + 3 <= last_dma:
        ring_dma(p, cc + 3, stride=stride)

def prefetch_next(p, cc_next):
    base = wbase(p, cc_next)
    for f in range(NPRE): p.dsr(WR(f), base, f * 1024, res=[("ch", cc_next)])

def head_scalars(p, first):
    if first:
        p.salu("s_mov_b32", sH192, 0)
    else:
        slots_setup(p, adv=9)
        p.salu("s_add_u32", sH192, sH192, 192)
    p.salu("s_cmp_eq_u32", sH192, 3 * 192); p.salu("s_mov_b32", sStr, SLOT); p.salu("s_cselect_b32", sStr, WOCH, sStr)

def blk_b1(hprev, r0):
    p = Prog(f"b1{'x' if r0 else ''}_{'a' if hprev is None else hprev}")
    head_scalars(p, hprev is None)
    if r0 and hprev == 0:
        p.salu("s_mul_i32", sT[0], sW, 9216); p.salu("s_add_u32", sT[0], sT[0], PARK); p.valu("v_add_u32", vPK, sT[0], vL16)
    fs = FragStream(p, NPRE)
    if hprev is not None: pv_phase(p, hprev, park=r0)
    tile = 0
    for cc in range(3):
        base = vWB[cc % 3] if cc == 0 else wbase(p, cc)
        for tt in range(2):
            a_ = cc * 2 + tt
            gemm_tile(p, fs, base, tt * TILE_B, ("ch", cc), "kq", tile % 2, tagk=TAGK, tag=("T", cc) if tt == 0 else None)
            epi_kq(p, tile % 2, a_, Kf)
            tile += 1
            if tt == 0: chunk_mid(p, cc, r0, fs)
    prefetch_next(p, 3)
    return p

def blk_b2(r0):
    p = Prog(f"b2{'x' if r0 else ''}")
    fs = FragStream(p, NPRE)
    vq = v(252); vs = v(253)
    p.valu("v_add_u32", vq, sH192, vSQ)
    tile = 6
    for cc in range(3, 9):
        base = vWB[cc % 3] if cc == 3 else wbase(p, cc)
        if cc == 6:
            s_phase(p)
            for a_ in (4, 5): p.mov(Vf(a_, 1)[3], 0)
            for k, qt in enumerate(QORD): softmax(p, qt, k)
        for tt in range(2):
            a_ = (cc % 3) * 2 + tt
            kind = "kq" if cc < 6 else "v"
            gemm_tile(p, fs, base, tt * TILE_B, ("ch", cc), kind, tile % 2, tagk=TAGK, tag=("T", cc) if tt == 0 else None)
            if kind == "kq": epi_kq(p, tile % 2, a_, Qf)
            else: epi_v(p, tile % 2, a_)
            tile += 1
            if tt == 0:
                ew = []
                if r0 and cc == 5: ew = [("sKQ", 0)]
                if r0 and cc == 8: ew = [("sV", 0)]
                chunk_mid(p, cc, r0, fs, extra_wr=ew, stride=(sStr if cc + 3 >= 9 else None))
                if cc == 5:
                    for s3 in range(3):
                        p.dsr(KE(s3), vq, 768 + s3 * 64, res=[("sKQ", 0)])
                        p.dsr(QE(s3), vq, s3 * 64, res=[("sKQ", 0)])
    prefetch_next(p, 9)
    return p

vOUT = [v(100), v(101), v(102)]
OT = [v(104 + t * 4, 4) for t in range(3)]
RU = [v(116), v(117)]
OE = [v(120 + kb * 4, 4) for kb in range(7)] + [v(184 + kb * 4, 4) for kb in range(5)]
XSR = [v(204 + j * 2, 2) for j in range(6)]
vOE = v(216); vOUTE = v(217); ETMP = v(218, 2); vXS2 = v(220)

def gen_out_offsets(p):
    n_ = TMP[0]; g_ = TMP[1]; tq = TMP[2]; rr = TMP[3]; cc = TMP[4]; go = TMP[5]
    p.valu("v_and_b32", n_, 15, vTID); p.valu("v_lshrrev_b32", g_, 4, vTID)
    p.valu("v_and_b32", go, 1, g_); p.valu("v_lshlrev_b32", go, 5, go)
    p.valu("v_lshrrev_b32", tq, 1, g_); p.valu("v_lshl_add_u32", go, tq, 4, go)
    p.salu("s_add_u32", sT[0], sY0, sWY7); p.salu("s_mul_i32", sT[0], sT[0], ROWB)
    p.salu("s_add_u32", sT[1], sX0, sWX7); p.salu("s_mul_i32", sT[1], sT[1], 768); p.salu("s_add_u32", sT[0], sT[0], sT[1])
    p.salu("s_mov_b32", sT[2], ROWB)
    for t in range(3):
        p.valu("v_add_u32", tq, 16 * t, n_)
        p.valu("v_mul_u32_u24", rr, 37, tq); p.valu("v_lshrrev_b32", rr, 8, rr)
        p.valu("v_mul_u32_u24", cc, 7, rr); p.valu("v_sub_u32", cc, tq, cc)
        p.valu("v_mul_lo_u32", rr, rr, sT[2]); p.valu("v_mul_u32_u24", cc, 768, cc)
        p.valu("v_add3_u32", vOUT[t], rr, cc, go); p.valu("v_add_u32", vOUT[t], sT[0], vOUT[t])

def blk_out(r0, last):
    p = Prog("out" + ("x" if r0 else "") + ("l" if last else ""))
    slots_setup(p, adv=9)
    fs = FragStream(p, NPRE)
    if r0:
        for kb in range(3):
            for t in range(3): p.dsr(OH0(kb, t), vPK, (kb * 3 + t) * 1024, res=[("park", 0)])
    pv_phase(p, 3, park=False)
    gen_out_offsets(p)
    if last:
        n_ = TMP[0]; g_ = TMP[1]; ye = TMP[3]; xe = TMP[4]; tq = TMP[2]
        p.valu("v_and_b32", n_, 15, vTID); p.valu("v_lshrrev_b32", g_, 4, vTID)
        p.valu("v_min_u32", tq, 11, n_); p.valu("v_mul_u32_u24", vOE, STOK, tq); p.valu("v_lshl_add_u32", vOE, g_, 4, vOE); p.valu("v_add_u32", vOE, STASH, vOE)
        p.valu("v_lshrrev_b32", ye, 2, n_); p.valu("v_add_u32", ye, sSR3, ye); p.valu("v_mul_u32_u24", ye, 14, ye)
        p.valu("v_bfe_u32", tq, n_, 1, 1); p.valu("v_mul_u32_u24", tq, 7, tq); p.valu("v_add3_u32", ye, ye, tq, 6)
        p.valu("v_and_b32", tq, 1, n_); p.valu("v_mul_u32_u24", tq, 7, tq); p.valu("v_add3_u32", xe, tq, sX0, 6)
        p.salu("s_mov_b32", sT[3], ROWB)
        p.valu("v_mul_lo_u32", ye, ye, sT[3]); p.valu("v_mul_u32_u24", xe, 768, xe)
        p.valu("v_lshlrev_b32", tq, 3, g_); p.valu("v_add3_u32", vOUTE, ye, xe, tq)
        p.salu("s_lshl_b32", sT[3], sW, 5); p.valu("v_add_u32", vOUTE, sT[3], vOUTE)
        p.mov(tq, OOB); p.valu("v_cndmask_b32", vOUTE, tq, vOUTE, sEx)
        p.valu("v_lshlrev_b32", vXS2, 3, vTID)
        for j in range(6): p.vld(XSR[j], vXS2, SRD_WS, sXS, j * 512, res=[("xs", 0)])
    tile = 0
    for cc in range(12):
        base = vWB[cc % 3] if cc == 0 else wbase(p, cc)
        for tt in range(2):
            acc = ACC[tile % 2]
            for t in range(3):
                x = X(cc, t)
                p.accr(RU[0], x[2 * tt]); p.accr(RU[1], x[2 * tt + 1])
                p.valu("v_lshlrev_b32", acc[t][0], 16, RU[0]); p.valu("v_and_b32", acc[t][1], 0xffff0000, RU[0])
                p.valu("v_lshlrev_b32", acc[t][2], 16, RU[1]); p.valu("v_and_b32", acc[t][3], 0xffff0000, RU[1])
            for kb in range(12):
                w = fs.get(base, tt * TILE_B + kb * 1024, [("ch", cc)])
                for t in range(3):
                    i = p.mfma(acc[t], w, OH(kb // 3, kb % 3, t), acc[t])
                    if tt == 0 and kb == TAGK and t == 0: i.wr.append(("T", cc))
            for t in range(3):
                p.cvtpk(OT[t][2 * tt], acc[t][0], acc[t][1]); p.cvtpk(OT[t][2 * tt + 1], acc[t][2], acc[t][3])
                if tt == 1:
                    p.swap16(OT[t][0], OT[t][2]); p.swap16(OT[t][1], OT[t][3])
                    p.vst(OT[t], vOUT[t], SRD_OUT, 0, cc * 64)
            tile += 1
            if tt == 0:
                if last and cc % 2 == 1:
                    j = cc // 2
                    if cc == 1:
                        for kb in range(12): p.dsr(OE[kb], vOE, kb * 64, res=[("sO", 0)])
                    p.salu("s_cmp_ge_u32", sW, 2); p.salu("s_cselect_b32", sT[0], sSl[cc & 3], sSl[(cc - 1) & 3])
                    p.salu("s_add_u32", sT[0], sT[0], sW1)
                    p.valu("v_add_u32", vXB, sT[0], vL16)
                    x = XSR[j]
                    p.valu("v_lshlrev_b32", ACCE[0], 16, x[0]); p.valu("v_and_b32", ACCE[1], 0xffff0000, x[0])
                    p.valu("v_lshlrev_b32", ACCE[2], 16, x[1]); p.valu("v_and_b32", ACCE[3], 0xffff0000, x[1])
                    for kb in range(12):
                        w = fs.get(vXB, kb * 1024, [("ch", cc - 1), ("ch", cc)])
                        p.mfma(ACCE, w, OE[kb], ACCE)
                    p.cvtpk(ETMP[0], ACCE[0], ACCE[1]); p.cvtpk(ETMP[1], ACCE[2], ACCE[3])
                    p.vst(ETMP, vOUTE, SRD_OUT, 0, j * 128)
                if cc < 11:
                    wr = [("ch", cc + 1), ("ch", cc - 1), ("fr", cc + 3)]
                    if last and cc == 0: wr.append(("sO", 0))
                    p.bar(rd=[("T", cc)], wr=wr)
                    if cc + 3 <= 11: ring_dma(p, cc + 3, stride=WOCH)
    return p
```

```python
from ir import *
from fin import finalize

WS_QKV = 0
TILE_B = 12288
WS_WO = 72 * TILE_B
WOCH = 36864
WS_END = WS_WO + 12 * WOCH
WS_XS = 2 << 20
WS_TOTAL_USED = WS_XS + 256 * 12288

def srd(p, dst, ptr_lo, nbytes):
    p.salu("s_mov_b32", s(dst), s(ptr_lo))
    p.salu("s_mov_b32", s(dst + 1), s(ptr_lo + 1))
    p.salu("s_mov_b32", s(dst + 2), nbytes)
    p.salu("s_mov_b32", s(dst + 3), 0x20000)

def build_prep():
    blocks = {}
    e = Prog("pe")
    e.raw("s_load_dwordx4 s[4:7], s[0:1], 8\ns_load_dwordx2 s[8:9], s[0:1], 24\ns_load_dwordx2 s[10:11], s[0:1], 48\ns_waitcnt lgkmcnt(0)",
          "salu", wr=[s(4, 4), s(8, 2), s(10, 2)])
    srd(e, 12, 10, WS_END)
    e.valu("v_and_b32", v(1), 63, v(0))
    e.valu("v_lshrrev_b32", v(2), 6, v(0))
    e.valu("v_and_b32", v(3), 15, v(1))
    e.valu("v_lshrrev_b32", v(4), 4, v(1))
    e.valu("v_readfirstlane_b32", s(20), v(2))
    e.raw("s_cmp_ge_u32 s2, 120\ns_cbranch_scc1 L_prep_end\ns_cmp_ge_u32 s2, 96\ns_cbranch_scc1 L_prep_dw", "br", rd=[s(2)], wr=["scc"])
    blocks["pe"] = e
    w = Prog("pw")
    w.salu("s_mul_i32", s(21), s(2), 57); w.salu("s_lshr_b32", s(21), s(21), 10)
    w.salu("s_mul_i32", s(22), s(21), 18); w.salu("s_sub_u32", s(22), s(2), s(22))
    w.salu("s_mul_i32", s(23), s(22), 43); w.salu("s_lshr_b32", s(23), s(23), 8)
    w.salu("s_mul_i32", s(24), s(23), 6); w.salu("s_sub_u32", s(24), s(22), s(24))
    w.salu("s_cmp_eq_u32", s(23), 0); w.salu("s_cselect_b32", s(25), 384, 0)
    w.salu("s_cmp_eq_u32", s(23), 2); w.salu("s_cselect_b32", s(25), 768, s(25))
    w.salu("s_mul_i32", s(26), s(21), 96); w.salu("s_add_u32", s(25), s(25), s(26))
    w.salu("s_lshl_b32", s(26), s(24), 4); w.salu("s_add_u32", s(25), s(25), s(26))
    w.salu("s_mul_i32", s(27), s(2), TILE_B)
    w.salu("s_sub_u32", s(28), s(2), 72)
    w.salu("s_lshl_b32", s(29), s(28), 4)
    w.salu("s_lshr_b32", s(30), s(28), 1); w.salu("s_mul_i32", s(30), s(30), WOCH)
    w.salu("s_and_b32", s(31), s(28), 1); w.salu("s_mul_i32", s(31), s(31), TILE_B)
    w.salu("s_add_u32", s(30), s(30), s(31)); w.salu("s_add_u32", s(30), s(30), WS_WO)
    w.salu("s_cmp_ge_u32", s(2), 72)
    w.salu("s_cselect_b32", s(25), s(29), s(25))
    w.salu("s_cselect_b32", s(27), s(30), s(27))
    w.salu("s_mov_b32", s(32), 2304); w.salu("s_cselect_b32", s(32), 768, s(32))
    w.salu("s_cselect_b32", s(16), s(8), s(6))
    w.salu("s_cselect_b32", s(17), s(9), s(7))
    w.salu("s_mov_b32", s(18), 384 * 2304); w.salu("s_cselect_b32", s(18), 384 * 768, s(18))
    w.salu("s_mov_b32", s(19), 0x20000)
    w.salu("s_cselect_b32", s(33), 0, 0x3b2aaaab)
    w.salu("s_mul_i32", s(34), s(20), 96)
    w.valu("v_lshlrev_b32", v(5), 2, v(4))
    w.valu("v_add_u32", v(5), s(34), v(5))
    w.valu("v_mul_lo_u32", v(5), v(5), s(32))
    w.valu("v_add_u32", v(6), s(25), v(3))
    w.valu("v_lshl_add_u32", v(5), v(6), 1, v(5))
    for kk in range(3):
        for j in range(8):
            row = 32 * kk + 16 * (j >> 2) + (j & 3)
            w.salu("s_mul_i32", s(35), s(32), row)
            w.vld(v(16 + kk * 8 + j), v(5), s(16, 4), s(35), op="buffer_load_ushort")
    for k in range(24): w.valu("v_lshlrev_b32", v(16 + k), 16, v(16 + k))
    w.valu("v_add_f32", v(8), v(16), v(17))
    for k in range(2, 24): w.valu("v_add_f32", v(8), v(8), v(16 + k))
    w.mov(v(9), v(8)); w.swap16(v(8), v(9)); w.valu("v_add_f32", v(8), v(8), v(9))
    w.mov(v(9), v(8)); w.swap32(v(8), v(9)); w.valu("v_add_f32", v(8), v(8), v(9))
    w.valu("v_lshlrev_b32", v(10), 2, v(3))
    w.valu("v_lshl_add_u32", v(11), v(2), 6, v(10))
    w.dsw(v(11), v(8), 0, res=[("L", "red")])
    w.bar(wr=[("L", "red")])
    for q in range(4): w.dsr(v(12 + q), v(10), q * 64, res=[("L", "red")])
    w.valu("v_add_f32", v(12), v(12), v(13)); w.valu("v_add_f32", v(14), v(14), v(15)); w.valu("v_add_f32", v(12), v(12), v(14))
    w.valu("v_mul_f32", v(12), s(33), v(12))
    for k in range(24): w.valu("v_sub_f32", v(16 + k), v(16 + k), v(12))
    for kk in range(3):
        for q in range(4): w.cvtpk(v(40 + kk * 4 + q), v(16 + kk * 8 + 2 * q), v(16 + kk * 8 + 2 * q + 1))
    w.salu("s_mul_i32", s(34), s(20), 3072); w.salu("s_add_u32", s(27), s(27), s(34))
    w.valu("v_lshlrev_b32", v(7), 4, v(1))
    for kk in range(3): w.vst(v(40 + kk * 4, 4), v(7), s(12, 4), s(27), kk * 1024)
    w.raw("s_endpgm", "br")
    blocks["pw"] = w
    d = Prog("pd")
    d.raw("L_prep_dw:", "label")
    srd(d, 16, 4, 9 * 768)
    d.salu("s_sub_u32", s(21), s(2), 96)
    d.salu("s_lshr_b32", s(22), s(21), 1); d.salu("s_mul_i32", s(22), s(22), WOCH)
    d.salu("s_and_b32", s(23), s(21), 1); d.salu("s_mul_i32", s(23), s(23), 5120)
    d.salu("s_add_u32", s(22), s(22), s(23)); d.salu("s_add_u32", s(22), s(22), WS_WO + 2 * TILE_B)
    d.valu("v_lshlrev_b32", v(7), 4, v(1))
    d.valu("v_and_b32", v(8), 1, v(4)); d.valu("v_lshrrev_b32", v(9), 3, v(3))
    d.valu("v_cmp_eq_u32", "vcc", v(8), v(9))
    d.valu("v_and_b32", v(10), 1, v(3))
    d.valu("v_lshlrev_b32", v(10), 4, v(10))
    d.mov(v(11), 0xffff); d.valu("v_lshlrev_b32", v(11), v(10), v(11))
    d.valu("v_cndmask_b32", v(11), 0, v(11), "vcc")
    d.valu("v_bfe_u32", v(12), v(3), 1, 2)
    for q in range(4):
        d.valu("v_cmp_eq_u32", "vcc", q, v(12))
        d.valu("v_cndmask_b32", v(20 + q), 0, v(11), "vcc")
    d.valu("v_lshrrev_b32", v(13), 1, v(4))
    def one(pexpr_sgpr):
        d.salu("s_lshl_b32", s(24), pexpr_sgpr, 1)
        d.valu("v_add_u32", v(14), s(24), v(13))
        d.valu("v_mul_u32_u24", v(15), 768, v(14))
        d.salu("s_lshl_b32", s(25), s(21), 5)
        d.valu("v_lshl_add_u32", v(16), v(3), 1, v(15))
        d.vld(v(17), v(16), s(16, 4), s(25), op="buffer_load_ushort")
        d.valu("v_cmp_eq_u32", "vcc", 9, v(14))
        d.mov(v(18), 0x3f80)
        d.valu("v_cndmask_b32", v(17), v(17), v(18), "vcc")
        d.valu("v_lshl_or_b32", v(17), v(17), 16, v(17))
        for q in range(4): d.valu("v_and_b32", v(24 + q), v(17), v(20 + q))
        d.salu("s_lshl_b32", s(26), pexpr_sgpr, 10); d.salu("s_add_u32", s(26), s(26), s(22))
        d.vst(v(24, 4), v(7), s(12, 4), s(26), 0)
    one(s(20))
    d.raw("s_cmp_lg_u32 s20, 0\ns_cbranch_scc1 L_prep_end", "br", rd=[s(20)], wr=["scc"])
    d.salu("s_mov_b32", s(27), 4)
    one(s(27))
    d.raw("L_prep_end:", "label")
    d.raw("s_endpgm", "br")
    blocks["pd"] = d
    out = finalize(blocks, [("pe", {}), ("pw", {}), ("pe", {}), ("pd", {})], verbose=False)
    lines = []
    for n in ("pe", "pw", "pd"):
        lines += [i.text for i in out[n].ins]
    return lines

PREP_GRID = 120
PREP_LDS = 256
```

```python
from ir import *

RING = 0; SLOT = 24576
STASH = 98304; STOK = 2320
XST = STASH + 12 * STOK
PARK = XST
LDS_TOTAL = 163840
EXCH = 86016
DWSL = [65536, 65536 + 10240, XST, XST + 10240]

S_KARG = s(0, 2); S_WG = s(2)
SRD_X = s(8, 4); SRD_WS = s(12, 4); SRD_OUT = s(16, 4)
sW = s(20)
sRound = s(21); sHead = s(22)
sW6 = s(23)
sSrc = s(24); sSrc2 = s(25)
sStr = s(26)
sS0 = s(27)
sSl = [s(28), s(29), s(30), s(31)]
sC = s(32)
sY0 = s(33); sX0 = s(34)
sSR3 = s(35)
sQX = s(36)
sT = [s(37 + i) for i in range(12)]
sM1 = s(50, 2); sM2 = s(52, 2); sM3 = s(54, 2)
sEx = s(56, 2)
sEx0 = s(58, 2)
sXS = s(60)
sNegC = s(61)
sStE = s(62)
sWG = s(63)
sBlk = s(64)

def X(kb, t): return a(kb * 12 + t * 4, 4)
E0 = 144
def XE(kb): return a(E0 + kb * 4, 4)
def OH0(kb, t): return a(E0 + (kb * 3 + t) * 4, 4)
O1B = 192
def OH1(kb, t): return a(O1B + (kb * 3 + t) * 4, 4)
WRB = 228; NWR = 6
def WR(i): return a(WRB + (i % NWR) * 4, 4)

vTID = v(0)
vL16 = v(1)
vWB = [v(2), v(3), v(4)]
RC = [v(5), v(6), v(7)]
def RK(t, r): return v(8 + t * 4 + r)
vSQ = v(20)
vSV = v(21)
vSW = v(22)
vGM = v(23)
RCE = v(24)
vXB = v(25)
TMP = [v(26 + i) for i in range(10)]
ACC = [[v(36 + st * 12 + t * 4, 4) for t in range(3)] for st in range(2)]
ACCE = v(60, 4)
OH2B = 64
def OH2(kb, t): return v(OH2B + (kb * 3 + t) * 4, 4)
RKB = 100
def Kf(t, s3): return v(RKB + (t * 3 + s3) * 4, 4)
def Vf(a_, u): return v(RKB + a_ * 8 + u * 4, 4)
RQB = 148
def Qf(t, s3): return v(RQB + (t * 3 + s3) * 4, 4)
def Pf(qt, u): return v(RQB + qt * 8 + u * 4, 4)
RSB = 184
def Sf(kt, qt): return v(RSB + (qt * 4 + kt) * 4, 4)
def KE(s3): return Sf(s3, 0)
def QE(s3): return Sf(s3, 1)
OACC = [[v(RSB + 48 + 0 + i * 4, 4) for i in range(4)] + [v(RSB + 0 + i * 4, 4) for i in range(2)],
        [v(RSB + 8 + i * 4, 4) for i in range(2)] + [v(RSB + 16 + i * 4, 4) for i in range(4)]]
LINV = [v(248 + i) for i in range(4)]
SPARE = [v(252), v(253), v(254), v(255)]
def OH3(kb, t):
    if kb < 2: return v(RQB + t * 8 + kb * 4, 4)
    return [v(RQB + 32, 4), v(252, 4), v(RQB + 24, 4)][t]
def OH(h, kb, t): return [OH0, OH1, OH2, OH3][h](kb, t)
```

```python
from ir import *
import heapq

LDS_LAT = 110
VLD_LAT = 900
DMA_LAT = 1200

def is_pseudo(r): return r[0] not in ("v", "a", "s", "vcc", "scc", "exec", "m0")

def cost_of(i, prev_kind):
    k = i.kind
    if k == "mfma": return 8
    if k in ("trans", "perm"): c = 8
    elif k == "valu": c = 4
    elif k in SCALAR_KINDS: c = 4
    elif i.cost is not None: c = i.cost
    else: c = 4
    if (k in DS_KINDS or k in VM_KINDS) and prev_kind in VALU_KINDS: c += 8
    return c

def raw_lat(p, c, reg):
    pk, ck = p.kind, c.kind
    if p.lat is not None: return p.lat
    if pk == "dsr": return LDS_LAT
    if pk == "dsp": return 70
    if pk == "dsw": return 40
    if pk == "vld": return VLD_LAT
    if pk == "dma": return DMA_LAT
    if pk == "vst": return 400
    if pk == "mfma":
        if ck == "mfma" and c.mc and reg in c.mc: return 16
        return 36
    if pk in VALU_KINDS:
        base = 8 if pk != "valu" else 4
        if ck == "mfma": return base + 8
        if ck == "perm": return base + 8
        if pk == "trans": return base + 4
        if ck == "salu": return base + 12
        if reg[0] in ("s", "vcc"): return base + 8
        return base
    if pk == "salu":
        if ck == "dma" and reg[0] == "m0": return 8
        return 4
    if pk == "bar": return 4
    return 4

def build_deps(ins):
    n = len(ins)
    preds = [dict() for _ in range(n)]
    lastw = {}; readers = {}
    last_fence = None
    for j, c in enumerate(ins):
        def edge(p, lat):
            if p == j: return
            if preds[j].get(p, -1) < lat: preds[j][p] = lat
        for r in c.rd:
            if r in lastw: edge(lastw[r], raw_lat(ins[lastw[r]], c, r))
        for r in c.wr:
            if r in lastw:
                p = ins[lastw[r]]
                if p.kind == "mfma" and c.kind == "mfma": lat = 4
                elif p.kind == "mfma": lat = 36
                elif p.kind in ("dsr", "dsp", "vld", "dma", "dsw", "vst"): lat = raw_lat(p, c, r) if not (p.kind == c.kind and is_pseudo(r)) else 0
                else: lat = 0
                edge(lastw[r], lat)
            for q in readers.get(r, ()):
                p = ins[q]
                if p.kind == "mfma" and p.mc and r in p.mc and c.kind in VALU_KINDS: lat = 16
                elif p.kind == "dsr" and is_pseudo(r): lat = LDS_LAT
                elif p.kind == "vst" and c.kind in VALU_KINDS and not is_pseudo(r): lat = p.cost if p.cost else 8
                elif p.kind == "dsw" and not is_pseudo(r): lat = p.cost
                else: lat = 0
                edge(q, lat)
        for r in c.rd: readers.setdefault(r, []).append(j)
        for r in c.wr:
            lastw[r] = j; readers[r] = []
    return preds

def keep_order_classes(ins, preds):
    last = {}
    for j, c in enumerate(ins):
        cls = None
        if c.kind == "bar": cls = "bar"
        elif c.kind in VM_KINDS: cls = "vm"
        if cls:
            if cls in last: preds[j].setdefault(last[cls], 0)
            last[cls] = j

def schedule(prog, vm_in_order=True, verbose=False, lds_lat=None):
    ins = prog.ins
    n = len(ins)
    for i in ins: assert i.kind not in ("label", "br", "wait", "nop"), i
    preds = build_deps(ins)
    if vm_in_order: keep_order_classes(ins, preds)
    succs = [[] for _ in range(n)]
    for j in range(n):
        for p, l in preds[j].items(): succs[p].append((j, l))
    mf = [j for j in range(n) if ins[j].kind == "mfma"]
    nom = {}
    for k, j in enumerate(mf): nom[j] = 16 * k
    tend = 16 * len(mf) + 200
    INF = 10**9
    dl = [INF] * n
    for j in range(n - 1, -1, -1):
        d = tend
        if j in nom: d = nom[j]
        for (sj, l) in succs[j]:
            d = min(d, dl[sj] - max(l, 4))
        dl[j] = d + ins[j].prio
    npred = [len(preds[j]) for j in range(n)]
    es = [0] * n
    ready_m = []; ready_f = []
    def push(j):
        if ins[j].kind == "mfma": ready_m.append(j)
        else: ready_f.append(j)
    for j in range(n):
        if npred[j] == 0: push(j)
    out = []
    t_vec = 0
    t_sc = 0
    m_free = 0
    prev_kind = None
    issued = 0
    stall_m = 0
    times = []
    while issued < n:
        bm = None; tM = None
        if ready_m:
            best = None
            for j in ready_m:
                tj = max(t_vec, m_free, es[j])
                key = (tj, j)
                if best is None or key < best[0]: best = (key, j)
            bm = best[1]; tM = best[0][0]
        cand = None
        bestk = None
        for j in ready_f:
            c = ins[j]
            sc = c.kind in SCALAR_KINDS
            t0 = max(t_sc if sc else t_vec, es[j])
            cst = cost_of(c, prev_kind)
            fin = t0 + cst
            if tM is not None:
                fits = fin <= tM
                urgent = dl[j] + 0 < dl[bm] - 0 and dl[j] <= t0 + 8
                if not fits and not urgent: continue
            bonus = 0
            if (c.kind in DS_KINDS or c.kind in VM_KINDS):
                if prev_kind == "mfma" or prev_kind in SCALAR_KINDS: bonus = -48
                else: bonus = 64
            key = (t0 > (t_sc if sc else t_vec) + 0, dl[j] + bonus, j) if tM is not None else (t0, dl[j] + bonus, j)
            if bestk is None or key < bestk: bestk = key; cand = j
        if cand is not None:
            j = cand; c = ins[j]
            sc = c.kind in SCALAR_KINDS
            t0 = max(t_sc if sc else t_vec, es[j])
            cst = cost_of(c, prev_kind)
            t_sc = t0 + cst
            t_vec = max(t_vec, t_sc) if sc else t0 + cst
            t_sc = max(t_sc, t_sc)
            ready_f.remove(j)
        else:
            assert bm is not None, "deadlock in scheduler"
            j = bm; c = ins[j]; t0 = tM
            if t0 > m_free and issued > 0 and m_free > 0: stall_m += t0 - m_free
            m_free = t0 + 16
            t_vec = t0 + 8; t_sc = t0 + 4
            ready_m.remove(j)
        out.append(c); times.append(t0)
        prev_kind = c.kind
        issued += 1
        for (sj, l) in succs[j]:
            es[sj] = max(es[sj], t0 + l)
            npred[sj] -= 1
            if npred[sj] == 0: push(sj)
    total = max(t_vec, m_free)
    if verbose:
        from collections import Counter
        cnt = Counter(i.kind for i in ins)
        print(f"[sched] {prog.name}: n={n} mfma={len(mf)} est={total} cyc (mfma-bound {16*len(mf)}), stall={stall_m}  {dict(cnt)}")
    p2 = Prog(prog.name); p2.ins = out;
    p2.est = total
    return p2
```

```python
import sys
from kern2 import *
from sched import schedule
from fin import finalize
from emit import *
from prep import build_prep, PREP_GRID, PREP_LDS
import kern

def glue(name, text, kind="br", rd=(), wr=()):
    p = Prog(name); p.raw(text, kind, rd=rd, wr=list(wr) + ["scc"]); return p

def waitblk(name, lg=None, vm=None):
    from fin import wait_text
    p = Prog(name); w = I(wait_text(lg, vm), "wait"); w.need = (lg, vm); p.ins.append(w); return p

DUMP_REG = 16 << 20
DUMP_LDS = 160 << 20
def dump_lines():
    L = ["s_waitcnt vmcnt(0) lgkmcnt(0)", "s_nop 15", "s_nop 15", "s_barrier"]
    L += ["s_load_dwordx2 s[80:81], s[0:1], 48", "s_waitcnt lgkmcnt(0)", "s_mov_b32 s84, s80", "s_mov_b32 s85, s81", "s_mov_b32 s86, 0x1a000000", "s_mov_b32 s87, 0x20000"]
    L += ["s_lshl_b32 s88, s2, 2", f"s_add_u32 s88, s88, s{sW.b}", "s_lshl_b32 s88, s88, 17", f"s_add_u32 s88, s88, {DUMP_REG}"]
    L += ["v_accvgpr_write_b32 a255, v1", "v_accvgpr_write_b32 a254, v0", "s_nop 4", "v_lshrrev_b32 v1, 2, v1", "s_nop 4"]
    for r in range(512):
        if r < 256:
            if r == 1: continue
            L += [f"s_add_u32 s89, s88, {r*256}", f"buffer_store_dword v{r}, v1, s[84:87], s89 offen"]
        else:
            L += [f"v_accvgpr_read_b32 v0, a{r-256}", f"s_add_u32 s89, s88, {r*256}", "s_nop 1", "buffer_store_dword v0, v1, s[84:87], s89 offen", "s_waitcnt vmcnt(0)"]
        if r % 32 == 31: L.append("s_waitcnt vmcnt(0)")
    L += ["s_waitcnt vmcnt(0)", f"s_mul_i32 s88, s2, 163840", f"s_add_u32 s88, s88, {DUMP_LDS}", f"s_mul_i32 s90, s{sW.b}, 40960", "s_add_u32 s88, s88, s90",
          "v_lshlrev_b32 v1, 2, v1", "v_add_u32 v2, s90, v1"]
    for k in range(40):
        L += [f"ds_read_b128 v[4:7], v2 offset:{k*1024}", "s_waitcnt lgkmcnt(0)", f"s_add_u32 s89, s88, {k*1024}", "buffer_store_dwordx4 v[4:7], v1, s[84:87], s89 offen", "s_waitcnt vmcnt(0)"]
    L += ["s_endpgm"]
    return L

def build(do_sched=True, stop_after=None, verbose=True, dump=None):
    B = {}
    B["entry"] = blk_entry()
    B["w0"] = waitblk("w0", lg=0)
    B["dwx"] = blk_dw(True); B["dw"] = blk_dw(False)
    for r0 in (True, False):
        for hp in (None, 0, 1, 2):
            b = blk_b1(hp, r0); B[b.name] = b
        b = blk_b2(r0); B[b.name] = b
    B["outx"] = blk_out(True, False); B["out"] = blk_out(False, False); B["outl"] = blk_out(False, True)
    if do_sched:
        for n in list(B):
            if n in ("entry", "w0"): continue
            B[n] = schedule(B[n], verbose=verbose)
    order = []
    G = {}
    def g(name, text, **kw): G[name] = glue(name, text, **kw); order.append(name)
    order += ["entry", "w0", "dwx"]
    trace = [("entry", {}), ("w0", {}), ("dwx", {})]
    seq0 = ["b1x_a", "B2X", "b1x_0", "B2X", "b1x_1", "B2X", "b1x_2", "B2X"]
    def heads(x):
        sfx = "x" if x else ""
        names = [f"b1{sfx}_a", f"b1{sfx}_0", f"b1{sfx}_1", f"b1{sfx}_2"]
        L = f"L_b2{sfx}"
        for k, nm in enumerate(names):
            G[f"lab_{nm}"] = Prog(f"lab_{nm}"); G[f"lab_{nm}"].label(f"L_{nm}"); order.append(f"lab_{nm}")
            order.append(nm)
            if k < 3: g(f"j_{nm}", f"s_branch {L}")
        G[f"lab_b2{sfx}"] = Prog(f"lab_b2{sfx}"); G[f"lab_b2{sfx}"].label(L); order.append(f"lab_b2{sfx}")
        order.append(f"b2{sfx}")
        g(f"ret_b2{sfx}", f"s_cmp_eq_u32 s{sH192.b}, 0\ns_cbranch_scc1 L_{names[1]}\ns_cmp_eq_u32 s{sH192.b}, 192\ns_cbranch_scc1 L_{names[2]}\ns_cmp_eq_u32 s{sH192.b}, 384\ns_cbranch_scc1 L_{names[3]}", rd=[sH192])
        return names
    n0 = heads(True)
    order += ["outx"]
    G["lab_round"] = Prog("lab_round"); G["lab_round"].label("L_round"); order.append("lab_round")
    g("inc_round", f"s_add_u32 s{sRound.b}, s{sRound.b}, 1", kind="salu", rd=[sRound], wr=[sRound])
    order += ["w0b", "dw"]
    B["w0b"] = waitblk("w0b", lg=0)
    n1 = heads(False)
    g("sel_out", f"s_cmp_eq_u32 s{sRound.b}, 2\ns_cbranch_scc1 L_outl", rd=[sRound])
    order += ["out"]
    g("back", "s_branch L_round")
    G["lab_outl"] = Prog("lab_outl"); G["lab_outl"].label("L_outl"); order.append("lab_outl")
    order += ["outl"]
    G["fin"] = Prog("fin"); G["fin"].label("L_end"); G["fin"].raw("s_endpgm", "br"); order.append("fin")
    B.update(G)
    def tr_heads(x, names):
        sfx = "x" if x else ""
        t = []
        for h in range(4):
            env = {"ch": 9 * h, "fr": 9 * h}
            t += [(f"lab_{names[h]}", {}), (names[h], env)]
            if h < 3: t += [(f"j_{names[h]}", {})]
            t += [(f"lab_b2{sfx}", {}), (f"b2{sfx}", env), (f"ret_b2{sfx}", {})]
        return t
    tr = [("entry", {}), ("w0", {}), ("dwx", {"ch": 0, "fr": 0})] + tr_heads(True, n0) + [("outx", {"ch": 36, "fr": 36})]
    for r in (1, 2):
        off = 100 * r
        def sh(t): return [(n, {k: vv + off for k, vv in e.items()}) for n, e in t]
        tr += [("lab_round", {}), ("inc_round", {}), ("w0b", {}), ("dw", {"ch": off, "fr": off, "xb": off, "xfr": off})] + sh(tr_heads(False, n1)) + [("sel_out", {})]
        if r == 1: tr += [("out", {"ch": 36 + off, "fr": 36 + off}), ("back", {})]
        else: tr += [("lab_outl", {}), ("outl", {"ch": 36 + off, "fr": 36 + off})]
    tr += [("fin", {})]
    if stop_after is not None:
        lin = []; cnt = 0
        for (n, e) in tr:
            if n.startswith("lab_") or n.startswith("j_") or n.startswith("ret_") or n in ("sel_out", "back", "fin"): continue
            lin.append((n, e))
            if n not in ("entry", "w0", "w0b", "inc_round"):
                cnt += 1
                if cnt == stop_after: break
        print("debug trace:", [n for n, e in lin])
        F = finalize(B, lin, verbose=False)
        lines = []
        for (n, e) in lin:
            for i in F[n].ins: lines += i.text.split("\n")
        lines += dump_lines()
        return lines
    F = finalize(B, tr, verbose=verbose)
    lines = []
    for n in order:
        for i in F[n].ins: lines += i.text.split("\n")
    return lines

if __name__ == "__main__":
    do_sched = "-n" not in sys.argv
    out = [a for a in sys.argv[1:] if not a.startswith("-")]
    stop = None
    for a_ in sys.argv[1:]:
        if a_.startswith("-s"): stop = int(a_[2:])
    lines = build(do_sched, stop_after=stop, verbose="-q" not in sys.argv)
    macros, lines = compact(lines)
    km = kernel_text("main_kernel", lines, 512, 256)
    kp = kernel_text("prep_kernel", build_prep(), 64, 64)
    txt = file_text([("prep_kernel", PREP_GRID, 256, PREP_LDS), ("main_kernel", 243, 256, LDS_TOTAL)], [kp, km], macros)
    open(out[0] if out else "k.s", "w").write(txt)
    print("lines", len(lines), "bytes", len(txt))
```

```python
from ir import *
from sched import is_pseudo
import os
NOVM = os.environ.get('NOVMWAIT', '').split(',')

def bind(r, env):
    if is_pseudo(r) and len(r) == 2 and isinstance(r[1], int) and r[0] in env:
        return (r[0], r[1] + env[r[0]])
    return r

def insert_waits(blocks, trace, verbose=False):
    waits = {b: {} for b in blocks}
    changed = True
    it = 0
    while changed:
        changed = False; it += 1
        dsq = []; vmq = []
        for (name, env) in trace:
            ins = blocks[name].ins
            W = waits[name]
            for pos, c in enumerate(ins):
                if pos in W:
                    lg, vm = W[pos]
                    if lg is not None and len(dsq) > lg: del dsq[:len(dsq) - lg]
                    if vm is not None and len(vmq) > vm: del vmq[:len(vmq) - vm]
                if c.kind == "wait":
                    lg, vm = c.need
                    if lg is not None and len(dsq) > lg: del dsq[:len(dsq) - lg]
                    if vm is not None and len(vmq) > vm: del vmq[:len(vmq) - vm]
                    continue
                rd = set(bind(r, env) for r in c.rd); wr = set(bind(r, env) for r in c.wr)
                touch = rd | wr
                def need(q):
                    for k in range(len(q) - 1, -1, -1):
                        ow, orr, okind = q[k]
                        conflict = False
                        if ow & touch:
                            x = ow & touch
                            if okind == c.kind and okind in ("dma", "dsw", "vst") and all(is_pseudo(r) for r in x) and not (x & rd): conflict = False
                            else: conflict = True
                        if orr & wr:
                            conflict = True
                        if conflict: return len(q) - 1 - k
                    return None
                nl = need(dsq); nv = need(vmq)
                if c.kind == "bar" and name in NOVM: nv = None
                if nl is not None or nv is not None:
                    lg, vm = W.get(pos, (None, None))
                    nlg, nvm = lg, vm
                    if nl is not None:
                        nl = min(nl, 15); nlg = nl if lg is None else min(lg, nl)
                    if nv is not None:
                        nv = min(nv, 63); nvm = nv if vm is None else min(vm, nv)
                    if (nlg, nvm) != (lg, vm):
                        W[pos] = (nlg, nvm); changed = True
                    if nlg is not None and len(dsq) > nlg: del dsq[:len(dsq) - nlg]
                    if nvm is not None and len(vmq) > nvm: del vmq[:len(vmq) - nvm]
                if c.kind in ("dsr", "dsp"):
                    dsq.append((set(r for r in wr), set(r for r in rd if is_pseudo(r)), c.kind))
                elif c.kind == "dsw":
                    dsq.append((set(r for r in wr), set(), c.kind))
                elif c.kind in ("dma", "vld", "vst"):
                    dsq_wr = set(wr)
                    vmq.append((dsq_wr, set(r for r in rd if is_pseudo(r)) if c.kind == "vld" else set(), c.kind))
                elif c.kind == "smem":
                    raise AssertionError("smem must be in raw text with manual waits")
        assert it < 20
    return waits

def wait_text(lg, vm):
    parts = []
    if vm is not None: parts.append(f"vmcnt({vm})")
    if lg is not None: parts.append(f"lgkmcnt({lg})")
    return "s_waitcnt " + " ".join(parts)

def apply_waits(blocks, waits, hoist=True):
    out = {}
    for name, p in blocks.items():
        ins = p.ins; W = waits[name]
        place = {}
        for pos, (lg, vm) in W.items():
            q = pos; l2, v2 = lg, vm
            if hoist and ins[pos].kind != "bar":
                nds = nvm = 0; k = pos - 1; found = None
                steps = 0
                while k >= 0 and steps < 4:
                    kk = ins[k].kind
                    if kk == "mfma": found = k + 1; break
                    if kk in ("bar", "label", "br", "wait", "raw"): break
                    if kk in DS_KINDS: nds += 1
                    if kk in VM_KINDS: nvm += 1
                    k -= 1; steps += 1
                if found is not None and found != pos:
                    a_ = None if lg is None else lg - nds
                    b_ = None if vm is None else vm - nvm
                    if (a_ is None or a_ >= 0) and (b_ is None or b_ >= 0):
                        q, l2, v2 = found, a_, b_
            cur = place.get(q)
            if cur is None: place[q] = (l2, v2)
            else:
                place[q] = (l2 if cur[0] is None else (cur[0] if l2 is None else min(l2, cur[0])),
                            v2 if cur[1] is None else (cur[1] if v2 is None else min(v2, cur[1])))
        np_ = Prog(name)
        for pos, c in enumerate(ins):
            if pos in place:
                lg, vm = place[pos]
                w = I(wait_text(lg, vm), "wait"); w.need = (lg, vm)
                np_.ins.append(w)
            np_.ins.append(c)
        if len(ins) in place:
            lg, vm = place[len(ins)]
            w = I(wait_text(lg, vm), "wait"); w.need = (lg, vm); np_.ins.append(w)
        out[name] = np_
    return out

def states(i):
    if i.kind == "nop": return int(i.text.split()[1]) + 1
    if i.kind == "label": return 0
    return 1

def hazard_need(p, c):
    pk, ck = p.kind, c.kind
    need = 0
    pw = set(p.wr); pr = set(p.rd); cr = set(c.rd); cw = set(c.wr)
    if pk == "mfma":
        if ck == "mfma":
            mc = set(c.mc or [])
            ab = cr - mc
            if pw & ab: need = max(need, 8)
            x = pw & mc
            if x and mc != pw: need = max(need, 6)
        elif ck in VALU_KINDS or ck in DS_KINDS or ck in VM_KINDS:
            if pw & (cr | cw): need = max(need, 8)
            if p.mc and ck in VALU_KINDS and (set(p.mc) & cw): need = max(need, 3)
    if pk in VALU_KINDS:
        vw = set(r for r in pw if r[0] in ("v", "a"))
        sw = set(r for r in pw if r[0] in ("s", "vcc"))
        if ck == "mfma" and (vw & cr): need = max(need, 2)
        if ck == "perm" and (vw & cr): need = max(need, 2)
        if "readlane" in c.text or "readfirstlane" in c.text:
            if vw & cr: need = max(need, 1)
            if sw & cr: need = max(need, 4)
        if "dpp" in c.text or "row_" in c.text:
            if vw & cr: need = max(need, 2)
        if sw:
            if ck in VM_KINDS and (sw & cr): need = max(need, 5)
            if ck in VALU_KINDS and (sw & cr): need = max(need, 2)
            if ck == "salu" and (sw & cr): need = max(need, 4)
            if ck == "br" and (sw & cr): need = max(need, 5)
        if ("exec", 0) in pw:
            if ck == "mfma": need = max(need, 4)
            if ck in VALU_KINDS: need = max(need, 4)
        if pk == "trans" and ck in VALU_KINDS and ck != "trans" and (vw & cr): need = max(need, 1)
        if pk == "trans" and ck == "trans" and (vw & cr): need = max(need, 1)
    if pk == "salu":
        if ("m0", 0) in pw and ck == "dma": need = max(need, 1)
    if pk == "vst" and len([r for r in p.rd if r[0] in ("v", "a")]) >= 4:
        data = set(r for r in p.rd if r[0] in ("v", "a"))
        if data & cw: need = max(need, 2)
    return need

def _advance(t, lastM, q):
    if q.kind == "label": return t, lastM
    if q.kind == "mfma":
        tq = max(t + 4, lastM + 16); return tq, tq
    if q.kind in SCALAR_KINDS: return t + 4, lastM
    return max(t + 4, lastM + 8), lastM

def _span(seq, start, c):
    p = seq[start]
    t = 0; lastM = 0 if p.kind == "mfma" else -100
    extra = 0
    prev = p
    for q in seq[start + 1:] + [c]:
        if prev.kind == "nop": t += 4 * int(prev.text.split()[1])
        t, lastM = _advance(t, lastM, q)
        prev = q
    return t

def insert_nops(blocks, trace):
    nops = {b: {} for b in blocks}
    changed = True
    while changed:
        changed = False
        hist = []
        for (name, env) in trace:
            ins = blocks[name].ins; N = nops[name]
            for pos, c in enumerate(ins):
                if pos in N: hist.append(I(f"s_nop {N[pos]-1}", "nop"))
                need = 0
                n = len(hist)
                for k in range(n - 1, max(-1, n - 14), -1):
                    p = hist[k]
                    h = hazard_need(p, c)
                    if h == 0: continue
                    req = (8 + 4 * h) if p.kind == "mfma" else 4 * (h + 1)
                    have = _span(hist, k, c)
                    if have < req: need = max(need, (req - have + 3) // 4)
                if need > 0:
                    N[pos] = N.get(pos, 0) + need; changed = True
                    hist.append(I(f"s_nop {need-1}", "nop"))
                hist.append(c)
                if len(hist) > 64: del hist[:32]
    out = {}
    tot = 0
    for name, p in blocks.items():
        np_ = Prog(name)
        for pos, c in enumerate(p.ins):
            k = nops[name].get(pos, 0)
            tot += k
            while k > 0:
                m = min(k, 16); np_.ins.append(I(f"s_nop {m-1}", "nop")); k -= m
            np_.ins.append(c)
        out[name] = np_
    return out, tot

def finalize(blocks, trace, verbose=True, hoist=True):
    w = insert_waits(blocks, trace)
    b2 = apply_waits(blocks, w, hoist)
    b3, tot = insert_nops(b2, trace)
    if verbose:
        for n, p in b3.items():
            nw = sum(1 for i in p.ins if i.kind == "wait"); nn = sum(1 for i in p.ins if i.kind == "nop")
            if len(p.ins) > 10: print(f"[fin] {n}: {len(p.ins)} instrs, waits={nw}, nops={nn}")
    return b3
```

```python
from dataclasses import dataclass, field

class R:
    __slots__ = ("c", "b", "n")
    def __init__(self, c, b, n=1):
        self.c, self.b, self.n = c, b, n
    def __str__(self):
        if self.n == 1: return f"{self.c}{self.b}"
        return f"{self.c}[{self.b}:{self.b+self.n-1}]"
    __repr__ = __str__
    def regs(self): return [(self.c, self.b + i) for i in range(self.n)]
    def __getitem__(self, i):
        if isinstance(i, slice):
            st = i.start or 0; en = i.stop if i.stop is not None else self.n
            assert 0 <= st < en <= self.n, (st, en, self.n)
            return R(self.c, self.b + st, en - st)
        assert 0 <= i < self.n, (i, self.n)
        return R(self.c, self.b + i, 1)
    def sub(self, off, n): return self[off:off + n]

def v(b, n=1): return R("v", b, n)
def a(b, n=1): return R("a", b, n)
def s(b, n=1): return R("s", b, n)

def regs_of(*ops):
    out = []
    for o in ops:
        if isinstance(o, R): out += o.regs()
        elif isinstance(o, str) and o in ("vcc", "exec", "m0", "scc"): out.append((o, 0))
        elif isinstance(o, tuple): out.append(o)
        elif isinstance(o, (list, set)):
            out += regs_of(*o)
    return out

class I:
    __slots__ = ("text", "kind", "rd", "wr", "cost", "idx", "note", "mc", "prio", "pin", "need", "lat", "svals")
    def __init__(self, text, kind, rd=(), wr=(), cost=None, note="", mc=None, prio=0, lat=None):
        self.text = text; self.kind = kind
        self.rd = list(dict.fromkeys(regs_of(*rd))); self.wr = list(dict.fromkeys(regs_of(*wr)))
        self.cost = cost; self.note = note
        self.mc = mc
        self.prio = prio
        self.idx = None; self.pin = None; self.need = None
        self.lat = lat
    def __repr__(self): return f"<{self.kind}: {self.text}>"

VALU_KINDS = ("valu", "trans", "perm")
DS_KINDS = ("dsr", "dsw", "dsp")
VM_KINDS = ("dma", "vld", "vst")
SCALAR_KINDS = ("salu", "wait", "nop", "bar", "smem", "br")

def fmt(x):
    if isinstance(x, R): return str(x)
    if isinstance(x, float):
        return repr(x)
    if isinstance(x, int):
        if -16 <= x <= 64: return str(x)
        return hex(x & 0xffffffff)
    return str(x)

class Prog:
    def __init__(self, name):
        self.name = name; self.ins = []
    def add(self, i): self.ins.append(i); return i
    def mfma(self, d, A, B, c=None, prio=0):
        cs = "0" if c is None else str(c)
        rd = [A, B] + ([c] if c is not None else [])
        i = I(f"v_mfma_f32_16x16x32_bf16 {d}, {A}, {B}, {cs}", "mfma", rd, [d], prio=prio)
        i.mc = c.regs() if c is not None else []
        return self.add(i)
    def smfmac(self, d, A, B, idx, prio=0):
        i = I(f"v_smfmac_f32_16x16x64_bf16 {d}, {A}, {B}, {idx}", "mfma", [A, B, idx, d], [d], prio=prio)
        i.mc = d.regs()
        return self.add(i)
    def valu(self, op, d, *src, rd_extra=(), wr_extra=(), kind="valu", prio=0, mods=""):
        ops = ", ".join(fmt(x) for x in ((d,) + src))
        rd = [x for x in src if isinstance(x, R) or (isinstance(x, str) and x in ("vcc",))] + list(rd_extra)
        rd = [_strip(x) for x in rd]
        for x in src:
            if isinstance(x, Neg): rd.append(x.r)
        wr = [d] if isinstance(d, R) or d == "vcc" else []
        return self.add(I(f"{op} {ops}{mods}", kind, rd, wr + list(wr_extra), prio=prio))
    def trans(self, op, d, x, prio=0): return self.valu(op, d, x, kind="trans", prio=prio)
    def mov(self, d, x, prio=0): return self.valu("v_mov_b32", d, x, prio=prio)
    def cvtpk(self, d, x, y, prio=0): return self.valu("v_cvt_pk_bf16_f32", d, x, y, prio=prio)
    def accw(self, d, x, prio=0): return self.valu("v_accvgpr_write_b32", d, x, prio=prio)
    def accr(self, d, x, prio=0): return self.valu("v_accvgpr_read_b32", d, x, prio=prio)
    def swap16(self, x, y, prio=0):
        return self.add(I(f"v_permlane16_swap_b32 {x}, {y}", "perm", [x, y], [x, y], prio=prio))
    def swap32(self, x, y, prio=0):
        return self.add(I(f"v_permlane32_swap_b32 {x}, {y}", "perm", [x, y], [x, y], prio=prio))
    def salu(self, op, d, *src, scc_w=False, scc_r=False, prio=0, rd_extra=(), wr_extra=()):
        ops = ", ".join(fmt(x) for x in ((d,) + src))
        rd = [x for x in src if isinstance(x, R) or (isinstance(x, str) and x in ("vcc", "exec", "m0"))] + list(rd_extra)
        wr = [d] if isinstance(d, R) or (isinstance(d, str) and d in ("vcc", "exec", "m0")) else []
        if op.startswith("s_cmp"):
            rd = [x for x in (d,) + src if isinstance(x, R)]; wr = ["scc"]
        else:
            if op in ("s_add_u32", "s_sub_u32", "s_lshl_b32", "s_lshr_b32", "s_and_b32", "s_or_b32", "s_addc_u32", "s_subb_u32",
                      "s_and_b64", "s_or_b64", "s_add_i32", "s_sub_i32", "s_min_u32", "s_max_u32", "s_xor_b32", "s_andn2_b64", "s_bfe_u32") or scc_w:
                wr = wr + ["scc"]
            if op in ("s_cselect_b32", "s_cselect_b64", "s_addc_u32", "s_subb_u32") or scc_r:
                rd = rd + ["scc"]
        return self.add(I(f"{op} {ops}", "salu", rd, wr + list(wr_extra), prio=prio))
    def dsr(self, d, addr, off=0, res=(), prio=0, op=None):
        if op is None: op = {1: "ds_read_b32", 2: "ds_read_b64", 4: "ds_read_b128"}[d.n]
        assert 0 <= off < 65536, off
        return self.add(I(f"{op} {d}, {addr} offset:{off}", "dsr", [addr] + list(res), [d], prio=prio))
    def dsw(self, addr, src, off=0, res=(), prio=0, op=None, rd_extra=()):
        if op is None: op = {1: "ds_write_b32", 2: "ds_write_b64", 4: "ds_write_b128"}[src.n]
        assert 0 <= off < 65536, off
        cost = {1: 8, 2: 12, 4: 20}[src.n]
        return self.add(I(f"{op} {addr}, {src} offset:{off}", "dsw", [addr, src] + list(rd_extra), list(res), cost=cost, prio=prio))
    def bperm(self, d, addr, src, prio=0):
        return self.add(I(f"ds_bpermute_b32 {d}, {addr}, {src}", "dsp", [addr, src], [d], cost=8, prio=prio))
    def dma(self, voff, srd, soff, off=0, res=(), rd_res=(), prio=0, mods=""):
        assert 0 <= off < 4096
        so = fmt(soff)
        rd = [voff, srd, "m0"] + ([soff] if isinstance(soff, R) else []) + list(rd_res)
        return self.add(I(f"buffer_load_dwordx4 {voff}, {srd}, {so} offen offset:{off}{mods} lds", "dma", rd, list(res), cost=8, prio=prio))
    def vld(self, d, voff, srd, soff=0, off=0, res=(), prio=0, op=None, mods=""):
        if op is None: op = {1: "buffer_load_dword", 2: "buffer_load_dwordx2", 4: "buffer_load_dwordx4"}[d.n]
        assert 0 <= off < 4096
        rd = [voff, srd] + ([soff] if isinstance(soff, R) else []) + list(res)
        return self.add(I(f"{op} {d}, {voff}, {srd}, {fmt(soff)} offen offset:{off}{mods}", "vld", rd, [d], cost=8, prio=prio))
    def vst(self, src, voff, srd, soff=0, off=0, res=(), prio=0, op=None, rd_extra=(), mods=""):
        if op is None: op = {1: "buffer_store_dword", 2: "buffer_store_dwordx2", 4: "buffer_store_dwordx4"}[src.n]
        assert 0 <= off < 4096
        rd = [src, voff, srd] + ([soff] if isinstance(soff, R) else []) + list(rd_extra)
        cost = {1: 10, 2: 14, 4: 24}[src.n]
        return self.add(I(f"{op} {src}, {voff}, {srd}, {fmt(soff)} offen offset:{off}{mods}", "vst", rd, list(res), cost=cost, prio=prio))
    def bar(self, rd=(), wr=(), prio=0):
        txt = "s_barrier"
        if getattr(self, "fine", None) is not None:
            txt += f"\nv_writelane_b32 v{self.fine[0]}, s88, {self.fine[1]}\ns_memtime s[88:89]"
            self.fine[1] += 1
        return self.add(I(txt, "bar", list(rd), list(wr) + [("BAR", 0)], prio=prio))
    def raw(self, text, kind="raw", rd=(), wr=(), cost=4):
        return self.add(I(text, kind, rd, wr, cost=cost))
    def label(self, name): return self.add(I(name + ":", "label"))
    def extend(self, other): self.ins += other.ins

class Neg:
    def __init__(self, r): self.r = r
    def __str__(self): return f"-{self.r}"
def _strip(x): return x
```

```python
from ir import *
from regs import *
from prep import WS_WO, WOCH, WS_END, WS_XS, WS_TAB, WS_USED, TILE_B, dw_off
import math, os, struct

XBYTES = 378 * 378 * 768
ROWB = 378 * 768
OOB = 0x80000000
C_LOG2 = math.log2(math.e) / math.sqrt(96.0)
def f2u(x): return struct.unpack("<I", struct.pack("<f", x))[0]
NPRE = 4
XMOD = os.environ.get("XMOD", "_nt").replace("_", " ")
XMOD2 = os.environ.get("XMOD2", "").replace("_", " ")
TAGK = int(os.environ.get("TAGK", "7"))

def ex_bundle(p, mask, fn, kind, rd, wr, cost):
    q = Prog("tmp"); fn(q)
    txt = f"s_mov_b64 exec, {mask}\n" + "\n".join(i.text for i in q.ins) + "\ns_mov_b64 exec, -1"
    rds = [r for i in q.ins for r in i.rd] + mask.regs(); wrs = [r for i in q.ins for r in i.wr]
    return p.add(I(txt, kind, rds + list(rd), wrs + list(wr), cost=cost))

_cp = [0]
def code_touch(p, lab_from, lab_to, T, dst, sel=None, prio=0):
    if os.environ.get("NOCODE"): return
    _cp[0] += 1
    L = f"L_cp{_cp[0]}"
    A = v(T[0].b, 2); t = T[2]
    txt = f"s_getpc_b64 s[96:97]\n{L}:\ns_mov_b32 s98, {lab_from}-{L}\ns_mov_b32 s99, {lab_to}-{lab_from}\n"
    rd = [S_WG, vTID]
    if sel is not None:
        sr, val, f2, t2 = sel
        txt += f"s_mov_b32 s100, {f2}-{L}\ns_mov_b32 s101, {t2}-{f2}\ns_cmp_eq_u32 {sr}, {val}\ns_cselect_b32 s98, s100, s98\ns_cselect_b32 s99, s101, s99\n"
        rd.append(sr)
    txt += "s_ashr_i32 s100, s98, 31\ns_add_u32 s96, s96, s98\ns_addc_u32 s97, s97, s100\n"
    txt += "s_lshr_b32 s100, s2, 3\ns_and_b32 s100, s100, 31\ns_lshl_b32 s100, s100, 13\n"
    txt += "s_add_u32 s101, s99, 8191\ns_and_b32 s101, s101, 0xffffe000\n"
    for sh in (3, 2, 1, 0):
        txt += f"s_lshl_b32 s98, s101, {sh}\ns_cmp_ge_u32 s100, s98\ns_cselect_b32 s98, s98, 0\ns_sub_u32 s100, s100, s98\n"
    txt += "s_sub_u32 s99, s99, 4"
    p.add(I(txt, "salu", rd, [s(96, 6), "scc"], cost=120, prio=prio))
    p.valu("v_lshlrev_b32", t, 7, vTID, prio=prio); p.valu("v_add_u32", t, s(100), t, prio=prio); p.valu("v_min_u32", t, s(99), t, prio=prio)
    p.add(I(f"v_add_co_u32 {A[0]}, vcc, s96, {t}\ns_nop 1\nv_mov_b32 {A[1]}, s97\nv_addc_co_u32 {A[1]}, vcc, 0, {A[1]}, vcc", "valu", [s(96, 2), t], [A, "vcc"], cost=20, prio=prio))
    p.add(I(f"global_load_dword {dst}, {A}, off", "vld", [A], [dst], cost=8, prio=prio))

def blk_entry():
    p = Prog("entry")
    p.raw("s_cmp_lt_u32 s2, 243\ns_cbranch_scc1 L_go\ns_endpgm\nL_go:", "br", rd=[s(2)], wr=["scc"])
    p.raw("s_load_dwordx2 s[4:5], s[0:1], 0\ns_load_dwordx2 s[6:7], s[0:1], 32\ns_load_dwordx2 s[38:39], s[0:1], 48\ns_waitcnt lgkmcnt(0)",
          "salu", wr=[s(4, 2), s(6, 2), s(38, 2)])
    for dst, src, n in ((8, 4, XBYTES), (16, 6, XBYTES), (12, 38, WS_USED)):
        p.salu("s_mov_b32", s(dst), s(src)); p.salu("s_mov_b32", s(dst + 1), s(src + 1))
        p.salu("s_mov_b32", s(dst + 2), n); p.salu("s_mov_b32", s(dst + 3), 0x20000)
    p.valu("v_lshrrev_b32", TMP[0], 6, vTID)
    p.valu("v_and_b32", vTID, 63, vTID)
    p.valu("v_readfirstlane_b32", sW, TMP[0])
    p.valu("v_lshlrev_b32", vL16, 4, vTID)
    p.salu("s_and_b32", sT[0], S_WG, 7); p.salu("s_lshr_b32", sT[1], S_WG, 3)
    p.salu("s_mul_i32", sT[2], sT[0], 30); p.salu("s_min_u32", sT[3], sT[0], 3)
    p.salu("s_add_u32", sT[2], sT[2], sT[3]); p.salu("s_add_u32", sWG, sT[2], sT[1])
    p.salu("s_mul_i32", sT[0], sWG, 2428); p.salu("s_lshr_b32", sT[0], sT[0], 16)
    p.salu("s_mul_i32", sT[1], sT[0], 27); p.salu("s_sub_u32", sQX, sWG, sT[1])
    p.salu("s_mul_i32", sSR3, sT[0], 3); p.salu("s_mul_i32", sX0, sQX, 14)
    p.salu("s_mul_i32", sW6, sW, 6144); p.salu("s_lshl_b32", sW8, sW, 13)
    p.salu("s_mov_b32", sC, f2u(C_LOG2)); p.salu("s_mov_b32", sNegC, f2u(-C_LOG2))
    p.salu("s_mov_b32", sI384, f2u(1.0 / 384)); p.salu("s_mov_b32", sEps, f2u(1e-5))
    p.salu("s_mov_b32", sRound, 0)
    p.salu("s_mul_i32", sXS, sWG, 12288); p.salu("s_add_u32", sXS, sXS, WS_XS)
    p.salu("s_lshl_b32", sT[0], sWG, 2); p.salu("s_add_u32", sT[0], sT[0], sW); p.salu("s_lshl_b32", sT[0], sT[0], 12); p.salu("s_add_u32", sTab, sT[0], WS_TAB)
    p.salu("s_and_b32", sT[1], sW, 1); p.salu("s_mul_i32", sW1, sT[1], 12288); p.salu("s_mul_i32", sWX7, sT[1], 7)
    p.salu("s_lshr_b32", sT[1], sW, 1); p.salu("s_mul_i32", sWY7, sT[1], 7)
    n_ = TMP[1]; g_ = TMP[2]
    p.valu("v_and_b32", n_, 15, vTID); p.valu("v_lshrrev_b32", g_, 4, vTID)
    p.valu("v_and_b32", TMP[3], 3, n_)
    p.valu("v_cmp_eq_u32", sM1, 1, TMP[3]); p.valu("v_cmp_eq_u32", sM2, 2, TMP[3]); p.valu("v_cmp_eq_u32", sM3, 3, TMP[3])
    p.valu("v_cmp_gt_u32", sEx, 12, n_); p.valu("v_cmp_eq_u32", sEx0, 0, n_)
    p.valu("v_cmp_eq_u32", "vcc", 0, g_)
    p.valu("v_cndmask_b32", vGM, 0, 1.0, "vcc")
    p.valu("v_mul_u32_u24", vSW, STOK, n_); p.valu("v_lshl_add_u32", vSW, g_, 4, vSW); p.valu("v_add_u32", vSW, STASH, vSW)
    for j in range(5):
        vals = []
        for w in range(4):
            u = 4 * j + w if j < 4 else 16 + (w & 1)
            ty, a_ = divmod(u, 6)
            vals.append([768, 0, 1536][ty] + (a_ >> 1) * 64 + (a_ & 1) * 8)
        d = sEoff[j]
        p.salu("s_mov_b32", d, vals[0])
        for w in range(1, 4):
            p.salu("s_cmp_eq_u32", sW, w); p.salu("s_cselect_b32", d, vals[w], d)
    return p

def round_setup(p, next_round):
    if next_round: p.salu("s_add_u32", sRound, sRound, 1)
    p.salu("s_add_u32", sT[0], sSR3, sRound); p.salu("s_mul_i32", sY0, sT[0], 14)
    p.salu("s_lshl_b32", sT[2], sRound, 2); p.salu("s_add_u32", sT[2], sT[2], sW)
    p.salu("s_mul_i32", sT[2], sT[2], STOK); p.salu("s_add_u32", sT[2], sT[2], STASH)
    n_ = TMP[1]; g_ = TMP[2]
    p.valu("v_and_b32", n_, 15, vTID); p.valu("v_lshrrev_b32", g_, 4, vTID)
    p.valu("v_lshlrev_b32", vSQ, 4, g_); p.valu("v_add_u32", vSQ, sT[2], vSQ)
    p.valu("v_lshrrev_b32", TMP[3], 2, n_); p.valu("v_lshlrev_b32", TMP[3], 4, TMP[3])
    p.valu("v_and_b32", TMP[4], 3, n_); p.valu("v_lshl_add_u32", TMP[3], TMP[4], 1, TMP[3])
    p.salu("s_add_u32", sT[2], sT[2], 1536)
    p.valu("v_add_u32", vSV, sT[2], TMP[3])

def tap_dydx(tap):
    if tap == 9: tap = 4
    return tap // 3 - 1, tap % 3 - 1

def gen_dw_addrs(p, dst, T):
    n_, g_, hi, b16, R0, C0, tR, tC, tL, tq = T
    p.valu("v_and_b32", n_, 15, vTID); p.valu("v_lshrrev_b32", g_, 4, vTID)
    p.valu("v_lshrrev_b32", hi, 1, g_)
    p.valu("v_and_b32", b16, 1, g_); p.valu("v_lshlrev_b32", b16, 4, b16)
    p.valu("v_cmp_eq_u32", "vcc", 1, hi)
    for t in range(3):
        p.valu("v_add_u32", tq, 16 * t, n_)
        p.valu("v_mul_u32_u24", R0, 37, tq); p.valu("v_lshrrev_b32", R0, 8, R0)
        p.valu("v_mul_u32_u24", C0, 7, R0); p.valu("v_sub_u32", C0, tq, C0)
        p.salu("s_add_u32", sT[0], sWY7, 1); p.salu("s_add_u32", sT[1], sWX7, 1)
        p.valu("v_add_u32", R0, sT[0], R0); p.valu("v_add_u32", C0, sT[1], C0)
        for pp in range(5):
            dy0, dx0 = tap_dydx(2 * pp); dy1, dx1 = tap_dydx(2 * pp + 1)
            p.mov(tR, dy0); p.mov(tq, dy1); p.valu("v_cndmask_b32", tR, tR, tq, "vcc"); p.valu("v_add_u32", tR, tR, R0)
            p.mov(tC, dx0); p.mov(tq, dx1); p.valu("v_cndmask_b32", tC, tC, tq, "vcc"); p.valu("v_add_u32", tC, tC, C0)
            p.valu("v_mul_u32_u24", tL, 7, tR); p.valu("v_add_u32", tL, tL, tC); p.valu("v_and_b32", tL, 7, tL)
            d = dst(t, pp)
            p.valu("v_lshlrev_b32", d, 10, tR)
            p.valu("v_lshl_add_u32", d, tL, 5, d)
            p.valu("v_lshrrev_b32", tC, 3, tC)
            p.valu("v_lshl_add_u32", d, tC, 8, d)
            p.valu("v_add_u32", d, d, b16)

def gen_x_voffs(p, xvo, sy0, T):
    u, be, hh, chi, kap, base, cc, xx, t8 = T[:9]
    p.valu("v_lshrrev_b32", u, 4, vTID); p.valu("v_and_b32", be, 15, vTID)
    p.valu("v_lshrrev_b32", hh, 1, u); p.valu("v_and_b32", chi, 1, u)
    p.valu("v_lshrrev_b32", kap, 1, be)
    p.valu("v_and_b32", base, 1, be); p.valu("v_lshlrev_b32", base, 4, base)
    p.valu("v_lshl_add_u32", base, hh, 5, base)
    p.valu("v_lshlrev_b32", chi, 3, chi)
    p.salu("s_lshl_b32", sU[0], sW, 2)
    for i in range(4):
        p.salu("s_add_u32", sU[1], sU[0], i)
        p.valu("v_add_u32", cc, sU[1], kap); p.valu("v_and_b32", cc, 7, cc); p.valu("v_add_u32", cc, cc, chi)
        p.salu("s_sub_u32", sU[2], sX0, 1)
        p.valu("v_add_u32", xx, sU[2], cc)
        p.salu("s_add_u32", sU[3], sy0, sU[1]); p.salu("s_sub_u32", sU[3], sU[3], 1)
        p.salu("s_mul_i32", sU[4], sU[3], ROWB)
        p.valu("v_mul_u32_u24", xvo[i], 768, xx)
        p.valu("v_add3_u32", xvo[i], xvo[i], base, sU[4])
        p.salu("s_cmp_lt_u32", sU[3], 378); p.salu("s_cselect_b32", sU[5], 378, 0)
        p.valu("v_cmp_gt_u32", "vcc", sU[5], xx)
        p.mov(t8, OOB)
        p.valu("v_cndmask_b32", xvo[i], t8, xvo[i], "vcc")

def x_dma_list(p, xvo, j, ldsbase, res, rd_res, prio=0):
    if os.environ.get("NOXDMA") and p.name != "pro": return []
    xm = XMOD if p.name == "pro" else XMOD2
    def one(i):
        def f(tag=None):
            a_ = p.salu("s_lshl_b32", sU[1], sW, 12, prio=prio)
            if tag is not None: a_.rd.append(tag)
            p.salu("s_add_u32", "m0", sU[1], ldsbase + i * 1024, prio=prio)
            p.salu("s_mov_b32", sU[0], j * 64, prio=prio)
            p.dma(xvo[i], SRD_X, sU[0], 0, res=res, rd_res=rd_res, prio=prio, mods=xm)
        return f
    return [one(i) for i in range(4)]
def x_dma(p, xvo, j, ldsbase, res, rd_res, prio=0):
    for f in x_dma_list(p, xvo, j, ldsbase, res, rd_res, prio): f()

def dwfrag_dma(p, j, ldsbase, res, rd_res, prio=0):
    src = dw_off(j)
    for k in range(3):
        if k < 2:
            p.salu("s_lshl_b32", sT[7], sW, 10, prio=prio); p.salu("s_add_u32", sT[8], sT[7], src + k * 4096, prio=prio); p.salu("s_add_u32", "m0", sT[7], ldsbase + k * 4096, prio=prio)
        else:
            p.salu("s_and_b32", sT[7], sW, 1, prio=prio); p.salu("s_lshl_b32", sT[7], sT[7], 10, prio=prio)
            p.salu("s_add_u32", sT[8], sT[7], src + 8192, prio=prio); p.salu("s_add_u32", "m0", sT[7], ldsbase + 8192, prio=prio)
        p.dma(vL16, SRD_WS, sT[8], 0, res=res, rd_res=rd_res, prio=prio)

class DwRegs:
    def __init__(self, addr, A, B, acc, T, sumv, ssq): self.addr, self.A, self.B, self.acc, self.T, self.sumv, self.ssq = addr, A, B, acc, T, sumv, ssq; self.bi = 0; self.ai = 0; self.ti = 0; self.ci = 0

def dw_ctile_gen(p, D, j, hh, abase, aoff, xoff, res, hook=None):
    nA = len(D.A)
    A = []
    for pp in range(5):
        r = D.A[D.ai % nA]; D.ai += 1
        p.dsr(r, abase, aoff + hh * 5120 + pp * 1024, res=res); A.append(r)
    for t in range(3):
        acc = D.acc[D.ci % len(D.acc)]; D.ci += 1
        for pp in range(5):
            B = D.B[D.bi % len(D.B)]; D.bi += 1
            p.dsr(B, D.addr(t, pp), xoff, res=res)
            i = p.mfma(acc, A[pp], B, None if pp == 0 else acc)
            if hook: hook(i)
        first = (j == 0 and hh == 0)
        if first:
            p.valu("v_add_f32", D.sumv[t], acc[0], acc[1]); p.valu("v_mul_f32", D.ssq[t], acc[0], acc[0])
            p.valu("v_add_f32", D.sumv[t], D.sumv[t], acc[2]); p.valu("v_fma_f32", D.ssq[t], acc[1], acc[1], D.ssq[t])
            p.valu("v_add_f32", D.sumv[t], D.sumv[t], acc[3]); p.valu("v_fma_f32", D.ssq[t], acc[2], acc[2], D.ssq[t])
            p.valu("v_fma_f32", D.ssq[t], acc[3], acc[3], D.ssq[t])
        else:
            for r in range(4):
                p.valu("v_add_f32", D.sumv[t], D.sumv[t], acc[r]); p.valu("v_fma_f32", D.ssq[t], acc[r], acc[r], D.ssq[t])
        t0 = D.T[D.ti % len(D.T)]; t1 = D.T[(D.ti + 1) % len(D.T)]; D.ti += 2
        p.cvtpk(t0, acc[0], acc[1]); p.cvtpk(t1, acc[2], acc[3])
        ct = 2 * j + hh; G = ct >> 2; u = ct & 3
        p.accw(X(2 * G, t)[u], t0); p.accw(X(2 * G + 1, t)[u], t1)
        yield t

def dw_ctile(*a, **k):
    for _ in dw_ctile_gen(*a, **k): pass

def stats_valu(p, D, T):
    t2, t0, g16 = T[:3]
    for t in range(3):
        for x in (D.sumv[t], D.ssq[t]):
            p.mov(t2, x); p.swap16(x, t2); p.valu("v_add_f32", x, x, t2)
            p.mov(t2, x); p.swap32(x, t2); p.valu("v_add_f32", x, x, t2)
        p.valu("v_mul_f32", t2, sI384, D.sumv[t])
        p.valu("v_mul_f32", t0, t2, t2)
        p.valu("v_fma_f32", t0, D.ssq[t], sI384, Neg(t0))
        p.valu("v_max_f32", t0, 0, t0); p.valu("v_add_f32", t0, sEps, t0)
        p.trans("v_rsq_f32", RC[t], t0)
    p.valu("v_lshrrev_b32", g16, 4, vTID); p.valu("v_lshlrev_b32", g16, 4, g16)
    for t in range(3):
        for r in range(4):
            i = p.bperm(RK(t, r), g16, RC[t]); i.text += f" offset:{4*r}"

def slots_setup(p, reset=False, adv=0):
    if reset: p.salu("s_mov_b32", sS0, 0)
    if adv: p.salu("s_add_u32", sS0, sS0, adv)
    for k in range(4):
        p.salu("s_add_u32", sT[0], sS0, k); p.salu("s_and_b32", sT[0], sT[0], 3); p.salu("s_mul_i32", sSl[k], sT[0], SLOT)

def ring_dma(p, cid, first=False, prio=0, slot=None):
    if first: p.salu("s_mov_b32", sSrc, sW6)
    sl = sSl[cid & 3] if slot is None else slot
    for half in range(2):
        if half == 0:
            if isinstance(sl, R): p.salu("s_add_u32", "m0", sl, sW6, prio=prio)
            else: p.salu("s_add_u32", "m0", sW6, sl, prio=prio)
        else:
            if isinstance(sl, R): p.salu("s_add_u32", sT[5], sl, sW6, prio=prio); p.salu("s_add_u32", "m0", sT[5], 4096, prio=prio)
            else: p.salu("s_add_u32", "m0", sW6, sl + 4096, prio=prio)
            p.salu("s_add_u32", sSrc2, sSrc, 4096, prio=prio)
        src = sSrc if half == 0 else sSrc2
        for k in range(4 if half == 0 else 2):
            p.dma(vL16, SRD_WS, src, k * 1024, res=[("ch", cid)], rd_res=[("fr", cid)], prio=prio)
    p.salu("s_add_u32", sSrc, sSrc, SLOT, prio=prio)

PADDR = v(100, 16)
PADDR2 = v(240, 16)
PXVO = [v(116 + i) for i in range(4)]
PDA = [v(120 + i * 4, 4) for i in range(10)]
PDB = [v(160 + i * 4, 4) for i in range(10)]
PACC = [v(200 + i * 4, 4) for i in range(6)]
PSUM = [v(224), v(225), v(226)]; PSSQ = [v(227), v(228), v(229)]
SSUM3 = v(232, 4); SGRAM3 = v(236, 4)
ONES = v(64, 4)
vDA0 = v(68); vDA1 = v(69)
PDT = [v(70 + i) for i in range(6)]
EVO = [v(82 + i) for i in range(5)]
EXB = [a(144 + i * 4, 4) for i in range(27)] + [v(36, 4), v(40, 4), v(44, 4)]
EXA = [v(48 + i * 4, 4) for i in range(3)] + [v(76, 4), v(88, 4)]
EXACC = v(92, 4); EXT = v(96, 2); EXW = v(87); vEA = v(98)
EB = [v(48 + i * 4, 4) for i in range(3)]

def extra_tile_issue(p):
    n_ = TMP[0]; g_ = TMP[1]; hi = TMP[2]; ye = TMP[3]; xe = TMP[4]; yy = TMP[5]; xx = TMP[6]; tq = TMP[7]; base = TMP[8]
    p.valu("v_and_b32", n_, 15, vTID); p.valu("v_lshrrev_b32", g_, 4, vTID); p.valu("v_lshrrev_b32", hi, 1, g_)
    p.valu("v_lshrrev_b32", ye, 2, n_); p.valu("v_add_u32", ye, sSR3, ye); p.valu("v_mul_u32_u24", ye, 14, ye)
    p.valu("v_bfe_u32", tq, n_, 1, 1); p.valu("v_mul_u32_u24", tq, 7, tq); p.valu("v_add3_u32", ye, ye, tq, 6)
    p.valu("v_and_b32", tq, 1, n_); p.valu("v_mul_u32_u24", tq, 7, tq); p.valu("v_add3_u32", xe, tq, sX0, 6)
    p.valu("v_and_b32", base, 1, g_); p.valu("v_lshlrev_b32", base, 4, base)
    p.salu("s_lshl_b32", sT[0], sW, 5); p.valu("v_add_u32", base, sT[0], base)
    for pp in range(5):
        dy0, dx0 = tap_dydx(2 * pp); dy1, dx1 = tap_dydx(2 * pp + 1)
        p.valu("v_cmp_eq_u32", "vcc", 1, hi)
        p.mov(yy, dy0); p.mov(tq, dy1); p.valu("v_cndmask_b32", yy, yy, tq, "vcc"); p.valu("v_add_u32", yy, yy, ye)
        p.mov(xx, dx0); p.mov(tq, dx1); p.valu("v_cndmask_b32", xx, xx, tq, "vcc"); p.valu("v_add_u32", xx, xx, xe)
        d = EVO[pp]
        p.salu("s_mov_b32", sT[1], ROWB)
        p.valu("v_mul_lo_u32", d, yy, sT[1])
        p.valu("v_mul_u32_u24", tq, 768, xx); p.valu("v_add3_u32", d, d, tq, base)
        p.valu("v_max_u32", tq, yy, xx)
        p.salu("s_mov_b32", sT[2], 378)
        p.valu("v_cmp_gt_u32", "vcc", sT[2], tq)
        p.mov(tq, OOB); p.valu("v_cndmask_b32", d, tq, d, "vcc")
        p.valu("v_cndmask_b32", d, tq, d, sEx)

def extra_loads(p, js):
    for j in js:
        for pp in range(5): p.vld(EXB[j * 5 + pp], EVO[pp], SRD_X, 0, j * 128, mods=XMOD)

def extra_ctile(p, j):
    p.salu("s_cmp_ge_u32", sW, 2); p.salu("s_mov_b32", sT[9], PDS[(2 * j) % 4]); p.salu("s_cselect_b32", sT[9], PDS[(2 * j + 1) % 4], sT[9])
    p.salu("s_and_b32", sT[10], sW, 1); p.salu("s_mul_i32", sT[10], sT[10], 5120); p.salu("s_add_u32", sT[9], sT[9], sT[10])
    p.valu("v_add_u32", vEA, sT[9], vL16)
    for pp in range(5): p.dsr(EXA[pp], vEA, pp * 1024, res=[("dw", 2 * j), ("dw", 2 * j + 1)])
    for pp in range(5): p.mfma(EXACC, EXA[pp], EXB[j * 5 + pp], None if pp == 0 else EXACC)
    p.cvtpk(EXT[0], EXACC[0], EXACC[1]); p.cvtpk(EXT[1], EXACC[2], EXACC[3])
    p.dsw(EXW, EXT[0], (2 * j) * 1024, res=[("exch", 0)]); p.dsw(EXW, EXT[1], (2 * j + 1) * 1024, res=[("exch", 0)])

def extra_tile_gather(p):
    p.valu("v_add_u32", TMP[0], EXCH, vL16)
    for kb in range(12): p.dsr(XE(kb), TMP[0], kb * 1024, res=[("exch", 0)])
    for kb in range(12):
        p.mfma(SSUM3, ONES, XE(kb), None if kb == 0 else SSUM3)
        p.mfma(SGRAM3, XE(kb), XE(kb), None if kb == 0 else SGRAM3)
    p.salu("s_mul_i32", sT[9], sW, 3072)
    p.valu("v_add_u32", TMP[1], sT[9], TMP[0])
    p.salu("s_add_u32", sT[10], sXS, sT[9])
    for i in range(3):
        p.dsr(EB[i], TMP[1], i * 1024, res=[("exch", 0)])
        p.vst(EB[i], vL16, SRD_WS, sT[10], i * 1024, res=[("xs", 0)])

def stats_extra(p):
    g = SGRAM3; t0, t1, t2 = TMP[0], TMP[1], TMP[2]
    n_ = TMP[3]
    p.valu("v_and_b32", n_, 15, vTID); p.valu("v_lshrrev_b32", TMP[4], 2, n_)
    p.valu("v_lshl_add_u32", TMP[9], TMP[4], 4, n_); p.valu("v_lshlrev_b32", TMP[9], 2, TMP[9])
    p.valu("v_cndmask_b32", t0, g[0], g[1], sM1); p.valu("v_cndmask_b32", t0, t0, g[2], sM2); p.valu("v_cndmask_b32", t0, t0, g[3], sM3)
    p.bperm(t1, TMP[9], t0)
    p.valu("v_mul_f32", t2, sI384, SSUM3[0]); p.valu("v_mul_f32", t0, t2, t2)
    p.valu("v_fma_f32", t0, t1, sI384, Neg(t0)); p.valu("v_max_f32", t0, 0, t0); p.valu("v_add_f32", t0, sEps, t0)
    p.trans("v_rsq_f32", RCE, t0)

def blk_pro():
    p = Prog("pro")
    if os.environ.get("FINE") == "pro": p.fine = [99, 0]; p.raw("s_memtime s[88:89]", "salu")
    round_setup(p, False)
    slots_setup(p, reset=True)
    code_touch(p, "L_pro", "L_round", [v(it) for it in (200, 201, 202)], aDUM[2], prio=-6000)
    for j in range(3): dwfrag_dma(p, j, PDS[j], [("dw", j)], [], prio=-5000)
    gen_x_voffs(p, PXVO, sY0, TMP)
    for j in range(2): x_dma(p, PXVO, j, PXS[j], [("xb", j)], [], prio=-4000)
    extra_tile_issue(p)
    extra_loads(p, range(0, 3))
    for j in range(2, 4): x_dma(p, PXVO, j, PXS[j], [("xb", j)], [])
    extra_loads(p, range(3, 6))
    for j in range(4, 6): x_dma(p, PXVO, j, PXS[j], [("xb", j)], [])
    dwfrag_dma(p, 3, PDS[3], [("dw", 3)], [])
    for q in range(4): p.mov(ONES[q], 0x3f803f80)
    p.valu("v_add_u32", vDA0, 65536, vL16); p.valu("v_add_u32", vDA1, PDS[3], vL16)
    p.salu("s_lshl_b32", sT[10], sW, 2); p.salu("s_add_u32", sT[10], sT[10], EXCH)
    p.valu("v_add_u32", EXW, sT[10], vL16)
    gen_dw_addrs(p, lambda t, pp: PADDR[t * 5 + pp], TMP)
    p.mov(PADDR[15], 0)
    for k in range(15): p.valu("v_add_u32", PADDR2[k], 49152, PADDR[k])
    D = DwRegs(lambda t, pp: PADDR[t * 5 + pp], PDA, PDB, PACC, PDT, PSUM, PSSQ)
    for j in range(12):
        wr = [("dw", j), ("xb", j)]
        if j >= 1: wr.append(("xb", j - 1))
        if j >= 2: wr.append(("dw", j - 2))
        if j >= 1 and j + 5 < 12: wr.append(("xfr", j + 5))
        if j >= 2 and j + 2 < 12: wr.append(("dfr", j + 2))
        if j == 8: wr.append(("fr", 0))
        if j == 9: wr.append(("fr", 1))
        p.bar(wr=wr)
        if j >= 2 and j + 2 < 12: dwfrag_dma(p, j + 2, PDS[(j + 2) % 4], [("dw", j + 2)], [("dfr", j + 2)])
        if j >= 1 and j + 5 < 12: x_dma(p, PXVO, j + 5, PXS[(j + 5) % 6], [("xb", j + 5)], [("xfr", j + 5)])
        if j == 8: ring_dma(p, 0, first=True)
        if j == 9: ring_dma(p, 1)
        hi = (j % 6) >= 3
        D.addr = (lambda t, pp: PADDR2[t * 5 + pp]) if hi else (lambda t, pp: PADDR[t * 5 + pp])
        ab, ao = (vDA1, 0) if j % 4 == 3 else (vDA0, PDS[j % 4] - 65536)
        for hh in range(2):
            dw_ctile(p, D, j, hh, ab, ao, PXS[j % 6] - (49152 if hi else 0) + hh * 512, [("xb", j), ("dw", j)])
        if j % 2 == 1 and not os.environ.get('NOEXTRA'): extra_ctile(p, j // 2)
    stats_valu(p, D, TMP[5:8])
    for k in range(16): p.valu("v_add_u32", PADDR[k], XSB, PADDR[k])
    p.valu("v_lshlrev_b32", TMP[0], 6, vTID)
    for k in range(4): p.vst(PADDR[4 * k:4 * k + 4], TMP[0], SRD_WS, sTab, k * 16, res=[("tab", 0)])
    p.bar(wr=[("ch", 0), ("xb", 11), ("dw", 11), ("dw", 10), ("fr", 2), ("exch", 0)])
    ring_dma(p, 2)
    if not os.environ.get('NOEXTRA'):
        extra_tile_gather(p); stats_extra(p)
    p.valu("v_add_u32", vWB[0], sSl[0], vL16)
    for f in range(NPRE): p.dsr(WR(f), vWB[0], f * 1024, res=[("ch", 0)])
    return p
```

```python
from kv2 import *

def wbase(p, cc):
    r = vWB[cc % 3]
    p.valu("v_add_u32", r, sSl[cc & 3], vL16)
    return r

class FragStream:
    def __init__(self, p, pre): self.p = p; self.n = 0; self.pre = pre
    def get(self, base, off, res):
        w = WR(self.n)
        if self.n >= self.pre: self.p.dsr(w, base, off, res=res)
        self.n += 1
        return w

def gemm_tile(p, fs, base, toff, cres, kind, accset, tagk=None, tag=None):
    acc = ACC[accset]
    for kb in range(12):
        w = fs.get(base, toff + kb * 1024, [cres])
        for t in range(3):
            c = None if kb == 0 else acc[t]
            if kind == "kq": i = p.mfma(acc[t], w, X(kb, t), c)
            else: i = p.mfma(acc[t], X(kb, t), w, c)
            if tag is not None and kb == tagk and t == 0: i.wr.append(tag)

def epi_kq(p, accset, a_, dstf):
    acc = ACC[accset]
    for t in range(3):
        for r in range(4): p.valu("v_mul_f32", acc[t][r], RC[t], acc[t][r])
        d = dstf(t, a_ >> 1)
        p.cvtpk(d[2 * (a_ & 1)], acc[t][0], acc[t][1]); p.cvtpk(d[2 * (a_ & 1) + 1], acc[t][2], acc[t][3])

def epi_v(p, accset, a_):
    acc = ACC[accset]
    for t in range(3):
        d = Vf(a_, t >> 1); o = (t & 1) * 2
        p.cvtpk(d[o], acc[t][0], acc[t][1]); p.cvtpk(d[o + 1], acc[t][2], acc[t][3])

def extra_block(p, fs, j, cc_a, cc_b, stash_res):
    if cc_a != cc_b:
        p.salu("s_cmp_ge_u32", sW, 2); p.salu("s_cselect_b32", sT[0], sSl[cc_b & 3], sSl[cc_a & 3])
        p.salu("s_add_u32", sT[0], sT[0], sW1)
    else:
        p.salu("s_add_u32", sT[0], sSl[cc_a & 3], sW1)
    p.valu("v_add_u32", vXB, sT[0], vL16)
    for kb in range(12):
        w = fs.get(vXB, kb * 1024, [("ch", cc_a), ("ch", cc_b)])
        p.mfma(ACCE, w, XE(kb), None if kb == 0 else ACCE)
    for r in range(4): p.valu("v_mul_f32", ACCE[r], RCE, ACCE[r])
    t = v(TMP[8].b, 2)
    p.cvtpk(t[0], ACCE[0], ACCE[1]); p.cvtpk(t[1], ACCE[2], ACCE[3])
    p.salu("s_add_u32", sT[1], sEoff[j], sH192)
    p.valu("v_add_u32", TMP[7], sT[1], vSW)
    ex_bundle(p, sEx, lambda q: q.dsw(TMP[7], t, 0), "dsw", [], [stash_res], 20)

QORD = [3, 0, 1, 2]
def s_phase(p):
    order = [(3, 3), (3, 2), (0, 3), (1, 3), (2, 3), (3, 0), (3, 1),
             (0, 2), (1, 2), (2, 2), (0, 0), (1, 0), (2, 0), (0, 1), (1, 1), (2, 1)]
    for (kt, qt) in order:
        d = Sf(kt, qt)
        for s3 in range(3):
            A = KE(s3) if kt == 3 else Kf(kt, s3)
            B = QE(s3) if qt == 3 else Qf(qt, s3)
            p.mfma(d, A, B, None if s3 == 0 else d)

def softmax(p, qt, k):
    m = TMP[(k % 2) * 3]; m2 = TMP[(k % 2) * 3 + 1]; ng = TMP[(k % 2) * 3 + 2]; l = LINV[qt]; l2 = TMP[6]
    vals = [Sf(kt, qt)[r] for kt in range(3) for r in range(4)] + [Sf(3, qt)[0]]
    p.valu("v_max3_f32", m, vals[0], vals[1], vals[2])
    for i in range(3, 13, 2): p.valu("v_max3_f32", m, m, vals[i], vals[i + 1])
    p.mov(m2, m); p.swap16(m, m2); p.valu("v_max_f32", m, m, m2)
    p.mov(m2, m); p.swap32(m, m2); p.valu("v_max_f32", m, m, m2)
    p.valu("v_mul_f32", ng, sNegC, m)
    for x in vals:
        p.valu("v_fma_f32", x, x, sC, ng)
        p.trans("v_exp_f32", x, x)
    e = vals[12]
    p.valu("v_mul_f32", e, vGM, e)
    p.valu("v_add_f32", l, vals[0], vals[1])
    for x in vals[2:]: p.valu("v_add_f32", l, l, x)
    p.mov(l2, l); p.swap16(l, l2); p.valu("v_add_f32", l, l, l2)
    p.mov(l2, l); p.swap32(l, l2); p.valu("v_add_f32", l, l, l2)
    p.trans("v_rcp_f32", l, l)
    for kt in range(3):
        sf = Sf(kt, qt)
        for r in range(4): p.valu("v_mul_f32", sf[r], RK(kt, r), sf[r])
        d = Pf(qt, kt >> 1); o = (kt & 1) * 2
        p.cvtpk(d[o], sf[0], sf[1]); p.cvtpk(d[o + 1], sf[2], sf[3])
    d = Pf(qt, 1)
    p.cvtpk(d[2], e, 0); p.mov(d[3], 0)

vPK = v(254)
def pv_phase(p, h, park):
    for a_ in range(6):
        p.dsr(Vf(a_, 1)[2], vSV, h * 192 + (a_ >> 1) * 64 + (a_ & 1) * 8, res=[("sV", 0)], op="ds_read_u16")
    for k, qt in enumerate(QORD):
        oa = OACC[k % 2]
        for a_ in range(6): p.mfma(oa[a_], Vf(a_, 0), Pf(qt, 0), None)
        for a_ in range(6): p.mfma(oa[a_], Vf(a_, 1), Pf(qt, 1), oa[a_])
        for a_ in range(6):
            o = oa[a_]
            for r in range(4): p.valu("v_mul_f32", o[r], LINV[qt], o[r])
            if qt == 3:
                t = v(TMP[8].b, 2)
                p.cvtpk(t[0], o[0], o[1]); p.cvtpk(t[1], o[2], o[3])
                off = h * 192 + (a_ >> 1) * 64 + (a_ & 1) * 8
                ex_bundle(p, sEx0, lambda q: q.dsw(vSQ, t, off), "dsw", [], [("sO", 0)], 20)
            else:
                home = OH(h, a_ >> 1, qt); hh = (a_ & 1) * 2
                if h == 0 and park:
                    t = v(TMP[8].b, 2)
                    p.cvtpk(t[0], o[0], o[1]); p.cvtpk(t[1], o[2], o[3])
                    p.dsw(vPK, t, ((a_ >> 1) * 3 + qt) * 1024 + (a_ & 1) * 8, res=[("park", 0)])
                elif home.c == "a":
                    t0, t1 = TMP[8], TMP[9]
                    p.cvtpk(t0, o[0], o[1]); p.cvtpk(t1, o[2], o[3])
                    p.accw(home[hh], t0); p.accw(home[hh + 1], t1)
                else:
                    p.cvtpk(home[hh], o[0], o[1]); p.cvtpk(home[hh + 1], o[2], o[3])

def chunk_mid(p, cc, r0, fs, extra_wr=(), extra_rd=()):
    if r0:
        if cc in (1, 3, 5, 7): extra_block(p, fs, (cc - 1) // 2, cc - 1, cc, ("sKQ", 0) if cc < 7 else ("sV", 0))
        if cc == 8: extra_block(p, fs, 4, 8, 8, ("sV", 0))
    wr = [("ch", cc + 1), ("ch", cc - 1), ("fr", cc + 3)] + list(extra_wr)
    p.bar(rd=[("T", cc)] + list(extra_rd), wr=wr)
    ring_dma(p, cc + 3)

def prefetch_next(p, cc_next):
    base = wbase(p, cc_next)
    for f in range(NPRE): p.dsr(WR(f), base, f * 1024, res=[("ch", cc_next)])

def roll_regs():
    return DwRegs(DWADDR, DA, DB, DACC, DT, SUMV, SSQ)

def blk_b1(hprev, r0):
    roll_tail = (hprev is None and not r0)
    p = Prog(f"b1{'x' if r0 else ''}_{'a' if hprev is None else hprev}")
    if hprev is None:
        p.salu("s_mov_b32", sH192, 0)
    else:
        slots_setup(p, adv=9)
        p.salu("s_add_u32", sH192, sH192, 192)
    if r0 and hprev == 0:
        p.salu("s_mul_i32", sT[0], sW, 9216); p.salu("s_add_u32", sT[0], sT[0], PARK); p.valu("v_add_u32", vPK, sT[0], vL16)
    fs = FragStream(p, NPRE)
    if hprev is not None: pv_phase(p, hprev, park=r0)
    tile = 0
    if roll_tail:
        slots_setup(p, reset=True)
        D = roll_regs()
        p.valu("v_add_u32", vDAb, DW10, vL16)
        base = vWB[0]
        def part(tt, kbs, tag=None):
            acc = ACC[tt]
            for kb in kbs:
                w = fs.get(base, tt * TILE_B + kb * 1024, [("ch", 0)])
                for t in range(3):
                    i = p.mfma(acc[t], w, X(kb, t), None if kb == 0 else acc[t])
                    if tag is not None and kb == kbs[-1] and t == 0: i.wr.append(tag)
        part(0, range(10), ("T", 0));
        p.bar(rd=[("T", 0)], wr=[("ch", 1)])
        part(1, list(range(10)), ("T", 50))
        p.bar(rd=[("T", 50)], wr=[("dw11", 0)])
        for j in (10, 11):
            for hh in range(2):
                dw_ctile(p, D, j, hh, vDAb, (j - 10) * 16384, xslot(j) + hh * 512, [("xb", j), ("dw11", 0)])
        p.bar(wr=[("fr", 2), ("fr", 3), ("xb", 10), ("xb", 11), ("dw11", 0)])
        ring_dma(p, 2); ring_dma(p, 3)
        stats_valu(p, D, [TMP[0], TMP[1], TMP[2]])
        part(0, [10, 11]); part(1, [10, 11])
        epi_kq(p, 0, 0, Kf); epi_kq(p, 1, 1, Kf)
        tile = 2
    for cc in range(1 if roll_tail else 0, 3):
        base = vWB[cc % 3] if cc == 0 else wbase(p, cc)
        for tt in range(2):
            a_ = cc * 2 + tt
            gemm_tile(p, fs, base, tt * TILE_B, ("ch", cc), "kq", tile % 2, tagk=TAGK, tag=("T", cc) if tt == 0 else None)
            epi_kq(p, tile % 2, a_, Kf)
            tile += 1
            if tt == 0: chunk_mid(p, cc, r0, fs)
    prefetch_next(p, 3)
    return p

def touch(p, i):
    idx, row, col, t3 = TMP[7], TMP[8], TMP[9], v(253)
    if i == 0:
        p.salu("s_lshr_b32", sU[2], sH192, 6); p.salu("s_mul_i32", sU[2], sU[2], 86); p.salu("s_lshr_b32", sU[2], sU[2], 8)
        p.salu("s_mul_i32", sPf, sU[2], 6)
        p.salu("s_add_u32", sU[3], sY0, 13); p.salu("s_mul_i32", sU[4], sU[3], ROWB)
        p.salu("s_mul_i32", sU[5], sX0, 768); p.salu("s_add_u32", sU[4], sU[4], sU[5]); p.salu("s_sub_u32", sPfB, sU[4], 768)
    p.salu("s_add_u32", sU[2], sPf, i)
    p.salu("s_and_b32", sU[3], sU[2], 3); p.salu("s_lshl_b32", sU[2], sU[2], 6)
    p.salu("s_cmp_eq_u32", sU[3], sW); p.salu("s_cselect_b32", sU[4], 378, 0)
    p.salu("s_cmp_eq_u32", sRound, 2); p.salu("s_cselect_b32", sU[4], 0, sU[4])
    p.valu("v_add_u32", idx, sU[2], vTID)
    p.valu("v_mul_u32_u24", row, 683, idx); p.valu("v_lshrrev_b32", row, 16, row)
    p.valu("v_mul_u32_u24", col, 96, row); p.valu("v_sub_u32", col, idx, col)
    p.salu("s_mov_b32", sU[5], ROWB)
    p.valu("v_mul_lo_u32", idx, row, sU[5]); p.valu("v_lshl_add_u32", idx, col, 7, idx); p.valu("v_add_u32", idx, sPfB, idx)
    p.salu("s_add_u32", sU[3], sY0, 13)
    p.valu("v_add_u32", row, sU[3], row)
    p.valu("v_cmp_gt_u32", "vcc", sU[4], row)
    p.mov(t3, OOB); p.valu("v_cndmask_b32", idx, t3, idx, "vcc")
    p.vld(aDUM[i % 4], idx, SRD_X, 0, 0)

CT = [v(62), v(63), v(61)]
def blk_b2(r0):
    p = Prog(f"b2{'x' if r0 else ''}")
    fs = FragStream(p, NPRE)
    vq = v(252)
    p.valu("v_add_u32", vq, sH192, vSQ)
    tile = 6
    for cc in range(3, 9):
        base = vWB[cc % 3] if cc == 3 else wbase(p, cc)
        if cc == 6:
            s_phase(p)
            for a_ in (4, 5): p.mov(Vf(a_, 1)[3], 0)
            for k, qt in enumerate(QORD): softmax(p, qt, k)
        for tt in range(2):
            a_ = (cc % 3) * 2 + tt
            kind = "kq" if cc < 6 else "v"
            gemm_tile(p, fs, base, tt * TILE_B, ("ch", cc), kind, tile % 2, tagk=TAGK, tag=("T", cc) if tt == 0 else None)
            if kind == "kq": epi_kq(p, tile % 2, a_, Qf)
            else: epi_v(p, tile % 2, a_)
            tile += 1
            if tt == 0:
                ew = []
                if r0 and cc == 5: ew = [("sKQ", 0)]
                if r0 and cc == 8: ew = [("sV", 0)]
                chunk_mid(p, cc, r0, fs, extra_wr=ew)
                if not os.environ.get("NOTOUCH"): touch(p, cc - 3)
                if cc == 3:
                    if r0: code_touch(p, "L_b1x_a", "L_b2x", [v(253), v(254), v(255)] if False else CT, aDUM[2], sel=(sH192, 576, "L_outx", "L_round"))
                    else: code_touch(p, "L_b1_a", "L_b2", CT, aDUM[2], sel=(sH192, 576, "L_out", "L_codeend"))
                if cc == 5:
                    for s3 in range(3):
                        p.dsr(KE(s3), vq, 768 + s3 * 64, res=[("sKQ", 0)])
                        p.dsr(QE(s3), vq, s3 * 64, res=[("sKQ", 0)])
    prefetch_next(p, 9)
    return p

def gen_sel(p):
    n_ = TMP[8]; g_ = TMP[9]; tq = PK(0, 0)[0]; c = PK(0, 0)[1]
    p.valu("v_and_b32", n_, 15, vTID); p.valu("v_lshrrev_b32", g_, 4, vTID)
    p.valu("v_and_b32", tq, 3, n_); p.valu("v_cmp_eq_u32", "vcc", tq, g_)
    p.valu("v_lshrrev_b32", c, 2, n_); p.mov(tq, 63); p.valu("v_cndmask_b32", c, tq, c, "vcc")
    for q in range(4):
        p.valu("v_cmp_eq_u32", "vcc", q, c)
        p.mov(tq, 0x3f80); p.valu("v_cndmask_b32", SEL[0][q], 0, tq, "vcc")
        p.valu("v_lshlrev_b32", SEL[1][q], 16, SEL[0][q])

def gen_out_offsets(p):
    n_ = TMP[0]; g_ = TMP[1]; tq = TMP[2]; rr = TMP[3]; cc = TMP[4]
    p.valu("v_and_b32", n_, 15, vTID); p.valu("v_lshrrev_b32", g_, 4, vTID)
    p.salu("s_add_u32", sT[0], sY0, sWY7); p.salu("s_mul_i32", sT[0], sT[0], ROWB)
    p.salu("s_add_u32", sT[1], sX0, sWX7); p.salu("s_mul_i32", sT[1], sT[1], 768); p.salu("s_add_u32", sT[0], sT[0], sT[1])
    p.salu("s_mov_b32", sT[2], ROWB)
    p.valu("v_lshlrev_b32", n_, 3, n_); p.valu("v_add_u32", n_, sT[0], n_); p.valu("v_lshlrev_b32", g_, 2, g_)
    for t in range(3):
        for r in range(4):
            p.valu("v_add_u32", tq, 16 * t + r, g_)
            p.valu("v_mul_u32_u24", rr, 37, tq); p.valu("v_lshrrev_b32", rr, 8, rr)
            p.valu("v_mul_u32_u24", cc, 7, rr); p.valu("v_sub_u32", cc, tq, cc)
            p.valu("v_mul_lo_u32", rr, rr, sT[2]); p.valu("v_mul_u32_u24", cc, 768, cc)
            p.valu("v_add3_u32", vOUT[t][r], rr, cc, n_)

def out_chunk_list(p, j, slot, prio=0):
    if os.environ.get("NOWDMA"): return []
    src = WS_WO + j * WOCH
    out = []
    def mk(k):
        def f(tag=None):
            if k in (0, 4):
                a_ = p.salu("s_add_u32", sU[3], sW8, slot + (k // 4) * 4096, prio=prio)
                if tag is not None: a_.rd.append(tag)
                p.salu("s_add_u32", sSrc2, sW8, src + (k // 4) * 4096, prio=prio)
            if k == 8:
                a_ = p.salu("s_and_b32", sT[5], sW, 1, prio=prio)
                if tag is not None: a_.rd.append(tag)
                p.salu("s_lshl_b32", sT[5], sT[5], 10, prio=prio)
                p.salu("s_add_u32", sU[3], sT[5], slot + 32768, prio=prio); p.salu("s_add_u32", sSrc2, sT[5], src + 32768, prio=prio)
            p.salu("s_mov_b32", "m0", sU[3], prio=prio)
            i = p.dma(vL16, SRD_WS, sSrc2, 0 if k == 8 else (k % 4) * 1024, res=[("ch", j)], rd_res=[("fr", j)], prio=prio)
            if tag is not None: i.rd.append(tag)
        return f
    return [mk(k) for k in range(9)]

def wo_only_dma(p, j, slot):
    if os.environ.get("NOWDMA"): return
    src = WS_WO + j * WOCH
    for half in range(2):
        p.salu("s_add_u32", "m0", sW6, slot + half * 4096)
        p.salu("s_add_u32", sSrc2, sW6, src + half * 4096)
        for k in range(4 if half == 0 else 2): p.dma(vL16, SRD_WS, sSrc2, k * 1024, res=[("ch", j)], rd_res=[("fr", j)])

OE = [v(120 + kb * 4, 4) for kb in range(7)] + [v(184 + kb * 4, 4) for kb in range(5)]
XEF = [v(112, 4), v(116, 4), v(236, 4), v(240, 4), v(12, 4), v(16, 4)]
vOE = v(206); vOUTE = v(207); ETMP = [v(212), v(213)]; SELW = v(8, 4); vXBL = v(214)

SPREAD = int(os.environ.get("SPREAD", "6"))
def out_tiles(p, fs, cc, base, tile, plan, dwf=None):
    G = cc >> 1
    nm = [0]
    def hook(i):
        if nm[0] in plan:
            for q, f in enumerate(plan.pop(nm[0])):
                tag = ("TS", 1000 * cc + 10 * nm[0] + q); i.wr.append(tag); f(tag)
        nm[0] += 1
    for e in range(2):
        acc = ACC3[tile[0] % 3]; tile[0] += 1
        dg = dwf(e, hook) if dwf else None
        for t in range(3): hook(p.mfma(acc[t], X(2 * G + (cc & 1), t), SEL[e], None))
        for kb in range(12):
            w = fs.get(base, e * TILE_B + kb * 1024, [("ch", cc)])
            for t in range(3):
                i = p.mfma(acc[t], OH(kb // 3, kb % 3, t), w, acc[t])
                if e == 0 and kb == TAGK and t == 0: i.wr.append(("T", cc))
                hook(i)
            if dg is not None and kb % 4 == 3: next(dg)
        if dg is not None:
            for _ in dg: pass
        yield e
    for k in sorted(plan):
        for f in plan.pop(k): f(None)

def out_epilogue(p, cc, accs_hist, stores):
    pass

ACCE2 = v(232, 4)
def add_plan(plan, items, start, step):
    for k, f in enumerate(items): plan.setdefault(min(start + k * step, 104), []).append(f)

def blk_out(r0, last):
    p = Prog("out" + ("x" if r0 else "") + ("l" if last else ""))
    if os.environ.get("FINE") == p.name: p.fine = [207 if not last else 215, 0]; p.raw("s_memtime s[88:89]", "salu")
    fs = FragStream(p, NPRE)
    roll = not last
    if r0:
        for kb in range(3):
            for t in range(3): p.dsr(OH0(kb, t), vPK, (kb * 3 + t) * 1024, res=[("park", 0)])
    if roll:
        p.salu("s_add_u32", sY0n, sY0, 14)
        gen_x_voffs(p, XVO, sY0n, TMP)
        if r0: p.bar(wr=[("park", 0), ("xfr", 0), ("xfr", 1)])
        for j in range(2): x_dma(p, XVO, j, XSB + xslot(j), [("xb", j)], [("xfr", j)] if r0 else [], prio=-3000)
    gen_sel(p); gen_out_offsets(p)
    pv_phase(p, 3, park=False)
    if roll:
        p.valu("v_lshlrev_b32", TMP[5], 6, vTID)
        for k in range(4): p.vld(DWA[4 * k:4 * k + 4], TMP[5], SRD_WS, sTab, k * 16, res=[("tab", 0)])
        D = roll_regs()
    else:
        n_ = TMP[0]; g_ = TMP[1]; ye = TMP[3]; xe = TMP[4]; tq = TMP[2]
        p.valu("v_and_b32", n_, 15, vTID); p.valu("v_lshrrev_b32", g_, 4, vTID)
        p.valu("v_min_u32", tq, 11, n_); p.valu("v_mul_u32_u24", vOE, STOK, tq); p.valu("v_lshl_add_u32", vOE, g_, 4, vOE); p.valu("v_add_u32", vOE, STASH, vOE)
        p.valu("v_lshrrev_b32", ye, 2, n_); p.valu("v_add_u32", ye, sSR3, ye); p.valu("v_mul_u32_u24", ye, 14, ye)
        p.valu("v_bfe_u32", tq, n_, 1, 1); p.valu("v_mul_u32_u24", tq, 7, tq); p.valu("v_add3_u32", ye, ye, tq, 6)
        p.valu("v_and_b32", tq, 1, n_); p.valu("v_mul_u32_u24", tq, 7, tq); p.valu("v_add3_u32", xe, tq, sX0, 6)
        p.salu("s_mov_b32", sT[3], ROWB)
        p.valu("v_mul_lo_u32", ye, ye, sT[3]); p.valu("v_mul_u32_u24", xe, 768, xe)
        p.salu("s_lshl_b32", sT[3], sW, 1); p.salu("s_and_b32", sT[4], sW, 1)
        p.valu("v_lshlrev_b32", tq, 5, g_); p.valu("v_add3_u32", vOUTE, ye, xe, tq); p.valu("v_add_u32", vOUTE, sT[3], vOUTE)
        p.mov(tq, OOB); p.valu("v_cndmask_b32", vOUTE, tq, vOUTE, sEx)
        p.valu("v_cmp_eq_u32", s(82, 2), 1, sT[4])
        for q in range(4): p.valu("v_cndmask_b32", SELW[q], SEL[0][q], SEL[1][q], s(82, 2))
        p.salu("s_lshr_b32", sT[7], sW, 1); p.salu("s_lshl_b32", sT[7], sT[7], 10); p.salu("s_add_u32", sT[7], sT[7], sXS)
        for j in range(6):
            p.salu("s_add_u32", sT[8], sT[7], j * 2048)
            p.vld(XEF[j], vL16, SRD_WS, sT[8], 0, res=[("xs", 0)])
    tile = [0]
    plan = {}
    W0, WS_, X0_, XS_, S0, SS_ = [int(x) for x in os.environ.get("PACE", "0,5,45,4,14,8").split(",")]
    for cc in range(12):
        slot = OSL[cc & 1] if roll else OLS[cc & 3]
        br = vWB[cc % 3]
        if cc > 0: p.valu("v_add_u32", br, slot, vL16)
        t0 = tile[0]
        dwf = None
        if roll and cc >= 2:
            dwf = lambda e, hook, j=cc - 2, br=br, cc=cc: dw_ctile_gen(p, D, j, e, br, 2 * TILE_B, xslot(j) + e * 512, [("ch", cc), ("xb", j)], hook)
        g = out_tiles(p, fs, cc, br, tile, plan, dwf)
        next(g)
        nplan = {}
        if roll:
            next(g)
            for _ in g: pass
            wr = [("ch", cc), ("ch", cc + 1), ("fr", cc + 2)]
            if cc == 0: wr += [("ch", 2), ("xfr", 2), ("xfr", 3)]
            if cc >= 1: wr.append(("xb", cc - 1))
            if cc >= 2:
                wr.append(("xb", cc - 2))
                wr.append(("xfr", cc + 2))
            if cc == 10: wr += [("fr", 100), ("dfr10", 0)]
            if cc == 11: wr += [("dfr11", 0), ("fr", 101), ("ch", 100), ("xb", 10), ("xb", 11)]
            p.bar(wr=wr)
            if cc + 2 <= 11: add_plan(nplan, out_chunk_list(p, cc + 2, slot), W0, WS_)
            if cc == 0:
                add_plan(nplan, x_dma_list(p, XVO, 2, XSB + xslot(2), [("xb", 2)], [("xfr", 2)]) + x_dma_list(p, XVO, 3, XSB + xslot(3), [("xb", 3)], [("xfr", 3)]), X0_ - 10, XS_ - 1)
            if cc >= 2 and cc + 2 <= 11:
                add_plan(nplan, x_dma_list(p, XVO, cc + 2, XSB + xslot(cc + 2), [("xb", cc + 2)], [("xfr", cc + 2)]), X0_, XS_)
            if cc == 8: code_touch(p, "L_round", "L_out", [v(212), v(213), v(214)], aDUM[2])
            if cc == 10:
                ring_dma(p, 100, first=True, slot=0)
                dwfrag_dma(p, 10, DW10, [("dw11", 0)], [("dfr10", 0)])
            if cc == 11:
                dwfrag_dma(p, 11, DW11, [("dw11", 0)], [("dfr11", 0)])
                ring_dma(p, 101, slot=SLOT)
        else:
            if cc % 2 == 1:
                j = cc // 2
                if cc == 1:
                    for kb in range(12): p.dsr(OE[kb], vOE, kb * 64, res=[("sO", 0)])
                p.salu("s_cmp_ge_u32", sW, 2); p.salu("s_mov_b32", sT[1], OLS[(cc - 1) & 3]); p.salu("s_cselect_b32", sT[0], OLS[cc & 3], sT[1])
                p.salu("s_add_u32", sT[0], sT[0], sW1)
                p.valu("v_add_u32", vXBL, sT[0], vL16)
                xf = XEF[j]
                p.mfma(ACCE2, SELW, xf, None)
                for kb in range(12):
                    w = fs.get(vXBL, kb * 1024, [("ch", cc - 1), ("ch", cc)])
                    p.mfma(ACCE2, w, OE[kb], ACCE2)
                for r in range(4):
                    t = ETMP[r % 2]
                    p.cvtpk(t, ACCE2[r], ACCE2[r])
                    p.vst(t, vOUTE, SRD_OUT, 0, j * 128 + r * 8, op="buffer_store_short")
            if cc < 11:
                wr = [("ch", cc + 1), ("ch", cc - 1), ("fr", cc + 3)]
                if cc == 0: wr += [("sO", 0), ("ch", 2), ("fr", 2)]
                p.bar(rd=[("T", cc)], wr=wr)
                if cc == 0: wo_only_dma(p, 2, OLS[2])
                if cc + 3 <= 11: wo_only_dma(p, cc + 3, OLS[(cc + 3) & 3])
            next(g)
            for _ in g: pass
        accs = [ACC3[t0 % 3], ACC3[(t0 + 1) % 3]]
        h = cc & 1; G = cc >> 1
        sts = []
        for t in range(3):
            for r in range(4):
                p.cvtpk(PK(t, r)[h], accs[0][t][r], accs[1][t][r])
                if h == 1 and not os.environ.get("NOSTORE"):
                    def st(tag=None, t=t, r=r, G=G):
                        i = p.vst(PK(t, r), vOUT[t][r], SRD_OUT, 0, G * 128, mods=os.environ.get("STMOD", "").replace("_", " "))
                        if tag is not None: i.rd.append(tag)
                    sts.append(st)
        add_plan(nplan, sts, S0, SS_)
        plan = nplan
    for k in sorted(plan):
        for f in plan.pop(k): f(None)
    if roll:
        round_setup(p, True)
        p.valu("v_add_u32", vWB[0], 0, vL16)
        for f in range(NPRE): p.dsr(WR(f), vWB[0], f * 1024, res=[("ch", 100)])
    return p
```

```python
from ir import *
from fin import finalize

WS_QKV = 0
TILE_B = 12288
WS_WO = 72 * TILE_B
WOCH = 34816
WS_END = WS_WO + 14 * WOCH
def dw_off(j): return WS_WO + (j + 2) * WOCH + 2 * TILE_B
WS_XS = 2 << 20
WS_TAB = 6 << 20
WS_USED = WS_TAB + 1024 * 4096

def srd(p, dst, ptr_lo, nbytes):
    p.salu("s_mov_b32", s(dst), s(ptr_lo))
    p.salu("s_mov_b32", s(dst + 1), s(ptr_lo + 1))
    p.salu("s_mov_b32", s(dst + 2), nbytes)
    p.salu("s_mov_b32", s(dst + 3), 0x20000)

def build_prep():
    blocks = {}
    e = Prog("pe")
    e.raw("s_load_dwordx4 s[4:7], s[0:1], 8\ns_load_dwordx2 s[8:9], s[0:1], 24\ns_load_dwordx2 s[10:11], s[0:1], 48\ns_waitcnt lgkmcnt(0)",
          "salu", wr=[s(4, 4), s(8, 2), s(10, 2)])
    srd(e, 12, 10, WS_END)
    e.valu("v_and_b32", v(1), 63, v(0))
    e.valu("v_lshrrev_b32", v(2), 6, v(0))
    e.valu("v_and_b32", v(3), 15, v(1))
    e.valu("v_lshrrev_b32", v(4), 4, v(1))
    e.valu("v_readfirstlane_b32", s(20), v(2))
    e.raw("s_cmp_ge_u32 s2, 120\ns_cbranch_scc1 L_prep_end\ns_cmp_ge_u32 s2, 96\ns_cbranch_scc1 L_prep_dw", "br", rd=[s(2)], wr=["scc"])
    blocks["pe"] = e
    w = Prog("pw")
    w.salu("s_mul_i32", s(21), s(2), 57); w.salu("s_lshr_b32", s(21), s(21), 10)
    w.salu("s_mul_i32", s(22), s(21), 18); w.salu("s_sub_u32", s(22), s(2), s(22))
    w.salu("s_mul_i32", s(23), s(22), 43); w.salu("s_lshr_b32", s(23), s(23), 8)
    w.salu("s_mul_i32", s(24), s(23), 6); w.salu("s_sub_u32", s(24), s(22), s(24))
    w.salu("s_cmp_eq_u32", s(23), 0); w.salu("s_cselect_b32", s(25), 384, 0)
    w.salu("s_cmp_eq_u32", s(23), 2); w.salu("s_cselect_b32", s(25), 768, s(25))
    w.salu("s_mul_i32", s(26), s(21), 96); w.salu("s_add_u32", s(25), s(25), s(26))
    w.salu("s_lshl_b32", s(26), s(24), 4); w.salu("s_add_u32", s(25), s(25), s(26))
    w.salu("s_mul_i32", s(27), s(2), TILE_B)
    w.salu("s_sub_u32", s(28), s(2), 72)
    w.salu("s_lshr_b32", s(29), s(28), 2); w.salu("s_lshl_b32", s(29), s(29), 6)
    w.salu("s_and_b32", s(36), s(28), 3); w.salu("s_add_u32", s(29), s(29), s(36))
    w.salu("s_lshr_b32", s(30), s(28), 1); w.salu("s_mul_i32", s(30), s(30), WOCH)
    w.salu("s_and_b32", s(31), s(28), 1); w.salu("s_mul_i32", s(31), s(31), TILE_B)
    w.salu("s_add_u32", s(30), s(30), s(31)); w.salu("s_add_u32", s(30), s(30), WS_WO)
    w.salu("s_cmp_ge_u32", s(2), 72)
    w.salu("s_cselect_b32", s(25), s(29), s(25))
    w.salu("s_cselect_b32", s(27), s(30), s(27))
    w.salu("s_mov_b32", s(32), 2304); w.salu("s_cselect_b32", s(32), 768, s(32))
    w.salu("s_cselect_b32", s(16), s(8), s(6))
    w.salu("s_cselect_b32", s(17), s(9), s(7))
    w.salu("s_mov_b32", s(18), 384 * 2304); w.salu("s_cselect_b32", s(18), 384 * 768, s(18))
    w.salu("s_mov_b32", s(19), 0x20000)
    w.salu("s_cselect_b32", s(37), 3, 1)
    w.salu("s_cselect_b32", s(38), 1, 0)
    w.salu("s_cselect_b32", s(33), 0, 0x3b2aaaab)
    w.valu("v_lshlrev_b32", v(5), 2, v(4))
    w.valu("v_mul_lo_u32", v(5), v(5), s(32))
    w.salu("s_lshl_b32", s(25), s(25), 1)
    w.valu("v_lshlrev_b32", v(6), s(37), v(3))
    w.valu("v_add3_u32", v(5), v(6), s(25), v(5))
    for kk in range(3):
        w.salu("s_mul_i32", s(39), s(20), 3); w.salu("s_add_u32", s(39), s(39), kk)
        w.salu("s_lshr_b32", s(40), s(39), 1); w.salu("s_lshl_b32", s(40), s(40), 6)
        w.salu("s_and_b32", s(41), s(39), 1); w.salu("s_lshl_b32", s(41), s(41), 1); w.salu("s_add_u32", s(40), s(40), s(41))
        w.salu("s_lshl_b32", s(41), s(39), 5)
        w.salu("s_cmp_eq_u32", s(38), 1); w.salu("s_cselect_b32", s(40), s(41), s(40))
        for j in range(8):
            rq = 16 * (j >> 1) + (j & 1); rw = 16 * (j >> 2) + (j & 3)
            w.salu("s_cmp_eq_u32", s(38), 1); w.salu("s_mov_b32", s(42), rq); w.salu("s_cselect_b32", s(42), rw, s(42))
            w.salu("s_add_u32", s(42), s(42), s(40)); w.salu("s_mul_i32", s(35), s(32), s(42))
            w.vld(v(16 + kk * 8 + j), v(5), s(16, 4), s(35), op="buffer_load_ushort")
    for k in range(24): w.valu("v_lshlrev_b32", v(16 + k), 16, v(16 + k))
    w.valu("v_add_f32", v(8), v(16), v(17))
    for k in range(2, 24): w.valu("v_add_f32", v(8), v(8), v(16 + k))
    w.mov(v(9), v(8)); w.swap16(v(8), v(9)); w.valu("v_add_f32", v(8), v(8), v(9))
    w.mov(v(9), v(8)); w.swap32(v(8), v(9)); w.valu("v_add_f32", v(8), v(8), v(9))
    w.valu("v_lshlrev_b32", v(10), 2, v(3))
    w.valu("v_lshl_add_u32", v(11), v(2), 6, v(10))
    w.dsw(v(11), v(8), 0, res=[("L", "red")])
    w.bar(wr=[("L", "red")])
    for q in range(4): w.dsr(v(12 + q), v(10), q * 64, res=[("L", "red")])
    w.valu("v_add_f32", v(12), v(12), v(13)); w.valu("v_add_f32", v(14), v(14), v(15)); w.valu("v_add_f32", v(12), v(12), v(14))
    w.valu("v_mul_f32", v(12), s(33), v(12))
    for k in range(24): w.valu("v_sub_f32", v(16 + k), v(16 + k), v(12))
    for kk in range(3):
        for q in range(4): w.cvtpk(v(40 + kk * 4 + q), v(16 + kk * 8 + 2 * q), v(16 + kk * 8 + 2 * q + 1))
    w.salu("s_mul_i32", s(34), s(20), 3072); w.salu("s_add_u32", s(27), s(27), s(34))
    w.valu("v_lshlrev_b32", v(7), 4, v(1))
    for kk in range(3): w.vst(v(40 + kk * 4, 4), v(7), s(12, 4), s(27), kk * 1024)
    w.raw("s_endpgm", "br")
    blocks["pw"] = w
    d = Prog("pd")
    d.raw("L_prep_dw:", "label")
    srd(d, 16, 4, 9 * 768)
    d.salu("s_sub_u32", s(21), s(2), 96)
    d.salu("s_lshr_b32", s(22), s(21), 1); d.salu("s_mul_i32", s(22), s(22), WOCH)
    d.salu("s_and_b32", s(23), s(21), 1); d.salu("s_mul_i32", s(23), s(23), 5120)
    d.salu("s_add_u32", s(22), s(22), s(23)); d.salu("s_add_u32", s(22), s(22), dw_off(0))
    d.valu("v_lshlrev_b32", v(7), 4, v(1))
    d.valu("v_and_b32", v(8), 1, v(4)); d.valu("v_lshrrev_b32", v(9), 3, v(3))
    d.valu("v_cmp_eq_u32", "vcc", v(8), v(9))
    d.valu("v_and_b32", v(10), 1, v(3))
    d.valu("v_lshlrev_b32", v(10), 4, v(10))
    d.mov(v(11), 0xffff); d.valu("v_lshlrev_b32", v(11), v(10), v(11))
    d.valu("v_cndmask_b32", v(11), 0, v(11), "vcc")
    d.valu("v_bfe_u32", v(12), v(3), 1, 2)
    for q in range(4):
        d.valu("v_cmp_eq_u32", "vcc", q, v(12))
        d.valu("v_cndmask_b32", v(20 + q), 0, v(11), "vcc")
    d.valu("v_lshrrev_b32", v(13), 1, v(4))
    def one(pexpr_sgpr):
        d.salu("s_lshl_b32", s(24), pexpr_sgpr, 1)
        d.valu("v_add_u32", v(14), s(24), v(13))
        d.valu("v_mul_u32_u24", v(15), 768, v(14))
        d.salu("s_lshl_b32", s(25), s(21), 5)
        d.valu("v_lshl_add_u32", v(16), v(3), 1, v(15))
        d.vld(v(17), v(16), s(16, 4), s(25), op="buffer_load_ushort")
        d.valu("v_cmp_eq_u32", "vcc", 9, v(14))
        d.mov(v(18), 0x3f80)
        d.valu("v_cndmask_b32", v(17), v(17), v(18), "vcc")
        d.valu("v_lshl_or_b32", v(17), v(17), 16, v(17))
        for q in range(4): d.valu("v_and_b32", v(24 + q), v(17), v(20 + q))
        d.salu("s_lshl_b32", s(26), pexpr_sgpr, 10); d.salu("s_add_u32", s(26), s(26), s(22))
        d.vst(v(24, 4), v(7), s(12, 4), s(26), 0)
    one(s(20))
    d.raw("s_cmp_lg_u32 s20, 0\ns_cbranch_scc1 L_prep_end", "br", rd=[s(20)], wr=["scc"])
    d.salu("s_mov_b32", s(27), 4)
    one(s(27))
    d.raw("L_prep_end:", "label")
    d.raw("s_endpgm", "br")
    blocks["pd"] = d
    out = finalize(blocks, [("pe", {}), ("pw", {}), ("pe", {}), ("pd", {})], verbose=False)
    lines = []
    for n in ("pe", "pw", "pd"):
        lines += [i.text for i in out[n].ins]
    return lines

PREP_GRID = 120
PREP_LDS = 256
```

```python
from ir import *

RING = 0; SLOT = 24576
STOK = 2320
LDS_TOTAL = 163840
STASH = LDS_TOTAL - 12 * STOK
PARK = 98304
OSL = [0, 34816]
XSB = 69632
def xslot(j): return ((j + 2) % 4) * 16384
DW10 = XSB + 2 * 16384; DW11 = XSB + 3 * 16384
OLS = [0, 34816, 69632, 102400]
PXS = [16384 * i for i in range(6)]
PDS = [98304, 98304 + 10240, 98304 + 20480, STASH + 12288]
EXCH = STASH

S_KARG = s(0, 2); S_WG = s(2)
SRD_X = s(8, 4); SRD_WS = s(12, 4); SRD_OUT = s(16, 4)
sW = s(20); sRound = s(21)
sW6 = s(23); sSrc = s(24); sSrc2 = s(25)
sS0 = s(27); sSl = [s(28), s(29), s(30), s(31)]
sC = s(32); sY0 = s(33); sX0 = s(34); sSR3 = s(35); sQX = s(36)
sT = [s(37 + i) for i in range(12)]
sM1 = s(50, 2); sM2 = s(52, 2); sM3 = s(54, 2)
sEx = s(56, 2); sEx0 = s(58, 2)
sXS = s(60); sNegC = s(61); sWG = s(63)
sEoff = [s(66 + j) for j in range(5)]
sH192 = s(71); sW1 = s(72); sWY7 = s(73); sWX7 = s(74)
sI384 = s(75); sEps = s(76)
sTab = s(77)
sY0n = s(78)
sPf = s(79)
sW8 = s(80)
sPfB = s(87)
sU = [s(81 + i) for i in range(6)]

def X(kb, t): return a(kb * 12 + t * 4, 4)
E0 = 144
def XE(kb): return a(E0 + kb * 4, 4)
def OH0(kb, t): return a(E0 + (kb * 3 + t) * 4, 4)
O1B = 192
def OH1(kb, t): return a(O1B + (kb * 3 + t) * 4, 4)
WRB = 228; NWR = 6
def WR(i): return a(WRB + (i % NWR) * 4, 4)
aDUM = [a(252), a(253), a(254), a(255)]

vTID = v(0); vL16 = v(1)
vWB = [v(2), v(3), v(4)]
RC = [v(5), v(6), v(7)]
def RK(t, r): return v(8 + t * 4 + r)
vSQ = v(20); vSV = v(21); vSW = v(22); vGM = v(23); RCE = v(24); vXB = v(25)
TMP = [v(26 + i) for i in range(10)]
ACC = [[v(36 + st * 12 + t * 4, 4) for t in range(3)] for st in range(2)]
ACCE = v(60, 4)
OH2B = 64
def OH2(kb, t): return v(OH2B + (kb * 3 + t) * 4, 4)
RKB = 100
def Kf(t, s3): return v(RKB + (t * 3 + s3) * 4, 4)
def Vf(a_, u): return v(RKB + a_ * 8 + u * 4, 4)
RQB = 148
def Qf(t, s3): return v(RQB + (t * 3 + s3) * 4, 4)
def Pf(qt, u): return v(RQB + qt * 8 + u * 4, 4)
RSB = 184
def Sf(kt, qt): return v(RSB + (qt * 4 + kt) * 4, 4)
def KE(s3): return Sf(s3, 0)
def QE(s3): return Sf(s3, 1)
OACC = [[v(RSB + 48 + i * 4, 4) for i in range(4)] + [v(RSB + i * 4, 4) for i in range(2)],
        [v(RSB + 8 + i * 4, 4) for i in range(2)] + [v(RSB + 16 + i * 4, 4) for i in range(4)]]
LINV = [v(248 + i) for i in range(4)]
def OH3(kb, t):
    if kb < 2: return v(RQB + t * 8 + kb * 4, 4)
    return [v(RQB + 32, 4), v(252, 4), v(RQB + 24, 4)][t]
def OH(h, kb, t): return [OH0, OH1, OH2, OH3][h](kb, t)

SEL = [v(RSB + 32, 4), v(RSB + 36, 4)]
vOUT = [[v(RSB + 40 + t * 4 + r) if t < 2 else v(60 + r) for r in range(4)] for t in range(3)]
ACC3 = ACC + [[v(100 + t * 4, 4) for t in range(3)]]
_PKB = [208, 210, 244, 246, 248, 250, 24, 26, 28, 30, 32, 204]
def PK(t, r): return v(_PKB[t * 4 + r], 2)
DWA = v(112, 16)
def DWADDR(t, pp): return DWA[t * 5 + pp]
DA = [v(128 + i * 4, 4) for i in range(5)]
DB = [v(184 + i * 4, 4) for i in range(5)]
DACC = [v(232 + t * 4, 4) for t in range(3)]
XVO = [v(8 + i) for i in range(4)]
DT = [v(212 + i) for i in range(4)]
SUMV = [v(12), v(13), v(14)]; SSQ = [v(15), v(16), v(17)]
vDAb = v(18)
```

```python
from ir import *
import heapq

LDS_LAT = 110
VLD_LAT = 900
DMA_LAT = int(__import__("os").environ.get("DMALAT", "750"))

def is_pseudo(r): return r[0] not in ("v", "a", "s", "vcc", "scc", "exec", "m0")

def cost_of(i, prev_kind):
    k = i.kind
    if k == "mfma": return 8
    if k in ("trans", "perm"): c = 8
    elif k == "valu": c = 4
    elif k in SCALAR_KINDS: c = 4
    elif i.cost is not None: c = i.cost
    else: c = 4
    if (k in DS_KINDS or k in VM_KINDS) and prev_kind in VALU_KINDS: c += 8
    return c

def raw_lat(p, c, reg):
    pk, ck = p.kind, c.kind
    if p.lat is not None: return p.lat
    if pk == "dsr": return LDS_LAT
    if pk == "dsp": return 70
    if pk == "dsw": return 40
    if pk == "vld": return VLD_LAT
    if pk == "dma": return DMA_LAT
    if pk == "vst": return 400
    if pk == "mfma":
        if ck == "mfma" and c.mc and reg in c.mc: return 16
        return 40
    if pk in VALU_KINDS:
        base = 8 if pk != "valu" else 4
        if ck == "mfma": return base + 8
        if ck == "perm": return base + 8
        if pk == "trans": return base + 4
        if ck == "salu": return base + 12
        if reg[0] in ("s", "vcc"): return base + 8
        return base
    if pk == "salu":
        if ck == "dma" and reg[0] == "m0": return 8
        return 4
    if pk == "bar": return 4
    return 4

def build_deps(ins):
    n = len(ins)
    preds = [dict() for _ in range(n)]
    lastw = {}; readers = {}
    last_fence = None
    for j, c in enumerate(ins):
        def edge(p, lat):
            if p == j: return
            if preds[j].get(p, -1) < lat: preds[j][p] = lat
        for r in c.rd:
            if r in lastw: edge(lastw[r], raw_lat(ins[lastw[r]], c, r))
        for r in c.wr:
            if r in lastw:
                p = ins[lastw[r]]
                if p.kind == "mfma" and c.kind == "mfma": lat = 4
                elif p.kind == "mfma": lat = 40
                elif p.kind in ("dsr", "dsp", "vld", "dma", "dsw", "vst"): lat = raw_lat(p, c, r) if not (p.kind == c.kind and is_pseudo(r)) else 0
                else: lat = 0
                edge(lastw[r], lat)
            for q in readers.get(r, ()):
                p = ins[q]
                if p.kind == "mfma" and p.mc and r in p.mc and c.kind in VALU_KINDS: lat = 20
                elif p.kind == "dsr" and is_pseudo(r): lat = LDS_LAT
                elif p.kind == "vst" and c.kind in VALU_KINDS and not is_pseudo(r): lat = p.cost if p.cost else 8
                elif p.kind == "dsw" and not is_pseudo(r): lat = p.cost
                else: lat = 0
                edge(q, lat)
        for r in c.rd: readers.setdefault(r, []).append(j)
        for r in c.wr:
            lastw[r] = j; readers[r] = []
    return preds

def keep_order_classes(ins, preds):
    last = {}
    for j, c in enumerate(ins):
        cls = None
        if c.kind == "bar": cls = "bar"
        elif c.kind in VM_KINDS: cls = "vm"
        if cls:
            if cls in last: preds[j].setdefault(last[cls], 0)
            last[cls] = j

def schedule(prog, vm_in_order=True, verbose=False, lds_lat=None):
    ins = prog.ins
    n = len(ins)
    for i in ins: assert i.kind not in ("label", "br", "wait", "nop"), i
    preds = build_deps(ins)
    if vm_in_order: keep_order_classes(ins, preds)
    succs = [[] for _ in range(n)]
    for j in range(n):
        for p, l in preds[j].items(): succs[p].append((j, l))
    mf = [j for j in range(n) if ins[j].kind == "mfma"]
    nom = {}
    for k, j in enumerate(mf): nom[j] = 16 * k
    tend = 16 * len(mf) + 200
    pos = {id(ins[j]): j for j in mf}
    INF = 10**9
    dl = [INF] * n
    for j in range(n - 1, -1, -1):
        d = tend
        if j in nom: d = nom[j]
        for (sj, l) in succs[j]:
            d = min(d, dl[sj] - max(l, 4))
        dl[j] = d + ins[j].prio
        pin = ins[j].pin
        if pin is not None and id(pin) in pos: dl[j] = min(dl[j], nom[pos[id(pin)]] + 40)
    npred = [len(preds[j]) for j in range(n)]
    es = [0] * n
    ready_m = []; ready_f = []
    def push(j):
        if ins[j].kind == "mfma": ready_m.append(j)
        else: ready_f.append(j)
    for j in range(n):
        if npred[j] == 0: push(j)
    out = []
    t_vec = 0
    t_sc = 0
    m_free = 0
    prev_kind = None
    issued = 0
    stall_m = 0
    times = []
    while issued < n:
        bm = None; tM = None
        if ready_m:
            best = None
            for j in ready_m:
                tj = max(t_vec, m_free, es[j])
                key = (tj, j)
                if best is None or key < best[0]: best = (key, j)
            bm = best[1]; tM = best[0][0]
        cand = None
        bestk = None
        for j in ready_f:
            c = ins[j]
            sc = c.kind in SCALAR_KINDS
            t0 = max(t_sc if sc else t_vec, es[j])
            cst = cost_of(c, prev_kind)
            fin = t0 + cst
            if tM is not None:
                fits = fin <= tM
                if not fits and cst > 8 and prev_kind == "mfma" and c.kind in ("vst", "dsw") and t0 <= t_vec: fits = True
                urgent = dl[j] + 0 < dl[bm] - 0 and dl[j] <= t0 + 8
                if not fits and not urgent: continue
            bonus = 0
            if (c.kind in DS_KINDS or c.kind in VM_KINDS):
                if prev_kind == "mfma" or prev_kind in SCALAR_KINDS: bonus = -48
                else: bonus = 64
            key = (t0 > (t_sc if sc else t_vec) + 0, dl[j] + bonus, j) if tM is not None else (t0, dl[j] + bonus, j)
            if bestk is None or key < bestk: bestk = key; cand = j
        if cand is not None:
            j = cand; c = ins[j]
            sc = c.kind in SCALAR_KINDS
            t0 = max(t_sc if sc else t_vec, es[j])
            cst = cost_of(c, prev_kind)
            t_sc = t0 + cst
            t_vec = max(t_vec, t_sc) if sc else t0 + cst
            t_sc = max(t_sc, t_sc)
            ready_f.remove(j)
        else:
            assert bm is not None, "deadlock in scheduler"
            j = bm; c = ins[j]; t0 = tM
            if t0 > m_free and issued > 0 and m_free > 0: stall_m += t0 - m_free
            m_free = t0 + 16
            t_vec = t0 + 8; t_sc = t0 + 4
            ready_m.remove(j)
        out.append(c); times.append(t0)
        prev_kind = c.kind
        issued += 1
        for (sj, l) in succs[j]:
            es[sj] = max(es[sj], t0 + l)
            npred[sj] -= 1
            if npred[sj] == 0: push(sj)
    total = max(t_vec, m_free)
    if verbose:
        from collections import Counter
        cnt = Counter(i.kind for i in ins)
        print(f"[sched] {prog.name}: n={n} mfma={len(mf)} est={total} cyc (mfma-bound {16*len(mf)}), stall={stall_m}  {dict(cnt)}")
    p2 = Prog(prog.name); p2.ins = out;
    p2.est = total
    return p2
```

```python
import sys, os
from kv2b import *
from sched import schedule
from fin import finalize
from emit import *
from prep import build_prep, PREP_GRID, PREP_LDS

def glue(name, text, kind="br", rd=(), wr=()):
    p = Prog(name); p.raw(text, kind, rd=rd, wr=list(wr) + ["scc"]); return p

def waitblk(name, lg=None, vm=None):
    from fin import wait_text
    p = Prog(name); w = I(wait_text(lg, vm), "wait"); w.need = (lg, vm); p.ins.append(w); return p

DUMP_REG = 16 << 20
DUMP_LDS = 160 << 20
def dump_lines():
    L = ["s_waitcnt vmcnt(0) lgkmcnt(0)", "s_nop 15", "s_nop 15", "s_barrier"]
    L += ["s_load_dwordx2 s[80:81], s[0:1], 48", "s_waitcnt lgkmcnt(0)", "s_mov_b32 s84, s80", "s_mov_b32 s85, s81", "s_mov_b32 s86, 0x1a000000", "s_mov_b32 s87, 0x20000"]
    L += ["s_lshl_b32 s88, s2, 2", f"s_add_u32 s88, s88, s{sW.b}", "s_lshl_b32 s88, s88, 17", f"s_add_u32 s88, s88, {DUMP_REG}"]
    L += ["v_accvgpr_write_b32 a255, v1", "v_accvgpr_write_b32 a254, v0", "s_nop 4", "v_lshrrev_b32 v1, 2, v1", "s_nop 4"]
    for r in range(512):
        if r < 256:
            if r == 1: continue
            L += [f"s_add_u32 s89, s88, {r*256}", f"buffer_store_dword v{r}, v1, s[84:87], s89 offen"]
        else:
            L += [f"v_accvgpr_read_b32 v0, a{r-256}", f"s_add_u32 s89, s88, {r*256}", "s_nop 1", "buffer_store_dword v0, v1, s[84:87], s89 offen", "s_waitcnt vmcnt(0)"]
        if r % 32 == 31: L.append("s_waitcnt vmcnt(0)")
    L += ["s_waitcnt vmcnt(0)", f"s_mul_i32 s88, s2, 163840", f"s_add_u32 s88, s88, {DUMP_LDS}", f"s_mul_i32 s90, s{sW.b}, 40960", "s_add_u32 s88, s88, s90",
          "v_lshlrev_b32 v1, 2, v1", "v_add_u32 v2, s90, v1"]
    for k in range(40):
        L += [f"ds_read_b128 v[4:7], v2 offset:{k*1024}", "s_waitcnt lgkmcnt(0)", f"s_add_u32 s89, s88, {k*1024}", "buffer_store_dwordx4 v[4:7], v1, s[84:87], s89 offen", "s_waitcnt vmcnt(0)"]
    L += ["s_endpgm"]
    return L

STAMP_LDS = 135168
STAMP_WS = 8 << 20
def stamp_blk(name):
    p = Prog(name)
    p.raw("s_memtime s[90:91]", "raw", wr=[s(90, 2)])
    w = I("s_waitcnt lgkmcnt(0)", "wait"); w.need = (0, None); p.ins.append(w)
    p.mov(TMP[0], s(90)); p.mov(TMP[1], s(92))
    p.dsw(TMP[1], TMP[0], 0)
    p.salu("s_add_u32", s(92), s(92), 4)
    return p
def fine_dump(name, vreg, n):
    p = Prog(name)
    w = I("s_waitcnt lgkmcnt(0)", "wait"); w.need = (0, None); p.ins.append(w)
    p.raw(f"v_writelane_b32 v{vreg}, s88, {n}\ns_memtime s[88:89]\ns_waitcnt lgkmcnt(0)\nv_writelane_b32 v{vreg}, s88, {n+1}", "valu")
    p.salu("s_mul_i32", s(93), sW, 208); p.salu("s_add_u32", s(93), s(93), STAMP_LDS + 4 * 30)
    p.valu("v_lshlrev_b32", TMP[0], 2, vTID); p.valu("v_add_u32", TMP[0], s(93), TMP[0])
    p.raw(f"v_cmp_gt_u32 vcc, {n+2}, v0\ns_and_saveexec_b64 s[94:95], vcc\nds_write_b32 v{TMP[0].b}, v{vreg}\ns_mov_b64 exec, s[94:95]\ns_waitcnt lgkmcnt(0)", "valu")
    return p
def stamp_init():
    p = Prog("st_init")
    p.salu("s_mul_i32", s(92), sW, 208); p.salu("s_add_u32", s(92), s(92), STAMP_LDS)
    return p
def stamp_dump():
    L = ["s_waitcnt vmcnt(0) lgkmcnt(0)", "s_barrier", "s_load_dwordx2 s[80:81], s[0:1], 48", "s_waitcnt lgkmcnt(0)",
         "s_mov_b32 s84, s80", "s_mov_b32 s85, s81", "s_mov_b32 s86, 0x1a000000", "s_mov_b32 s87, 0x20000",
         "v_lshlrev_b32 v2, 2, v0", f"v_add_u32 v3, {STAMP_LDS}, v2", f"s_mul_i32 s88, s{sW.b}, 208", "v_add_u32 v3, s88, v3",
         "ds_read_b32 v4, v3", "s_lshl_b32 s89, s2, 10", f"s_lshl_b32 s88, s{sW.b}, 8", "s_add_u32 s89, s89, s88", f"s_add_u32 s89, s89, {STAMP_WS}",
         "s_waitcnt lgkmcnt(0)", "v_cmp_gt_u32 vcc, 52, v0", "s_and_saveexec_b64 s[94:95], vcc", "buffer_store_dword v4, v2, s[84:87], s89 offen", "s_waitcnt vmcnt(0)"]
    return L

def build(do_sched=True, stop_after=None, verbose=True, dump=None, stamps=False):
    B = {}
    B["entry"] = blk_entry()
    B["pro"] = blk_pro()
    for r0 in (True, False):
        for hp in (None, 0, 1, 2):
            b = blk_b1(hp, r0); B[b.name] = b
        b = blk_b2(r0); B[b.name] = b
    B["outx"] = blk_out(True, False); B["out"] = blk_out(False, False); B["outl"] = blk_out(False, True)
    global FINEINFO
    FINEINFO = {n: b.fine for n, b in B.items() if getattr(b, "fine", None)}
    if do_sched:
        for n in list(B):
            if n in ("entry",): continue
            B[n] = schedule(B[n], verbose=verbose)
    order = []
    G = {}
    def g(name, text, **kw): G[name] = glue(name, text, **kw); order.append(name)
    def lab(n): G["lab_" + n] = Prog("lab_" + n); G["lab_" + n].label("L_" + n); order.append("lab_" + n)
    order += ["entry"]; lab("pro"); order += ["pro"]
    seq0 = ["b1x_a", "B2X", "b1x_0", "B2X", "b1x_1", "B2X", "b1x_2", "B2X"]
    def heads(x):
        sfx = "x" if x else ""
        names = [f"b1{sfx}_a", f"b1{sfx}_0", f"b1{sfx}_1", f"b1{sfx}_2"]
        L = f"L_b2{sfx}"
        for k, nm in enumerate(names):
            G[f"lab_{nm}"] = Prog(f"lab_{nm}"); G[f"lab_{nm}"].label(f"L_{nm}"); order.append(f"lab_{nm}")
            order.append(nm)
            if k < 3: g(f"j_{nm}", f"s_branch {L}")
        G[f"lab_b2{sfx}"] = Prog(f"lab_b2{sfx}"); G[f"lab_b2{sfx}"].label(L); order.append(f"lab_b2{sfx}")
        order.append(f"b2{sfx}")
        g(f"ret_b2{sfx}", f"s_cmp_eq_u32 s{sH192.b}, 0\ns_cbranch_scc1 L_{names[1]}\ns_cmp_eq_u32 s{sH192.b}, 192\ns_cbranch_scc1 L_{names[2]}\ns_cmp_eq_u32 s{sH192.b}, 384\ns_cbranch_scc1 L_{names[3]}", rd=[sH192])
        return names
    n0 = heads(True)
    lab("outx"); order += ["outx"]
    G["lab_round"] = Prog("lab_round"); G["lab_round"].label("L_round"); order.append("lab_round")
    n1 = heads(False)
    g("sel_out", f"s_cmp_eq_u32 s{sRound.b}, 2\ns_cbranch_scc1 L_outl", rd=[sRound])
    lab("out"); order += ["out"]
    g("back", "s_branch L_round")
    G["lab_outl"] = Prog("lab_outl"); G["lab_outl"].label("L_outl"); order.append("lab_outl")
    order += ["outl"]
    G["fin"] = Prog("fin"); G["fin"].label("L_end"); G["fin"].raw("s_endpgm\nL_codeend:\ns_endpgm", "br"); order.append("fin")
    B.update(G)
    real = lambda n: n in ("pro",) or n.startswith("b1") or n.startswith("b2") or n.startswith("out")
    if stamps:
        B["st_init"] = stamp_init()
        o2 = []
        for n in order:
            if n == "pro": o2 += ["st_init", "st_0"]; B["st_0"] = stamp_blk("st_0")
            o2.append(n)
            if real(n):
                if os.environ.get("FINE") == n:
                    B["fd_" + n] = fine_dump("fd_" + n, FINEINFO[n][0], FINEINFO[n][1]); o2.append("fd_" + n)
                B["st_" + n] = stamp_blk("st_" + n); o2.append("st_" + n)
        order = o2
    def tr_heads(x, names):
        sfx = "x" if x else ""
        t = []
        for h in range(4):
            env = {"ch": 9 * h, "fr": 9 * h}
            t += [(f"lab_{names[h]}", {}), (names[h], env)]
            if h < 3: t += [(f"j_{names[h]}", {})]
            t += [(f"lab_b2{sfx}", {}), (f"b2{sfx}", env), (f"ret_b2{sfx}", {})]
        return t
    RB = 136
    tr = [("entry", {}), ("pro", {"ch": 0, "fr": 0})] + tr_heads(True, n0) + [("outx", {"ch": 36, "fr": 36, "xb": 10, "xfr": 10})]
    for r in (1, 2):
        off = RB * r
        def sh(t): return [(n, dict({k: vv + off for k, vv in e.items()}, **({"xb": 10 * r} if e else {}))) for n, e in t]
        tr += [("lab_round", {})] + sh(tr_heads(False, n1)) + [("sel_out", {})]
        if r == 1: tr += [("out", {"ch": 36 + off, "fr": 36 + off, "xb": 20, "xfr": 20}), ("back", {})]
        else: tr += [("lab_outl", {}), ("outl", {"ch": 36 + off, "fr": 36 + off})]
    tr += [("fin", {})]
    if stamps:
        t2 = []
        for (n, e) in tr:
            if n == "pro": t2 += [("st_init", {}), ("st_0", {})]
            t2.append((n, e))
            if real(n):
                if os.environ.get("FINE") == n: t2.append(("fd_" + n, {}))
                t2.append(("st_" + n, {}))
        tr = t2
        print("TRACE", ",".join(n for n, e in tr if real(n)))
    if stop_after is not None:
        lin = []; cnt = 0
        for (n, e) in tr:
            if n.startswith("lab_") or n.startswith("j_") or n.startswith("ret_") or n in ("sel_out", "back", "fin"): continue
            lin.append((n, e))
            if n not in ("entry",):
                cnt += 1
                if cnt == stop_after: break
        print("debug trace:", [n for n, e in lin])
        F = finalize(B, lin, verbose=False)
        lines = []
        for (n, e) in lin:
            for i in F[n].ins: lines += i.text.split("\n")
        lines += dump_lines()
        return lines
    F = finalize(B, tr, verbose=verbose)
    lines = []
    for n in order:
        if stamps and n == "fin":
            lines += ["L_end:"] + stamp_dump() + ["s_endpgm", "L_codeend:", "s_endpgm"]; continue
        for i in F[n].ins: lines += i.text.split("\n")
    return lines

if __name__ == "__main__":
    do_sched = "-n" not in sys.argv
    out = [a for a in sys.argv[1:] if not a.startswith("-")]
    stop = None
    for a_ in sys.argv[1:]:
        if a_.startswith("-s"): stop = int(a_[2:])
    lines = build(do_sched, stop_after=stop, verbose="-q" not in sys.argv, stamps="-t" in sys.argv)
    macros, lines = compact(lines)
    km = kernel_text("main_kernel", lines, 512, 256)
    kp = kernel_text("prep_kernel", build_prep(), 64, 64)
    txt = file_text([("prep_kernel", PREP_GRID, 256, PREP_LDS), ("main_kernel", 243, 256, LDS_TOTAL)], [kp, km], macros)
    open(out[0] if out else "k.s", "w").write(txt)
    print("lines", len(lines), "bytes", len(txt))
```

```python
HDR = """; Kernarg layout (56 bytes): x, dw_pe, w_qkv, w_o, out, debug, ws
"""
def kernel_text(name, lines, nvgpr, accum, nsgpr=102):
    body = "\n".join(lines)
    return f""".text
.globl {name}
.p2align 8
.type {name},@function
{name}:
{body}
.section .rodata,"a"
.p2align 6
.amdhsa_kernel {name}
  .amdhsa_next_free_vgpr {nvgpr}
  .amdhsa_next_free_sgpr {nsgpr}
  .amdhsa_accum_offset {accum}
  .amdhsa_group_segment_fixed_size 0
  .amdhsa_kernarg_size 56
  .amdhsa_user_sgpr_count 2
  .amdhsa_user_sgpr_kernarg_segment_ptr 1
  .amdhsa_system_sgpr_workgroup_id_x 1
  .amdhsa_float_denorm_mode_32 3
.end_amdhsa_kernel
"""
def file_text(launches, kernels, macros=()):
    s = HDR
    for (k, g, b, lds) in launches:
        s += f"; @launch kernel={k} grid=({g},1,1) block=({b},1,1) lds={lds}\n"
    s += '.amdgcn_target "amdgcn-amd-amdhsa--gfx950"\n'
    for m in macros: s += m + "\n"
    for k in kernels: s += k
    return s

import re
_MF = re.compile(r"^v_mfma_f32_16x16x32_bf16 ([va])\[(\d+):\d+\], ([va])\[(\d+):\d+\], ([va])\[(\d+):\d+\], (.*)$")
_DR = re.compile(r"^ds_read_b128 ([va])\[(\d+):\d+\], v(\d+) offset:(\d+)$")
_WL = re.compile(r"^s_waitcnt lgkmcnt\((\d+)\)$")
_WV = re.compile(r"^s_waitcnt vmcnt\((\d+)\)$")
_V3 = re.compile(r"^(v_cvt_pk_bf16_f32|v_mul_f32|v_add_f32|v_max_f32) v(\d+), v(\d+), v(\d+)$")
_AW = re.compile(r"^v_accvgpr_write_b32 a(\d+), v(\d+)$")
_AR = re.compile(r"^v_accvgpr_read_b32 v(\d+), a(\d+)$")
_EX = re.compile(r"^v_exp_f32 v(\d+), v(\d+)$")
_DMA = re.compile(r"^buffer_load_dwordx4 v(\d+), s\[(\d+):\d+\], s(\d+) offen offset:(\d+) lds$")
def compact(lines):
    used = {}
    lines = [x for l in lines for x in l.split('\n')]
    out = []
    for l in lines:
        m = _MF.match(l)
        if m:
            dc, d, ac, a_, bc, b, c = m.groups()
            if c == "0": z = "z"
            elif c == f"{dc}[{d}:{int(d)+3}]": z = "c"
            else: out.append(l); continue
            name = f"m{dc}{ac}{bc}{z}"
            cs = "0" if z == "z" else f"{dc}[\\d:\\d+3]"
            used[name] = f".macro {name} d,a,b\nv_mfma_f32_16x16x32_bf16 {dc}[\\d:\\d+3], {ac}[\\a:\\a+3], {bc}[\\b:\\b+3], {cs}\n.endm"
            out.append(f"{name} {d},{a_},{b}"); continue
        m = _DR.match(l)
        if m:
            dc, d, ad, off = m.groups(); name = f"r{dc}"
            used[name] = f".macro {name} d,a,o\nds_read_b128 {dc}[\\d:\\d+3], v\\a offset:\\o\n.endm"
            out.append(f"{name} {d},{ad},{off}"); continue
        m = _WL.match(l)
        if m:
            used["wl"] = ".macro wl n\ns_waitcnt lgkmcnt(\\n)\n.endm"; out.append(f"wl {m.group(1)}"); continue
        m = _WV.match(l)
        if m:
            used["wv"] = ".macro wv n\ns_waitcnt vmcnt(\\n)\n.endm"; out.append(f"wv {m.group(1)}"); continue
        m = _V3.match(l)
        if m:
            op, d, x, y = m.groups()
            name = {"v_cvt_pk_bf16_f32": "cv", "v_mul_f32": "mu", "v_add_f32": "ad", "v_max_f32": "mx"}[op]
            used[name] = f".macro {name} d,x,y\n{op} v\\d, v\\x, v\\y\n.endm"
            out.append(f"{name} {d},{x},{y}"); continue
        m = _AW.match(l)
        if m:
            used["aw"] = ".macro aw d,x\nv_accvgpr_write_b32 a\\d, v\\x\n.endm"; out.append(f"aw {m.group(1)},{m.group(2)}"); continue
        m = _AR.match(l)
        if m:
            used["ar"] = ".macro ar d,x\nv_accvgpr_read_b32 v\\d, a\\x\n.endm"; out.append(f"ar {m.group(1)},{m.group(2)}"); continue
        m = _EX.match(l)
        if m:
            used["ex"] = ".macro ex d,x\nv_exp_f32 v\\d, v\\x\n.endm"; out.append(f"ex {m.group(1)},{m.group(2)}"); continue
        m = _DMA.match(l)
        if m:
            used["dm"] = ".macro dm v,r,s,o\nbuffer_load_dwordx4 v\\v, s[\\r:\\r+3], s\\s offen offset:\\o lds\n.endm"
            out.append(f"dm {m.group(1)},{m.group(2)},{m.group(3)},{m.group(4)}"); continue
        out.append(l)
    return list(used.values()), out

def single_file_text(grid, block, lds, kernels, macros=()):
    s = HDR + f"; @launch grid=({grid},1,1) block=({block},1,1) lds={lds}\n"
    s += '.amdgcn_target "amdgcn-amd-amdhsa--gfx950"\n'
    for m in macros: s += m + "\n"
    for k in kernels: s += k
    return s
```

```python
from ir import *
from regs import *
from prep import WS_WO, WS_DW, WS_END, WS_XS, WS_TAB, WS_USED, TILE_B, dw_off
import math, os, struct

XBYTES = 378 * 378 * 768
ROWB = 378 * 768
OOB = 0x80000000
C_LOG2 = math.log2(math.e) / math.sqrt(96.0)
def f2u(x): return struct.unpack("<I", struct.pack("<f", x))[0]
NPRE = 4
XMOD = os.environ.get("XMOD", "_nt").replace("_", " ")
XMOD2 = os.environ.get("XMOD2", "").replace("_", " ")
TAGK = int(os.environ.get("TAGK", "7"))

def ex_bundle(p, mask, fn, kind, rd, wr, cost):
    q = Prog("tmp"); fn(q)
    txt = f"s_mov_b64 exec, {mask}\n" + "\n".join(i.text for i in q.ins) + "\ns_mov_b64 exec, -1"
    rds = [r for i in q.ins for r in i.rd] + mask.regs(); wrs = [r for i in q.ins for r in i.wr]
    return p.add(I(txt, kind, rds + list(rd), wrs + list(wr), cost=cost))

_cp = [0]
def code_touch(p, lab_from, lab_to, T, dst, sel=None, prio=0):
    if os.environ.get("NOCODE"): return
    _cp[0] += 1
    L = f"L_cp{_cp[0]}"
    A = v(T[0].b, 2); t = T[2]
    txt = f"s_getpc_b64 s[96:97]\n{L}:\ns_mov_b32 s98, {lab_from}-{L}\ns_mov_b32 s99, {lab_to}-{lab_from}\n"
    rd = [S_WG, vTID]
    if sel is not None:
        sr, val, f2, t2 = sel
        txt += f"s_mov_b32 s100, {f2}-{L}\ns_mov_b32 s101, {t2}-{f2}\ns_cmp_eq_u32 {sr}, {val}\ns_cselect_b32 s98, s100, s98\ns_cselect_b32 s99, s101, s99\n"
        rd.append(sr)
    txt += "s_ashr_i32 s100, s98, 31\ns_add_u32 s96, s96, s98\ns_addc_u32 s97, s97, s100\n"
    txt += "s_lshr_b32 s100, s2, 3\ns_and_b32 s100, s100, 31\ns_lshl_b32 s100, s100, 13\n"
    txt += "s_add_u32 s101, s99, 8191\ns_and_b32 s101, s101, 0xffffe000\n"
    for sh in (3, 2, 1, 0):
        txt += f"s_lshl_b32 s98, s101, {sh}\ns_cmp_ge_u32 s100, s98\ns_cselect_b32 s98, s98, 0\ns_sub_u32 s100, s100, s98\n"
    txt += "s_sub_u32 s99, s99, 4"
    p.add(I(txt, "salu", rd, [s(96, 6), "scc"], cost=120, prio=prio))
    p.valu("v_lshlrev_b32", t, 7, vTID, prio=prio); p.valu("v_add_u32", t, s(100), t, prio=prio); p.valu("v_min_u32", t, s(99), t, prio=prio)
    p.add(I(f"v_add_co_u32 {A[0]}, vcc, s96, {t}\ns_nop 1\nv_mov_b32 {A[1]}, s97\nv_addc_co_u32 {A[1]}, vcc, 0, {A[1]}, vcc", "valu", [s(96, 2), t], [A, "vcc"], cost=20, prio=prio))
    p.add(I(f"global_load_dword {dst}, {A}, off", "vld", [A], [dst], cost=8, prio=prio))

SRD_DBG = s(4, 4); SRD_DW = s(96, 4)
NPREP = 12; NWG = NPREP + 243
def blk_entry():
    p = Prog("entry")
    p.raw(f"s_cmp_lt_u32 s2, {NWG}\ns_cbranch_scc1 L_go\ns_endpgm\nL_go:", "br", rd=[s(2)], wr=["scc"])
    p.raw("s_load_dwordx2 s[4:5], s[0:1], 40\ns_load_dwordx2 s[6:7], s[0:1], 32\ns_load_dwordx2 s[38:39], s[0:1], 48\n"
          "s_load_dwordx4 s[40:43], s[0:1], 8\ns_load_dwordx2 s[44:45], s[0:1], 24\ns_load_dwordx2 s[46:47], s[0:1], 0\ns_waitcnt lgkmcnt(0)",
          "salu", wr=[s(4, 2), s(6, 2), s(38, 2), s(40, 4), s(44, 2), s(46, 2)])
    for dst, src, n in ((8, 46, XBYTES), (16, 6, XBYTES), (12, 38, WS_USED)):
        p.salu("s_mov_b32", s(dst), s(src)); p.salu("s_mov_b32", s(dst + 1), s(src + 1))
        p.salu("s_mov_b32", s(dst + 2), n); p.salu("s_mov_b32", s(dst + 3), 0x20000)
    p.salu("s_mov_b32", s(6), 256); p.salu("s_mov_b32", s(7), 0x20000)
    p.valu("v_lshrrev_b32", TMP[0], 6, vTID)
    p.valu("v_and_b32", vTID, 63, vTID)
    p.valu("v_readfirstlane_b32", sW, TMP[0])
    p.valu("v_lshlrev_b32", vL16, 4, vTID)
    p.raw(f"s_cmp_ge_u32 s2, {NPREP}\ns_cbranch_scc1 L_main", "br", rd=[s(2)], wr=["scc"])
    p1 = p; p = Prog("entry2"); p.label("L_main")
    p.salu("s_mov_b32", s(96), s(40)); p.salu("s_mov_b32", s(97), s(41)); p.salu("s_mov_b32", s(98), 9 * 768); p.salu("s_mov_b32", s(99), 0x20000)
    p.salu("s_and_b32", sT[11], S_WG, 7)
    p.salu("s_lshr_b32", s(49), S_WG, 3)
    p.salu("s_cmp_lt_u32", sT[11], 4); p.salu("s_cselect_b32", s(62), 2, 1); p.salu("s_sub_u32", s(49), s(49), s(62))
    p.salu("s_mul_i32", s(62), sT[11], 30); p.salu("s_add_u32", s(49), s(49), s(62))
    p.salu("s_max_u32", s(62), sT[11], 4); p.salu("s_sub_u32", s(62), s(62), 4); p.salu("s_add_u32", sWG, s(49), s(62))
    p.salu("s_mul_i32", sT[0], sWG, 2428); p.salu("s_lshr_b32", sT[0], sT[0], 16)
    p.salu("s_mul_i32", sT[1], sT[0], 27); p.salu("s_sub_u32", sQX, sWG, sT[1])
    p.salu("s_mul_i32", sSR3, sT[0], 3); p.salu("s_mul_i32", sX0, sQX, 14)
    p.salu("s_mul_i32", sW6, sW, 6144); p.salu("s_lshl_b32", sW8, sW, 13)
    p.salu("s_mov_b32", sC, f2u(C_LOG2)); p.salu("s_mov_b32", sNegC, f2u(-C_LOG2))
    p.salu("s_mov_b32", sI384, f2u(1.0 / 384)); p.salu("s_mov_b32", sEps, f2u(1e-5))
    p.salu("s_mov_b32", sRound, 0)
    p.salu("s_lshl_b32", sXS, sWG, 2); p.salu("s_add_u32", sXS, sXS, sW); p.salu("s_mul_i32", sXS, sXS, 6144); p.salu("s_add_u32", sXS, sXS, WS_XS)
    p.salu("s_lshl_b32", sT[0], sWG, 2); p.salu("s_add_u32", sT[0], sT[0], sW); p.salu("s_lshl_b32", sT[0], sT[0], 12); p.salu("s_add_u32", sTab, sT[0], WS_TAB)
    p.salu("s_and_b32", sT[1], sW, 1); p.salu("s_mul_i32", sW1, sT[1], 12288); p.salu("s_mul_i32", sWX7, sT[1], 7)
    p.salu("s_lshr_b32", sT[1], sW, 1); p.salu("s_mul_i32", sWY7, sT[1], 7)
    p.salu("s_mov_b32", sSkip1, 49)
    for w, val in ((1, 43), (2, 7), (3, 1)):
        p.salu("s_cmp_eq_u32", sW, w); p.salu("s_cselect_b32", sSkip1, val, sSkip1)
    n_ = TMP[1]; g_ = TMP[2]
    p.valu("v_and_b32", n_, 15, vTID); p.valu("v_lshrrev_b32", g_, 4, vTID)
    p.valu("v_and_b32", TMP[3], 3, n_)
    p.valu("v_cmp_eq_u32", sM1, 1, TMP[3]); p.valu("v_cmp_eq_u32", sM2, 2, TMP[3]); p.valu("v_cmp_eq_u32", sM3, 3, TMP[3])
    p.valu("v_cmp_gt_u32", sEx, 12, n_); p.valu("v_cmp_eq_u32", sEx0, 0, n_)
    p.valu("v_cmp_eq_u32", "vcc", 0, g_)
    p.valu("v_cndmask_b32", vGM, 0, 1.0, "vcc")
    p.valu("v_mul_u32_u24", vSW, STOK, n_); p.valu("v_lshl_add_u32", vSW, g_, 4, vSW); p.valu("v_add_u32", vSW, STASH, vSW)
    for j in range(5):
        vals = []
        for w in range(4):
            u = 4 * j + w if j < 4 else 16 + (w & 1)
            ty, a_ = divmod(u, 6)
            vals.append([768, 0, 1536][ty] + (a_ >> 1) * 64 + (a_ & 1) * 8)
        d = sEoff[j]
        p.salu("s_mov_b32", d, vals[0])
        for w in range(1, 4):
            p.salu("s_cmp_eq_u32", sW, w); p.salu("s_cselect_b32", d, vals[w], d)
    return p1, p

def round_setup(p, next_round):
    if next_round: p.salu("s_add_u32", sRound, sRound, 1)
    p.salu("s_add_u32", sT[0], sSR3, sRound); p.salu("s_mul_i32", sY0, sT[0], 14)
    p.salu("s_lshl_b32", sT[2], sRound, 2); p.salu("s_add_u32", sT[2], sT[2], sW)
    p.salu("s_mul_i32", sT[2], sT[2], STOK); p.salu("s_add_u32", sT[2], sT[2], STASH)
    n_ = TMP[1]; g_ = TMP[2]
    p.valu("v_and_b32", n_, 15, vTID); p.valu("v_lshrrev_b32", g_, 4, vTID)
    p.valu("v_lshlrev_b32", vSQ, 4, g_); p.valu("v_add_u32", vSQ, sT[2], vSQ)
    p.valu("v_lshrrev_b32", TMP[3], 2, n_); p.valu("v_lshlrev_b32", TMP[3], 4, TMP[3])
    p.valu("v_and_b32", TMP[4], 3, n_); p.valu("v_lshl_add_u32", TMP[3], TMP[4], 1, TMP[3])
    p.salu("s_add_u32", sT[2], sT[2], 1536)
    p.valu("v_add_u32", vSV, sT[2], TMP[3])

def tap_dydx(tap):
    if tap == 9: tap = 4
    return tap // 3 - 1, tap % 3 - 1

def gen_dw_addrs(p, dst, T):
    n_, g_, hi, b16, R0, C0, tR, tC, tL, tq = T
    p.valu("v_and_b32", n_, 15, vTID); p.valu("v_lshrrev_b32", g_, 4, vTID)
    p.valu("v_lshrrev_b32", hi, 1, g_)
    p.valu("v_and_b32", b16, 1, g_); p.valu("v_lshlrev_b32", b16, 4, b16)
    p.valu("v_cmp_eq_u32", "vcc", 1, hi)
    for t in range(3):
        p.valu("v_add_u32", tq, 16 * t + 1, n_)
        p.valu("v_subrev_u32", R0, sSkip1, tq); p.valu("v_lshrrev_b32", R0, 31, R0); p.valu("v_sub_u32", tq, tq, R0)
        p.valu("v_mul_u32_u24", R0, 37, tq); p.valu("v_lshrrev_b32", R0, 8, R0)
        p.valu("v_mul_u32_u24", C0, 7, R0); p.valu("v_sub_u32", C0, tq, C0)
        p.salu("s_add_u32", sT[0], sWY7, 1); p.salu("s_add_u32", sT[1], sWX7, 1)
        p.valu("v_add_u32", R0, sT[0], R0); p.valu("v_add_u32", C0, sT[1], C0)
        for pp in range(5):
            dy0, dx0 = tap_dydx(2 * pp); dy1, dx1 = tap_dydx(2 * pp + 1)
            p.mov(tR, dy0); p.mov(tq, dy1); p.valu("v_cndmask_b32", tR, tR, tq, "vcc"); p.valu("v_add_u32", tR, tR, R0)
            p.mov(tC, dx0); p.mov(tq, dx1); p.valu("v_cndmask_b32", tC, tC, tq, "vcc"); p.valu("v_add_u32", tC, tC, C0)
            p.valu("v_mul_u32_u24", tL, 7, tR); p.valu("v_add_u32", tL, tL, tC); p.valu("v_and_b32", tL, 7, tL)
            d = dst(t, pp)
            p.valu("v_lshlrev_b32", d, 10, tR)
            p.valu("v_lshl_add_u32", d, tL, 5, d)
            p.valu("v_lshrrev_b32", tC, 3, tC)
            p.valu("v_lshl_add_u32", d, tC, 8, d)
            p.valu("v_add_u32", d, d, b16)

def gen_x_voffs(p, xvo, sy0, T):
    u, be, hh, chi, kap, base, cc, xx, t8 = T[:9]
    p.valu("v_lshrrev_b32", u, 4, vTID); p.valu("v_and_b32", be, 15, vTID)
    p.valu("v_lshrrev_b32", hh, 1, u); p.valu("v_and_b32", chi, 1, u)
    p.valu("v_lshrrev_b32", kap, 1, be)
    p.valu("v_and_b32", base, 1, be); p.valu("v_lshlrev_b32", base, 4, base)
    p.valu("v_lshl_add_u32", base, hh, 5, base)
    p.valu("v_lshlrev_b32", chi, 3, chi)
    p.salu("s_lshl_b32", sU[0], sW, 2)
    for i in range(4):
        p.salu("s_add_u32", sU[1], sU[0], i)
        p.valu("v_add_u32", cc, sU[1], kap); p.valu("v_and_b32", cc, 7, cc); p.valu("v_add_u32", cc, cc, chi)
        p.salu("s_sub_u32", sU[2], sX0, 1)
        p.valu("v_add_u32", xx, sU[2], cc)
        p.salu("s_add_u32", sU[3], sy0, sU[1]); p.salu("s_sub_u32", sU[3], sU[3], 1)
        p.salu("s_mul_i32", sU[4], sU[3], ROWB)
        p.valu("v_mul_u32_u24", xvo[i], 768, xx)
        p.valu("v_add3_u32", xvo[i], xvo[i], base, sU[4])
        p.salu("s_cmp_lt_u32", sU[3], 378); p.salu("s_cselect_b32", sU[5], 378, 0)
        p.valu("v_cmp_gt_u32", "vcc", sU[5], xx)
        p.mov(t8, OOB)
        p.valu("v_cndmask_b32", xvo[i], t8, xvo[i], "vcc")

def x_dma_list(p, xvo, j, ldsbase, res, rd_res, prio=0):
    if os.environ.get("NOXDMA") and p.name != "pro": return []
    xm = XMOD if p.name == "pro" else XMOD2
    def one(i):
        def f(tag=None):
            a_ = p.salu("s_lshl_b32", sU[1], sW, 12, prio=prio)
            if tag is not None: a_.rd.append(tag)
            p.salu("s_add_u32", "m0", sU[1], ldsbase + i * 1024, prio=prio)
            p.salu("s_mov_b32", sU[0], j * 64, prio=prio)
            p.dma(xvo[i], SRD_X, sU[0], 0, res=res, rd_res=rd_res, prio=prio, mods=xm)
        return f
    return [one(i) for i in range(4)]
def x_dma(p, xvo, j, ldsbase, res, rd_res, prio=0):
    for f in x_dma_list(p, xvo, j, ldsbase, res, rd_res, prio): f()

def dwfrag_list(p, j, ldsbase, res, rd_res, prio=0):
    src = dw_off(j)
    def mk(k):
        def f(tag=None):
            if k == 0: a_ = p.salu("s_lshl_b32", sT[7], sW, 10, prio=prio)
            else:
                a_ = p.salu("s_and_b32", sT[7], sW, 1, prio=prio); p.salu("s_lshl_b32", sT[7], sT[7], 10, prio=prio)
            if tag is not None: a_.rd.append(tag)
            p.salu("s_add_u32", sT[8], sT[7], src + k * 4096, prio=prio); p.salu("s_add_u32", "m0", sT[7], ldsbase + k * 4096, prio=prio)
            p.dma(vL16, SRD_WS, sT[8], 0, res=res, rd_res=rd_res, prio=prio)
        return f
    return [mk(0), mk(1)]
def dwfrag_dma(*a, **k):
    for f in dwfrag_list(*a, **k): f()

class DwRegs:
    def __init__(self, addr, A, B8, B4, acc, T, sumv, ssq, idx):
        self.addr, self.A, self.B8, self.B4, self.acc, self.T, self.sumv, self.ssq, self.idx = addr, A, B8, B4, acc, T, sumv, ssq, idx
        self.b8 = 0; self.b4 = 0; self.ai = 0; self.ti = 0; self.ci = 0

def dw_ctile_gen(p, D, j, hh, abase, aoff, xoff, res, hook=None):
    nA = len(D.A)
    A = []
    for f in range(3):
        r = D.A[D.ai % nA]; D.ai += 1
        if abase is None: build_afrag(p, r, f, 2 * j + hh)
        else: p.dsr(r, abase, aoff + hh * 3072 + f * 1024, res=res)
        A.append(r)
    for t in range(getattr(D, "ntile", 3)):
        acc = D.acc[D.ci % len(D.acc)]; D.ci += 1
        def rd(dst, pp):
            if t < 3: p.dsr(dst, D.addr(t, pp), xoff, res=res)
            else: p.dsr(dst, D.eaddr(pp), j * 64 + hh * 32, res=[("est", 0)])
        B = D.B4[D.b4 % len(D.B4)]; D.b4 += 1
        rd(B, 4)
        i = p.mfma(acc, A[2], B, None)
        if hook: hook(i)
        for sx in range(2):
            B = D.B8[D.b8 % len(D.B8)]; D.b8 += 1
            rd(B[0:4], 2 * sx); rd(B[4:8], 2 * sx + 1)
            i = p.smfmac(acc, A[sx], B, D.idx)
            if hook: hook(i)
        first = (j == 0 and hh == 0)
        if first:
            p.valu("v_add_f32", D.sumv[t], acc[0], acc[1]); p.valu("v_mul_f32", D.ssq[t], acc[0], acc[0])
            p.valu("v_add_f32", D.sumv[t], D.sumv[t], acc[2]); p.valu("v_fma_f32", D.ssq[t], acc[1], acc[1], D.ssq[t])
            p.valu("v_add_f32", D.sumv[t], D.sumv[t], acc[3]); p.valu("v_fma_f32", D.ssq[t], acc[2], acc[2], D.ssq[t])
            p.valu("v_fma_f32", D.ssq[t], acc[3], acc[3], D.ssq[t])
        else:
            for r in range(4):
                p.valu("v_add_f32", D.sumv[t], D.sumv[t], acc[r]); p.valu("v_fma_f32", D.ssq[t], acc[r], acc[r], D.ssq[t])
        t0 = D.T[D.ti % len(D.T)]; t1 = D.T[(D.ti + 1) % len(D.T)]; D.ti += 2
        p.cvtpk(t0, acc[0], acc[1]); p.cvtpk(t1, acc[2], acc[3])
        ct = 2 * j + hh; G = ct >> 2; u = ct & 3
        XX = (lambda kb: X(kb, t)) if t < 3 else XE
        p.accw(XX(2 * G)[u], t0); p.accw(XX(2 * G + 1)[u], t1)
        yield t

def dw_ctile(*a, **k):
    for _ in dw_ctile_gen(*a, **k): pass

def stats_valu(p, D, T):
    t2, t0, g16 = T[:3]
    for t in range(getattr(D, "ntile", 3)):
        for x in (D.sumv[t], D.ssq[t]):
            p.mov(t2, x); p.swap16(x, t2); p.valu("v_add_f32", x, x, t2)
            p.mov(t2, x); p.swap32(x, t2); p.valu("v_add_f32", x, x, t2)
        p.valu("v_mul_f32", t2, sI384, D.sumv[t])
        p.valu("v_mul_f32", t0, t2, t2)
        p.valu("v_fma_f32", t0, D.ssq[t], sI384, Neg(t0))
        p.valu("v_max_f32", t0, 0, t0); p.valu("v_add_f32", t0, sEps, t0)
        p.trans("v_rsq_f32", RC[t] if t < 3 else RCE, t0)
    p.valu("v_lshrrev_b32", g16, 4, vTID); p.valu("v_lshlrev_b32", g16, 4, g16)
    for t in range(3):
        for r in range(4):
            i = p.bperm(RK(t, r), g16, RC[t]); i.text += f" offset:{4*r}"

def slots_setup(p, reset=False, adv=0):
    if reset: p.salu("s_mov_b32", sS0, 0)
    if adv: p.salu("s_add_u32", sS0, sS0, adv)
    for k in range(4):
        p.salu("s_add_u32", sT[0], sS0, k); p.salu("s_and_b32", sT[0], sT[0], 3); p.salu("s_mul_i32", sSl[k], sT[0], SLOT)

def ring_dma_list(p, cid, first=False, prio=0, slot=None):
    sl = sSl[cid & 3] if slot is None else slot
    def mk(k):
        def f(tag=None):
            if k == 0:
                if first: p.salu("s_mov_b32", sSrc, sW6)
                if isinstance(sl, R): p.salu("s_add_u32", sRB, sl, sW6, prio=prio)
                else: p.salu("s_add_u32", sRB, sW6, sl, prio=prio)
            if k == 4: p.salu("s_add_u32", sSrc2, sSrc, 4096, prio=prio)
            if k < 4: p.salu("s_mov_b32", "m0", sRB, prio=prio)
            else: p.salu("s_add_u32", "m0", sRB, 4096, prio=prio)
            i = p.dma(vL16, SRD_WS, sSrc if k < 4 else sSrc2, (k % 4) * 1024, res=[("ch", cid)], rd_res=[("fr", cid)], prio=prio)
            if tag is not None: i.rd.append(tag)
            if k == 5: p.salu("s_add_u32", sSrc, sSrc, SLOT, prio=prio)
        return f
    return [mk(k) for k in range(6)]
def ring_dma(p, cid, first=False, prio=0, slot=None):
    for f in ring_dma_list(p, cid, first, prio, slot): f()

class Pacer:
    cnt = [0]
    def __init__(self, p): self.n = 0; self.q = []; self.p = p
    def add(self, items, start, step):
        for k, f in enumerate(items): self.q.append((self.n + start + k * step, f))
        self.q.sort(key=lambda x: x[0])
    def tick(self, i):
        self.n += 1
        while self.q and self.q[0][0] <= self.n:
            Pacer.cnt[0] += 1
            tag = ("TP", Pacer.cnt[0]); i.wr.append(tag)
            n0 = len(self.p.ins)
            self.q.pop(0)[1](tag)
            for x in self.p.ins[n0:]: x.pin = i
    def flush(self):
        while self.q: self.q.pop(0)[1](None)

PADDR = v(100, 16)
PXVO = [v(116 + i) for i in range(4)]
PDA = [v(120 + i * 4, 4) for i in range(6)]
PDB8 = [v(144 + i * 8, 8) for i in range(6)]
PDB4 = [v(192 + i * 4, 4) for i in range(2)]
PIDX = v(88); vTS = v(89); MS = [v(90 + q) for q in range(4)]
PACC = [v(200 + i * 4, 4) for i in range(6)]
PSUM = [v(224 + i) for i in range(4)]; PSSQ = [v(228 + i) for i in range(4)]
PDT = [v(70 + i) for i in range(6)]
EADDR = [v(82 + i) for i in range(5)]
vTA = v(68); AM = [v(60 + q) for q in range(4)]
ATMP = [v(76), v(77), v(78), v(79), v(80)]
EVS = [v(36 + i) for i in range(10)]

_at = [0]
def build_afrag(p, dst, f, ct):
    tmp = ATMP[_at[0] % len(ATMP)]; _at[0] += 1
    if f < 2:
        p.dsr(tmp, vTS, f * 3072 + ct * 32, res=[("tbl", 0)], op="ds_read_u16")
        for q in range(4): p.valu("v_and_b32", dst[q], tmp, MS[q])
    else:
        p.dsr(tmp, vTA, 4 * 1536 + ct * 32, res=[("tbl", 0)], op="ds_read_u16")
        p.valu("v_lshl_or_b32", tmp, tmp, 16, tmp)
        for q in range(4): p.valu("v_and_b32", dst[q], tmp, AM[q])

def stage_dma(p):
    u, q, tk, pc, t5 = TMP[0], TMP[1], TMP[2], TMP[3], TMP[4]
    p.salu("s_mul_i32", sU[0], sW, 640)
    p.salu("s_mul_i32", sU[1], sSR3, 14); p.salu("s_add_u32", sU[1], sU[1], 5); p.salu("s_mul_i32", sU[1], sU[1], ROWB)
    p.salu("s_add_u32", sU[2], sX0, 5); p.salu("s_mul_i32", sU[2], sU[2], 768); p.salu("s_add_u32", sU[1], sU[1], sU[2])
    p.salu("s_mov_b32", sU[3], 14 * ROWB); p.salu("s_mov_b32", sU[4], ROWB)
    for k in range(10):
        p.valu("v_add_u32", u, sU[0], vTID); p.valu("v_add_u32", u, 64 * k, u)
        p.valu("v_mul_u32_u24", q, 1305, u); p.valu("v_lshrrev_b32", q, 20, q)
        p.valu("v_mul_u32_u24", t5, 804, q); p.valu("v_sub_u32", u, u, t5)
        p.valu("v_mul_u32_u24", tk, 1311, u); p.valu("v_lshrrev_b32", tk, 16, tk)
        p.valu("v_mul_u32_u24", t5, 50, tk); p.valu("v_sub_u32", pc, u, t5)
        d = EVS[k]
        p.valu("v_mul_lo_u32", d, q, sU[3])
        p.valu("v_lshrrev_b32", t5, 2, tk); p.valu("v_mul_lo_u32", t5, t5, sU[4]); p.valu("v_add_u32", d, d, t5)
        p.valu("v_and_b32", t5, 3, tk); p.valu("v_mul_u32_u24", t5, 768, t5); p.valu("v_add_u32", d, d, t5)
        p.valu("v_lshl_add_u32", d, pc, 4, d)
        p.valu("v_lshrrev_b32", t5, 4, tk); p.valu("v_lshl_add_u32", t5, t5, 2, q)
        p.valu("v_cmp_gt_u32", "vcc", 3, t5); p.mov(t5, OOB); p.valu("v_cndmask_b32", d, t5, d, "vcc")
        p.valu("v_cmp_gt_u32", "vcc", 48, pc); p.valu("v_cndmask_b32", d, t5, d, "vcc")
        p.salu("s_add_u32", sU[5], sU[0], 64 * k); p.salu("s_lshl_b32", sU[5], sU[5], 4); p.salu("s_add_u32", "m0", sU[5], EST)
        p.dma(d, SRD_X, sU[1], 0, res=[("est", 0)], mods=XMOD)

def gen_eaddr(p):
    n_, g_, hi, base, pr, pc, tq = TMP[0:7]
    p.valu("v_and_b32", n_, 15, vTID); p.valu("v_min_u32", n_, 11, n_); p.valu("v_lshrrev_b32", g_, 4, vTID); p.valu("v_lshrrev_b32", hi, 1, g_)
    p.valu("v_lshrrev_b32", tq, 2, n_); p.valu("v_mul_u32_u24", base, ESTQ, tq)
    p.valu("v_and_b32", tq, 1, g_); p.valu("v_lshl_add_u32", base, tq, 4, base); p.valu("v_add_u32", base, EST, base)
    p.valu("v_cmp_eq_u32", "vcc", 1, hi)
    for pp in range(5):
        dy0, dx0 = tap_dydx(2 * pp); dy1, dx1 = tap_dydx(2 * pp + 1)
        p.mov(pr, dy0 + 1); p.mov(tq, dy1 + 1); p.valu("v_cndmask_b32", pr, pr, tq, "vcc")
        p.valu("v_bfe_u32", tq, n_, 1, 1); p.valu("v_add_u32", pr, pr, tq)
        p.mov(pc, dx0 + 1); p.mov(tq, dx1 + 1); p.valu("v_cndmask_b32", pc, pc, tq, "vcc")
        p.valu("v_and_b32", tq, 1, n_); p.valu("v_add_u32", pc, pc, tq)
        p.valu("v_lshl_add_u32", pr, pr, 2, pc); p.valu("v_mul_u32_u24", pr, 800, pr); p.valu("v_add_u32", EADDR[pp], pr, base)

def blk_pro():
    from prep2 import dw_masks, sp_masks, sp_index
    p = Prog("pro")
    if os.environ.get("FINE") == "pro": p.fine = [99, 0]; p.raw("s_memtime s[88:89]", "salu")
    round_setup(p, False)
    slots_setup(p, reset=True)
    for k in range(2):
        p.salu("s_lshl_b32", sT[7], sW, 10); p.salu("s_add_u32", sT[8], sT[7], k * 4096); p.salu("s_add_u32", "m0", sT[8], TBL)
        p.dma(vL16, SRD_DW, sT[8], 0, res=[("tbl", 0)], prio=-7000)
    gen_x_voffs(p, PXVO, sY0, TMP)
    for j in range(2): x_dma(p, PXVO, j, PXS[j], [("xb", j)], [], prio=-4000)
    stage_dma(p)
    for j in range(2, 4): x_dma(p, PXVO, j, PXS[j], [("xb", j)], [])
    code_touch(p, "L_pro", "L_round", [v(it) for it in (200, 201, 202)], aDUM[2])
    gen_dw_addrs(p, lambda t, pp: PADDR[t * 5 + pp], TMP)
    p.mov(PADDR[15], 0)
    gen_eaddr(p)
    i_, g_ = TMP[0], TMP[1]
    p.valu("v_and_b32", i_, 15, vTID); p.valu("v_lshrrev_b32", g_, 4, vTID)
    dw_masks(p, i_, g_, AM, TMP[2:7])
    p.valu("v_lshrrev_b32", TMP[2], 1, g_); p.valu("v_mul_u32_u24", vTA, 768, TMP[2]); p.valu("v_lshl_add_u32", vTA, i_, 1, vTA); p.valu("v_add_u32", vTA, TBL, vTA)
    sp_masks(p, i_, MS, TMP[2]); sp_index(p, PIDX, TMP[2])
    p.valu("v_mul_u32_u24", vTS, 768, g_); p.valu("v_lshl_add_u32", vTS, i_, 1, vTS); p.valu("v_add_u32", vTS, TBL, vTS)
    p.bar(wr=[("tbl", 0)])
    p.mov(TMP[3], 0x3f803f80); p.valu("v_lshlrev_b32", TMP[4], 2, vTID); p.valu("v_add_u32", TMP[4], TBL + 9 * 768, TMP[4])
    for k in range(3): p.dsw(TMP[4], TMP[3], k * 256, res=[("tbl", 0)])
    D = DwRegs(lambda t, pp: PADDR[t * 5 + pp], PDA, PDB8, PDB4, PACC, PDT, PSUM, PSSQ, PIDX)
    D.ntile = 4; D.eaddr = lambda pp: EADDR[pp]
    progs = [p]
    for j in range(12):
        if j == 10:
            p = Prog("pro_b"); progs.append(p)
            if progs[0].__dict__.get("fine") is not None: p.fine = progs[0].fine
        wr = [("xb", j)]
        if j == 0: wr += [("tbl", 0), ("est", 0)]
        if j >= 1:
            wr.append(("xb", j - 1))
            if j + 3 < 12: wr.append(("xfr", j + 3))
        if j == 10: wr.append(("fr", 0))
        if j == 11: wr.append(("fr", 1))
        p.bar(wr=wr)
        if j >= 1 and j + 3 < 12: x_dma(p, PXVO, j + 3, PXS[(j + 3) % 4], [("xb", j + 3)], [("xfr", j + 3)])
        if j == 8: p.vld(vFLAG, vZERO(p), SRD_DBG, 0, 0, mods=" sc1")
        if j == 10: ring_dma(p, 0, first=True)
        if j == 11: ring_dma(p, 1)
        for hh in range(2):
            dw_ctile(p, D, j, hh, None, 0, PXS[j % 4] + hh * 512, [("xb", j)])
    stats_valu(p, D, TMP[5:8])
    for k in range(16): p.valu("v_add_u32", PADDR[k], XSB, PADDR[k])
    p.valu("v_lshlrev_b32", TMP[0], 6, vTID)
    for k in range(4): p.vst(PADDR[4 * k:4 * k + 4], TMP[0], SRD_WS, sTab, k * 16, res=[("tab", 0)])
    p.bar(wr=[("ch", 0), ("xb", 11), ("tbl", 0), ("est", 0), ("fr", 2)])
    ring_dma(p, 2)
    p.valu("v_add_u32", vWB[0], sSl[0], vL16)
    for f in range(NPRE): p.dsr(WR(f), vWB[0], f * 1024, res=[("ch", 0)])
    return progs

def blk_park_xe():
    p = Prog("parkxe")
    def variant(par):
        t = ""
        for j in range(6):
            t += f"s_add_u32 s49, s{sXS.b}, {j*1024}\nbuffer_store_dwordx4 {XE(2*j+par)}, v{vL16.b}, s[12:15], s49 offen\n"
        return t
    txt = f"s_cmp_ge_u32 s{sW.b}, 2\ns_cbranch_scc1 L_pxe1\n" + variant(0) + "s_branch L_pxe2\nL_pxe1:\n" + variant(1) + "L_pxe2:"
    for j in range(6):
        i = I(txt if j == 0 else "", "vst", [XE(2*j), XE(2*j+1), vL16, SRD_WS, sXS, sW], [("xs", 0), s(49), "scc"], cost=24)
        p.add(i)
    return p

vFLAG = v(8)
def vZERO(p):
    p.mov(v(9), 0); return v(9)

def flag_check(name, vflag, dword, target):
    p = Prog(name)
    if os.environ.get("NOCHK"): return p
    p.valu("v_readfirstlane_b32", s(49), vflag)
    L = f"L_{name}"
    p.raw(f"s_cmp_ge_u32 s49, {target}\ns_cbranch_scc1 {L}_ok\ns_mov_b32 s62, 0\n{L}_spin:\n"
          f"v_mov_b32 {vflag}, {4*dword}\ns_nop 1\nbuffer_load_dword {vflag}, {vflag}, s[4:7], 0 offen sc1\ns_waitcnt vmcnt(0)\n"
          f"v_readfirstlane_b32 s49, {vflag}\ns_add_u32 s62, s62, 1\ns_nop 3\ns_cmp_ge_u32 s49, {target}\ns_cbranch_scc1 {L}_ok\n"
          f"s_cmp_lt_u32 s62, 0x40000\ns_cbranch_scc1 {L}_spin\n{L}_ok:", "br", rd=[s(49), vflag], wr=[s(49), s(62), "scc", vflag])
    return p
```

```python
from kv2 import *

def wbase(p, cc):
    r = vWB[cc % 3]
    p.valu("v_add_u32", r, sSl[cc & 3], vL16)
    return r

class FragStream:
    def __init__(self, p, pre): self.p = p; self.n = 0; self.pre = pre
    def get(self, base, off, res):
        w = WR(self.n)
        if self.n >= self.pre: self.p.dsr(w, base, off, res=res)
        self.n += 1
        return w

def gemm_tile(p, fs, base, toff, cres, kind, accset, tagk=None, tag=None):
    acc = ACC[accset]
    for kb in range(12):
        w = fs.get(base, toff + kb * 1024, [cres])
        for t in range(3):
            c = None if kb == 0 else acc[t]
            if kind == "kq": i = p.mfma(acc[t], w, X(kb, t), c)
            else: i = p.mfma(acc[t], X(kb, t), w, c)
            if tag is not None and kb == tagk and t == 0: i.wr.append(tag)
            if getattr(p, "pacer", None): p.pacer.tick(i)

def epi_kq(p, accset, a_, dstf):
    acc = ACC[accset]
    for t in range(3):
        if not os.environ.get("NOEPI"):
            for r in range(4): p.valu("v_mul_f32", acc[t][r], RC[t], acc[t][r])
        d = dstf(t, a_ >> 1)
        p.cvtpk(d[2 * (a_ & 1)], acc[t][0], acc[t][1]); p.cvtpk(d[2 * (a_ & 1) + 1], acc[t][2], acc[t][3])

def epi_v(p, accset, a_):
    acc = ACC[accset]
    for t in range(3):
        d = Vf(a_, t >> 1); o = (t & 1) * 2
        p.cvtpk(d[o], acc[t][0], acc[t][1]); p.cvtpk(d[o + 1], acc[t][2], acc[t][3])

def extra_block(p, fs, j, cc_a, cc_b, stash_res):
    if cc_a != cc_b:
        p.salu("s_cmp_ge_u32", sW, 2); p.salu("s_cselect_b32", sT[0], sSl[cc_b & 3], sSl[cc_a & 3])
        p.salu("s_add_u32", sT[0], sT[0], sW1)
    else:
        p.salu("s_add_u32", sT[0], sSl[cc_a & 3], sW1)
    p.valu("v_add_u32", vXB, sT[0], vL16)
    for kb in range(12):
        w = fs.get(vXB, kb * 1024, [("ch", cc_a), ("ch", cc_b)])
        p.mfma(ACCE, w, XE(kb), None if kb == 0 else ACCE)
    for r in range(4): p.valu("v_mul_f32", ACCE[r], RCE, ACCE[r])
    t = v(TMP[8].b, 2)
    p.cvtpk(t[0], ACCE[0], ACCE[1]); p.cvtpk(t[1], ACCE[2], ACCE[3])
    p.salu("s_add_u32", sT[1], sEoff[j], sH192)
    p.valu("v_add_u32", TMP[7], sT[1], vSW)
    ex_bundle(p, sEx, lambda q: q.dsw(TMP[7], t, 0), "dsw", [], [stash_res], 20)

QORD = [3, 0, 1, 2]
def s_phase(p):
    order = [(3, 3), (3, 2), (0, 3), (1, 3), (2, 3), (3, 0), (3, 1),
             (0, 2), (1, 2), (2, 2), (0, 0), (1, 0), (2, 0), (0, 1), (1, 1), (2, 1)]
    for (kt, qt) in order:
        d = Sf(kt, qt)
        for s3 in range(3):
            A = KE(s3) if kt == 3 else Kf(kt, s3)
            B = QE(s3) if qt == 3 else Qf(qt, s3)
            p.mfma(d, A, B, None if s3 == 0 else d)

def softmax(p, qt, k):
    m = TMP[(k % 2) * 3]; m2 = TMP[(k % 2) * 3 + 1]; ng = TMP[(k % 2) * 3 + 2]; l = LINV[qt]; l2 = TMP[6]
    vals = [Sf(kt, qt)[r] for kt in range(3) for r in range(4)] + [Sf(3, qt)[0]]
    p.valu("v_max3_f32", m, vals[0], vals[1], vals[2])
    for i in range(3, 13, 2): p.valu("v_max3_f32", m, m, vals[i], vals[i + 1])
    p.mov(m2, m); p.swap16(m, m2); p.valu("v_max_f32", m, m, m2)
    p.mov(m2, m); p.swap32(m, m2); p.valu("v_max_f32", m, m, m2)
    p.valu("v_mul_f32", ng, sNegC, m)
    for x in vals:
        p.valu("v_fma_f32", x, x, sC, ng)
        p.trans("v_exp_f32", x, x)
    e = vals[12]
    p.valu("v_mul_f32", e, vGM, e)
    p.valu("v_add_f32", l, vals[0], vals[1])
    for x in vals[2:]: p.valu("v_add_f32", l, l, x)
    p.mov(l2, l); p.swap16(l, l2); p.valu("v_add_f32", l, l, l2)
    p.mov(l2, l); p.swap32(l, l2); p.valu("v_add_f32", l, l, l2)
    p.trans("v_rcp_f32", l, l)
    for kt in range(3):
        sf = Sf(kt, qt)
        for r in range(4): p.valu("v_mul_f32", sf[r], RK(kt, r), sf[r])
        d = Pf(qt, kt >> 1); o = (kt & 1) * 2
        p.cvtpk(d[o], sf[0], sf[1]); p.cvtpk(d[o + 1], sf[2], sf[3])
    d = Pf(qt, 1)
    p.cvtpk(d[2], e, 0); p.mov(d[3], 0)

vPK = v(254)
def pv_phase(p, h, park):
    for a_ in range(6):
        p.dsr(Vf(a_, 1)[2], vSV, h * 192 + (a_ >> 1) * 64 + (a_ & 1) * 8, res=[("sV", 0)], op="ds_read_u16")
    for k, qt in enumerate(QORD):
        oa = OACC[k % 2]
        for a_ in range(6): p.mfma(oa[a_], Vf(a_, 0), Pf(qt, 0), None)
        for a_ in range(6): p.mfma(oa[a_], Vf(a_, 1), Pf(qt, 1), oa[a_])
        for a_ in range(6):
            o = oa[a_]
            for r in range(4): p.valu("v_mul_f32", o[r], LINV[qt], o[r])
            if qt == 3:
                t = v(TMP[8].b, 2)
                p.cvtpk(t[0], o[0], o[1]); p.cvtpk(t[1], o[2], o[3])
                off = h * 192 + (a_ >> 1) * 64 + (a_ & 1) * 8
                ex_bundle(p, sEx0, lambda q: q.dsw(vSQ, t, off), "dsw", [], [("sO", 0)], 20)
            else:
                home = OH(h, a_ >> 1, qt); hh = (a_ & 1) * 2
                if h == 0 and park:
                    t = v(TMP[8].b, 2)
                    p.cvtpk(t[0], o[0], o[1]); p.cvtpk(t[1], o[2], o[3])
                    p.dsw(vPK, t, ((a_ >> 1) * 3 + qt) * 1024 + (a_ & 1) * 8, res=[("park", 0)])
                elif home.c == "a":
                    t0, t1 = TMP[8], TMP[9]
                    p.cvtpk(t0, o[0], o[1]); p.cvtpk(t1, o[2], o[3])
                    p.accw(home[hh], t0); p.accw(home[hh + 1], t1)
                else:
                    p.cvtpk(home[hh], o[0], o[1]); p.cvtpk(home[hh + 1], o[2], o[3])

def chunk_mid(p, cc, r0, fs, extra_wr=(), extra_rd=()):
    if r0:
        if cc in (1, 3, 5, 7): extra_block(p, fs, (cc - 1) // 2, cc - 1, cc, ("sKQ", 0) if cc < 7 else ("sV", 0))
        if cc == 8: extra_block(p, fs, 4, 8, 8, ("sV", 0))
    wr = [("ch", cc + 1), ("ch", cc - 1), ("fr", cc + 3)] + list(extra_wr)
    if not os.environ.get("NOBAR"): p.bar(rd=[("T", cc)] + list(extra_rd), wr=wr)
    if not os.environ.get("NORING"):
        last = cc in (2, 8)
        st = int(os.environ.get("RSTEP", "11"))
        p.pacer.add(ring_dma_list(p, cc + 3), 1, 6 if last else st)

def prefetch_next(p, cc_next):
    base = wbase(p, cc_next)
    for f in range(NPRE): p.dsr(WR(f), base, f * 1024, res=[("ch", cc_next)])

def roll_regs():
    return DwRegs(DWADDR, DA, DB8, DB4, DACC, DT, SUMV, SSQ, vIDX)

def blk_b1(hprev, r0):
    roll_tail = (hprev is None and not r0)
    p = Prog(f"b1{'x' if r0 else ''}_{'a' if hprev is None else hprev}")
    if os.environ.get("FINE") == p.name: p.fine = [255, 0]; p.raw("s_memtime s[88:89]", "salu")
    if hprev is None:
        p.salu("s_mov_b32", sH192, 0)
    else:
        slots_setup(p, adv=9)
        p.salu("s_add_u32", sH192, sH192, 192)
    if r0 and hprev == 0:
        p.salu("s_mul_i32", sT[0], sW, 9216); p.salu("s_add_u32", sT[0], sT[0], PARK); p.valu("v_add_u32", vPK, sT[0], vL16)
    fs = FragStream(p, NPRE); p.pacer = Pacer(p)
    if r0 and hprev == 1:
        p.mov(v(253), 4); p.vld(v(255), v(253), SRD_DBG, 0, 0, mods=" sc1")
    if hprev is not None: pv_phase(p, hprev, park=r0)
    tile = 0
    if roll_tail:
        slots_setup(p, reset=True)
        D = roll_regs()
        base = vWB[0]
        def part(tt, kbs, tag=None):
            acc = ACC[tt]
            for kb in kbs:
                w = fs.get(base, tt * TILE_B + kb * 1024, [("ch", 0)])
                for t in range(3):
                    i = p.mfma(acc[t], w, X(kb, t), None if kb == 0 else acc[t])
                    if tag is not None and kb == kbs[-1] and t == 0: i.wr.append(tag)
                    p.pacer.tick(i)
        p.valu("v_add_u32", vDAb, DSL[0], vL16)
        for hh in range(2): dw_ctile(p, D, 10, hh, vDAb, 0, xslot(10) + hh * 512, [("xb", 10), ("dw", 10)])
        part(0, list(range(10)), ("T", 0))
        p.bar(rd=[("T", 0)], wr=[("ch", 1), ("last", 0), ("fr", 2), ("dw", 11), ("xb", 11)])
        p.pacer.add(ring_dma_list(p, 2), 1, 5)
        for hh in range(2): dw_ctile(p, D, 11, hh, vDAb, 6144, xslot(11) + hh * 512, [("xb", 11), ("dw", 11)])
        part(1, list(range(10)), ("T", 50))
        p.bar(rd=[("T", 50)], wr=[("fr", 3), ("dw", 10), ("dw", 11), ("xb", 10), ("xb", 11)])
        stats_valu(p, D, [TMP[0], TMP[1], TMP[2]])
        p.pacer.add(ring_dma_list(p, 3), 1, 8)
        part(0, [10, 11]); part(1, [10, 11])
        epi_kq(p, 0, 0, Kf); epi_kq(p, 1, 1, Kf)
        tile = 2
    for cc in range(1 if roll_tail else 0, 3):
        base = vWB[cc % 3] if cc == 0 else wbase(p, cc)
        for tt in range(2):
            a_ = cc * 2 + tt
            gemm_tile(p, fs, base, tt * TILE_B, ("ch", cc), "kq", tile % 2, tagk=TAGK, tag=("T", cc) if tt == 0 else None)
            epi_kq(p, tile % 2, a_, Kf)
            tile += 1
            if tt == 0: chunk_mid(p, cc, r0, fs)
    p.pacer.flush()
    prefetch_next(p, 3)
    return p

def touch(p, i):
    idx, row, col, t3 = TMP[7], TMP[8], TMP[9], v(253)
    if i == 0:
        p.salu("s_lshr_b32", sU[2], sH192, 6); p.salu("s_mul_i32", sU[2], sU[2], 86); p.salu("s_lshr_b32", sU[2], sU[2], 8)
        p.salu("s_mul_i32", sPf, sU[2], 6)
        p.salu("s_add_u32", sU[3], sY0, 13); p.salu("s_mul_i32", sU[4], sU[3], ROWB)
        p.salu("s_mul_i32", sU[5], sX0, 768); p.salu("s_add_u32", sU[4], sU[4], sU[5]); p.salu("s_sub_u32", sPfB, sU[4], 768)
    p.salu("s_add_u32", sU[2], sPf, i)
    p.salu("s_and_b32", sU[3], sU[2], 3); p.salu("s_lshl_b32", sU[2], sU[2], 6)
    p.salu("s_cmp_eq_u32", sU[3], sW); p.salu("s_cselect_b32", sU[4], 378, 0)
    p.salu("s_cmp_eq_u32", sRound, 2); p.salu("s_cselect_b32", sU[4], 0, sU[4])
    p.valu("v_add_u32", idx, sU[2], vTID)
    p.valu("v_mul_u32_u24", row, 683, idx); p.valu("v_lshrrev_b32", row, 16, row)
    p.valu("v_mul_u32_u24", col, 96, row); p.valu("v_sub_u32", col, idx, col)
    p.salu("s_mov_b32", sU[5], ROWB)
    p.valu("v_mul_lo_u32", idx, row, sU[5]); p.valu("v_lshl_add_u32", idx, col, 7, idx); p.valu("v_add_u32", idx, sPfB, idx)
    p.salu("s_add_u32", sU[3], sY0, 13)
    p.valu("v_add_u32", row, sU[3], row)
    p.valu("v_cmp_gt_u32", "vcc", sU[4], row)
    p.mov(t3, OOB); p.valu("v_cndmask_b32", idx, t3, idx, "vcc")
    p.vld(aDUM[i % 4], idx, SRD_X, 0, 0)

CT = [v(62), v(63), v(61)]
def blk_b2(r0):
    p = Prog(f"b2{'x' if r0 else ''}")
    if os.environ.get("FINE") == p.name: p.fine = [255, 0]; p.raw("s_memtime s[88:89]", "salu")
    fs = FragStream(p, NPRE); p.pacer = Pacer(p)
    vq = v(252)
    p.valu("v_add_u32", vq, sH192, vSQ)
    tile = 6
    for cc in range(3, 9):
        base = vWB[cc % 3] if cc == 3 else wbase(p, cc)
        if cc == 6:
            s_phase(p)
            for a_ in (4, 5): p.mov(Vf(a_, 1)[3], 0)
            for k, qt in enumerate(QORD): softmax(p, qt, k)
        for tt in range(2):
            a_ = (cc % 3) * 2 + tt
            kind = "kq" if cc < 6 else "v"
            gemm_tile(p, fs, base, tt * TILE_B, ("ch", cc), kind, tile % 2, tagk=TAGK, tag=("T", cc) if tt == 0 else None)
            if kind == "kq": epi_kq(p, tile % 2, a_, Qf)
            else: epi_v(p, tile % 2, a_)
            tile += 1
            if tt == 0:
                ew = []
                if r0 and cc == 5: ew = [("sKQ", 0)]
                if r0 and cc == 8: ew = [("sV", 0)]
                chunk_mid(p, cc, r0, fs, extra_wr=ew)
                if not os.environ.get("NOTOUCH"):
                    if cc == 8: p.pacer.add([lambda tag=None, i=cc - 3: touch(p, i)], 34, 1)
                    else: p.pacer.add([lambda tag=None, i=cc - 3: touch(p, i)], 62, 1)
                if cc == 3:
                    if r0: code_touch(p, "L_b1x_a", "L_b2x", [v(253), v(254), v(255)] if False else CT, aDUM[2], sel=(sH192, 576, "L_outx", "L_round"))
                    else: code_touch(p, "L_b1_a", "L_b2", CT, aDUM[2], sel=(sH192, 576, "L_out", "L_codeend"))
                if cc == 5:
                    for s3 in range(3):
                        p.dsr(KE(s3), vq, 768 + s3 * 64, res=[("sKQ", 0)])
                        p.dsr(QE(s3), vq, s3 * 64, res=[("sKQ", 0)])
    p.pacer.flush()
    prefetch_next(p, 9)
    return p

def gen_sel(p):
    n_ = TMP[8]; g_ = TMP[9]; tq = PK(0, 0)[0]; c = PK(0, 0)[1]
    p.valu("v_and_b32", n_, 15, vTID); p.valu("v_lshrrev_b32", g_, 4, vTID)
    p.valu("v_and_b32", tq, 3, n_); p.valu("v_cmp_eq_u32", "vcc", tq, g_)
    p.valu("v_lshrrev_b32", c, 2, n_); p.mov(tq, 63); p.valu("v_cndmask_b32", c, tq, c, "vcc")
    for q in range(4):
        p.valu("v_cmp_eq_u32", "vcc", q, c)
        p.mov(tq, 0x3f80); p.valu("v_cndmask_b32", SEL[0][q], 0, tq, "vcc")
        p.valu("v_lshlrev_b32", SEL[1][q], 16, SEL[0][q])

def gen_out_offsets(p):
    n_ = TMP[0]; g_ = TMP[1]; tq = TMP[2]; rr = TMP[3]; cc = TMP[4]
    p.valu("v_and_b32", n_, 15, vTID); p.valu("v_lshrrev_b32", g_, 4, vTID)
    p.salu("s_add_u32", sT[0], sY0, sWY7); p.salu("s_mul_i32", sT[0], sT[0], ROWB)
    p.salu("s_add_u32", sT[1], sX0, sWX7); p.salu("s_mul_i32", sT[1], sT[1], 768); p.salu("s_add_u32", sT[0], sT[0], sT[1])
    p.salu("s_mov_b32", sT[2], ROWB)
    p.valu("v_lshlrev_b32", n_, 3, n_); p.valu("v_add_u32", n_, sT[0], n_); p.valu("v_lshlrev_b32", g_, 2, g_)
    for t in range(3):
        for r in range(4):
            p.valu("v_add_u32", tq, 16 * t + r + 1, g_)
            p.valu("v_subrev_u32", rr, sSkip1, tq); p.valu("v_lshrrev_b32", rr, 31, rr); p.valu("v_sub_u32", tq, tq, rr)
            p.valu("v_mul_u32_u24", rr, 37, tq); p.valu("v_lshrrev_b32", rr, 8, rr)
            p.valu("v_mul_u32_u24", cc, 7, rr); p.valu("v_sub_u32", cc, tq, cc)
            p.valu("v_mul_lo_u32", rr, rr, sT[2]); p.valu("v_mul_u32_u24", cc, 768, cc)
            p.valu("v_add3_u32", vOUT[t][r], rr, cc, n_)

OE = [v(120 + kb * 4, 4) for kb in range(7)] + [v(184 + kb * 4, 4) for kb in range(5)]
XEF = [v(112, 4), v(116, 4), v(236, 4), v(240, 4), v(12, 4), v(16, 4)]
vOE = v(206); vOUTE = v(207); ETMP = [v(212), v(213)]; SELW = v(8, 4); vXBL = v(214)

def out_tiles(p, fs, cc, base, tile, dwf=None):
    G = cc >> 1
    hook = p.pacer.tick
    for e in range(2):
        acc = ACC3[tile[0] % 3]; tile[0] += 1
        dgs = [dwf(0, hook), dwf(1, hook)] if (dwf and e == 0) else []
        def step():
            while dgs:
                try:
                    next(dgs[0]); return
                except StopIteration: dgs.pop(0)
        for t in range(3): hook(p.mfma(acc[t], X(2 * G + (cc & 1), t), SEL[e], None))
        for kb in range(12):
            res = [("ch", cc)] + ([("last", 0)] if cc == 11 else [])
            w = fs.get(base, e * TILE_B + kb * 1024, res)
            for t in range(3):
                i = p.mfma(acc[t], OH(kb // 3, kb % 3, t), w, acc[t])
                if e == 0 and kb == (11 if dwf else TAGK) and t == 0: i.wr.append(("T", cc))
                hook(i)
            if kb % 2 == 1: step()
        while dgs: step()
        yield e

ACCE2 = v(232, 4)
def blk_out(r0, last):
    from prep2 import sp_index
    p = Prog("out" + ("x" if r0 else "") + ("l" if last else ""))
    if os.environ.get("FINE") == p.name: p.fine = [207 if not last else 215, 0]; p.raw("s_memtime s[88:89]", "salu")
    fs = FragStream(p, NPRE); p.pacer = Pacer(p)
    roll = not last
    if r0:
        for kb in range(3):
            for t in range(3): p.dsr(OH0(kb, t), vPK, (kb * 3 + t) * 1024, res=[("park", 0)])
    if roll:
        p.salu("s_add_u32", sY0n, sY0, 14)
        gen_x_voffs(p, XVO, sY0n, TMP)
        p.bar(wr=[("park", 0), ("ch", -1), ("xfr", 0), ("xfr", 1), ("xfr", 2), ("dfr", 0), ("dfr", 1)])
        for j in range(3): x_dma(p, XVO, j, XSB + xslot(j), [("xb", j)], [("xfr", j)], prio=-3000)
        for j in range(2): dwfrag_dma(p, j, DSL[j], [("dw", j)], [("dfr", j)])
    gen_sel(p); gen_out_offsets(p)
    pv_phase(p, 3, park=False)
    if roll:
        p.valu("v_lshlrev_b32", TMP[5], 6, vTID)
        for k in range(4): p.vld(DWA[4 * k:4 * k + 4], TMP[5], SRD_WS, sTab, k * 16, res=[("tab", 0)])
        sp_index(p, vIDX, TMP[6])
        p.valu("v_add_u32", vDAb, DSL[0], vL16)
        D = roll_regs()
    else:
        n_ = TMP[0]; g_ = TMP[1]; ye = TMP[3]; xe = TMP[4]; tq = TMP[2]
        p.valu("v_and_b32", n_, 15, vTID); p.valu("v_lshrrev_b32", g_, 4, vTID)
        p.valu("v_min_u32", tq, 11, n_); p.valu("v_mul_u32_u24", vOE, STOK, tq); p.valu("v_lshl_add_u32", vOE, g_, 4, vOE); p.valu("v_add_u32", vOE, STASH, vOE)
        p.valu("v_lshrrev_b32", ye, 2, n_); p.valu("v_add_u32", ye, sSR3, ye); p.valu("v_mul_u32_u24", ye, 14, ye)
        p.valu("v_bfe_u32", tq, n_, 1, 1); p.valu("v_add3_u32", ye, ye, tq, 6)
        p.valu("v_and_b32", tq, 1, n_); p.valu("v_add3_u32", xe, tq, sX0, 6)
        p.salu("s_mov_b32", sT[3], ROWB)
        p.valu("v_mul_lo_u32", ye, ye, sT[3]); p.valu("v_mul_u32_u24", xe, 768, xe)
        p.salu("s_lshl_b32", sT[3], sW, 1); p.salu("s_and_b32", sT[4], sW, 1)
        p.valu("v_lshlrev_b32", tq, 5, g_); p.valu("v_add3_u32", vOUTE, ye, xe, tq); p.valu("v_add_u32", vOUTE, sT[3], vOUTE)
        p.mov(tq, OOB); p.valu("v_cndmask_b32", vOUTE, tq, vOUTE, sEx)
        p.valu("v_cmp_eq_u32", s(82, 2), 1, sT[4])
        for q in range(4): p.valu("v_cndmask_b32", SELW[q], SEL[0][q], SEL[1][q], s(82, 2))
        for j in range(6):
            p.salu("s_add_u32", sT[8], sXS, j * 1024)
            p.vld(XEF[j], vL16, SRD_WS, sT[8], 0, res=[("xs", 0)])
    tile = [0]
    W0, WS_, X0_, XS_, D0_, S0, SS_ = [int(x) for x in os.environ.get("PACE", "6,6,46,6,1,4,7").split(",")]
    for cc in range(12):
        slot = (cc % 3) * SLOT if roll else (cc & 3) * SLOT
        br = vWB[cc % 3]
        if cc > 0: p.valu("v_add_u32", br, slot, vL16)
        t0 = tile[0]
        dwf = None
        if roll and cc >= 2:
            dwf = lambda hh, hook, j=cc - 2: dw_ctile_gen(p, D, j, hh, vDAb, (j % 2) * 6144, xslot(j) + hh * 512, [("dw", j), ("xb", j)], hook)
        g = out_tiles(p, fs, cc, br, tile, dwf)
        next(g)
        if roll:
            wr = [("ch", cc + 1), ("ch", cc - 1), ("fr", cc + 2)]
            if cc >= 1: wr += [("xb", cc - 1), ("dw", cc - 1)]
            if cc >= 2: wr += [("xb", cc - 2), ("xfr", cc + 1), ("dw", cc - 2), ("dfr", cc)]
            if cc == 10: wr += [("fr", 100)]
            if cc == 11: wr += [("fr", 101), ("ch", 100)]
            p.bar(rd=[("T", cc)], wr=wr)
            if 2 <= cc <= 11: p.pacer.add(dwfrag_list(p, cc, DSL[cc % 2], [("dw", cc)], [("dfr", cc)]), D0_, 2)
            if not os.environ.get("NOWDMA"):
                if 1 <= cc <= 9: p.pacer.add(ring_dma_list(p, cc + 2, slot=((cc + 2) % 3) * SLOT), W0, WS_)
            if cc == 10: p.pacer.add(ring_dma_list(p, 100, first=True, slot=0), W0, WS_)
            if cc == 11: p.pacer.add(ring_dma_list(p, 101, slot=SLOT), W0, 5)
            if 2 <= cc <= 10: p.pacer.add(x_dma_list(p, XVO, cc + 1, XSB + xslot(cc + 1), [("xb", cc + 1)], [("xfr", cc + 1)]), X0_, XS_)
            if cc == 8: code_touch(p, "L_round", "L_out", [v(212), v(213), v(214)], aDUM[2])
        else:
            if cc % 2 == 1:
                j = cc // 2
                if cc == 1:
                    for kb in range(12): p.dsr(OE[kb], vOE, kb * 64, res=[("sO", 0)])
                p.salu("s_cmp_ge_u32", sW, 2); p.salu("s_mov_b32", sT[1], ((cc - 1) & 3) * SLOT); p.salu("s_cselect_b32", sT[0], (cc & 3) * SLOT, sT[1])
                p.salu("s_add_u32", sT[0], sT[0], sW1)
                p.valu("v_add_u32", vXBL, sT[0], vL16)
                p.mfma(ACCE2, SELW, XEF[j], None)
                for kb in range(12):
                    w = fs.get(vXBL, kb * 1024, [("ch", cc - 1), ("ch", cc)])
                    p.pacer.tick(p.mfma(ACCE2, w, OE[kb], ACCE2))
                for r in range(4):
                    t = ETMP[r % 2]
                    p.cvtpk(t, ACCE2[r], ACCE2[r])
                    p.vst(t, vOUTE, SRD_OUT, 0, j * 128 + r * 8, op="buffer_store_short")
            if cc < 11:
                wr = [("ch", cc + 1), ("ch", cc - 1), ("fr", cc + 3)]
                if cc == 0: wr += [("sO", 0)]
                p.bar(rd=[("T", cc)], wr=wr)
                if cc + 3 <= 11 and not os.environ.get("NOWDMA"): p.pacer.add(ring_dma_list(p, cc + 3, slot=((cc + 3) & 3) * SLOT), 1, 11)
        next(g)
        for _ in g: pass
        accs = [ACC3[t0 % 3], ACC3[(t0 + 1) % 3]]
        h = cc & 1; G = cc >> 1
        sts = []
        for t in range(3):
            for r in range(4):
                p.cvtpk(PK(t, r)[h], accs[0][t][r], accs[1][t][r])
                if h == 1 and not os.environ.get("NOSTORE"):
                    def st(tag=None, t=t, r=r, G=G):
                        i = p.vst(PK(t, r), vOUT[t][r], SRD_OUT, 0, G * 128, mods=os.environ.get("STMOD", "").replace("_", " "))
                        if tag is not None: i.rd.append(tag)
                    sts.append(st)
        p.pacer.add(sts, S0, SS_ if roll else 5)
    p.pacer.flush()
    if roll:
        round_setup(p, True)
        p.valu("v_add_u32", vWB[0], 0, vL16)
        for f in range(NPRE): p.dsr(WR(f), vWB[0], f * 1024, res=[("ch", 100)])
    return p
```

```python
from ir import *
from fin import finalize

WS_QKV = 0
TILE_B = 12288
WS_WO = 72 * TILE_B
WS_DW = WS_WO + 24 * TILE_B
WS_END = WS_DW + 24 * 3072
def dw_off(j): return WS_DW + j * 6144
WS_XS = 2 << 20
WS_TAB = 9 << 20
WS_USED = WS_TAB + 1024 * 8192

def srd(p, dst, ptr_lo, nbytes):
    p.salu("s_mov_b32", s(dst), s(ptr_lo))
    p.salu("s_mov_b32", s(dst + 1), s(ptr_lo + 1))
    p.salu("s_mov_b32", s(dst + 2), nbytes)
    p.salu("s_mov_b32", s(dst + 3), 0x20000)

def build_prep():
    blocks = {}
    e = Prog("pe")
    e.raw("s_load_dwordx4 s[4:7], s[0:1], 8\ns_load_dwordx2 s[8:9], s[0:1], 24\ns_load_dwordx2 s[10:11], s[0:1], 48\ns_waitcnt lgkmcnt(0)",
          "salu", wr=[s(4, 4), s(8, 2), s(10, 2)])
    srd(e, 12, 10, WS_END)
    e.valu("v_and_b32", v(1), 63, v(0))
    e.valu("v_lshrrev_b32", v(2), 6, v(0))
    e.valu("v_and_b32", v(3), 15, v(1))
    e.valu("v_lshrrev_b32", v(4), 4, v(1))
    e.valu("v_readfirstlane_b32", s(20), v(2))
    e.raw("s_cmp_ge_u32 s2, 120\ns_cbranch_scc1 L_prep_end\ns_cmp_ge_u32 s2, 96\ns_cbranch_scc1 L_prep_dw", "br", rd=[s(2)], wr=["scc"])
    blocks["pe"] = e
    w = Prog("pw")
    w.salu("s_mul_i32", s(21), s(2), 57); w.salu("s_lshr_b32", s(21), s(21), 10)
    w.salu("s_mul_i32", s(22), s(21), 18); w.salu("s_sub_u32", s(22), s(2), s(22))
    w.salu("s_mul_i32", s(23), s(22), 43); w.salu("s_lshr_b32", s(23), s(23), 8)
    w.salu("s_mul_i32", s(24), s(23), 6); w.salu("s_sub_u32", s(24), s(22), s(24))
    w.salu("s_cmp_eq_u32", s(23), 0); w.salu("s_cselect_b32", s(25), 384, 0)
    w.salu("s_cmp_eq_u32", s(23), 2); w.salu("s_cselect_b32", s(25), 768, s(25))
    w.salu("s_mul_i32", s(26), s(21), 96); w.salu("s_add_u32", s(25), s(25), s(26))
    w.salu("s_lshl_b32", s(26), s(24), 4); w.salu("s_add_u32", s(25), s(25), s(26))
    w.salu("s_mul_i32", s(27), s(2), TILE_B)
    w.salu("s_sub_u32", s(28), s(2), 72)
    w.salu("s_lshr_b32", s(29), s(28), 2); w.salu("s_lshl_b32", s(29), s(29), 6)
    w.salu("s_and_b32", s(36), s(28), 3); w.salu("s_add_u32", s(29), s(29), s(36))
    w.salu("s_lshr_b32", s(30), s(28), 1); w.salu("s_mul_i32", s(30), s(30), WOCH)
    w.salu("s_and_b32", s(31), s(28), 1); w.salu("s_mul_i32", s(31), s(31), TILE_B)
    w.salu("s_add_u32", s(30), s(30), s(31)); w.salu("s_add_u32", s(30), s(30), WS_WO)
    w.salu("s_cmp_ge_u32", s(2), 72)
    w.salu("s_cselect_b32", s(25), s(29), s(25))
    w.salu("s_cselect_b32", s(27), s(30), s(27))
    w.salu("s_mov_b32", s(32), 2304); w.salu("s_cselect_b32", s(32), 768, s(32))
    w.salu("s_cselect_b32", s(16), s(8), s(6))
    w.salu("s_cselect_b32", s(17), s(9), s(7))
    w.salu("s_mov_b32", s(18), 384 * 2304); w.salu("s_cselect_b32", s(18), 384 * 768, s(18))
    w.salu("s_mov_b32", s(19), 0x20000)
    w.salu("s_cselect_b32", s(37), 3, 1)
    w.salu("s_cselect_b32", s(38), 1, 0)
    w.salu("s_cselect_b32", s(33), 0, 0x3b2aaaab)
    w.valu("v_lshlrev_b32", v(5), 2, v(4))
    w.valu("v_mul_lo_u32", v(5), v(5), s(32))
    w.salu("s_lshl_b32", s(25), s(25), 1)
    w.valu("v_lshlrev_b32", v(6), s(37), v(3))
    w.valu("v_add3_u32", v(5), v(6), s(25), v(5))
    for kk in range(3):
        w.salu("s_mul_i32", s(39), s(20), 3); w.salu("s_add_u32", s(39), s(39), kk)
        w.salu("s_lshr_b32", s(40), s(39), 1); w.salu("s_lshl_b32", s(40), s(40), 6)
        w.salu("s_and_b32", s(41), s(39), 1); w.salu("s_lshl_b32", s(41), s(41), 1); w.salu("s_add_u32", s(40), s(40), s(41))
        w.salu("s_lshl_b32", s(41), s(39), 5)
        w.salu("s_cmp_eq_u32", s(38), 1); w.salu("s_cselect_b32", s(40), s(41), s(40))
        for j in range(8):
            rq = 16 * (j >> 1) + (j & 1); rw = 16 * (j >> 2) + (j & 3)
            w.salu("s_cmp_eq_u32", s(38), 1); w.salu("s_mov_b32", s(42), rq); w.salu("s_cselect_b32", s(42), rw, s(42))
            w.salu("s_add_u32", s(42), s(42), s(40)); w.salu("s_mul_i32", s(35), s(32), s(42))
            w.vld(v(16 + kk * 8 + j), v(5), s(16, 4), s(35), op="buffer_load_ushort")
    for k in range(24): w.valu("v_lshlrev_b32", v(16 + k), 16, v(16 + k))
    w.valu("v_add_f32", v(8), v(16), v(17))
    for k in range(2, 24): w.valu("v_add_f32", v(8), v(8), v(16 + k))
    w.mov(v(9), v(8)); w.swap16(v(8), v(9)); w.valu("v_add_f32", v(8), v(8), v(9))
    w.mov(v(9), v(8)); w.swap32(v(8), v(9)); w.valu("v_add_f32", v(8), v(8), v(9))
    w.valu("v_lshlrev_b32", v(10), 2, v(3))
    w.valu("v_lshl_add_u32", v(11), v(2), 6, v(10))
    w.dsw(v(11), v(8), 0, res=[("L", "red")])
    w.bar(wr=[("L", "red")])
    for q in range(4): w.dsr(v(12 + q), v(10), q * 64, res=[("L", "red")])
    w.valu("v_add_f32", v(12), v(12), v(13)); w.valu("v_add_f32", v(14), v(14), v(15)); w.valu("v_add_f32", v(12), v(12), v(14))
    w.valu("v_mul_f32", v(12), s(33), v(12))
    for k in range(24): w.valu("v_sub_f32", v(16 + k), v(16 + k), v(12))
    for kk in range(3):
        for q in range(4): w.cvtpk(v(40 + kk * 4 + q), v(16 + kk * 8 + 2 * q), v(16 + kk * 8 + 2 * q + 1))
    w.salu("s_mul_i32", s(34), s(20), 3072); w.salu("s_add_u32", s(27), s(27), s(34))
    w.valu("v_lshlrev_b32", v(7), 4, v(1))
    for kk in range(3): w.vst(v(40 + kk * 4, 4), v(7), s(12, 4), s(27), kk * 1024)
    w.raw("s_endpgm", "br")
    blocks["pw"] = w
    d = Prog("pd")
    d.raw("L_prep_dw:", "label")
    srd(d, 16, 4, 9 * 768)
    d.salu("s_sub_u32", s(21), s(2), 96)
    d.salu("s_lshr_b32", s(22), s(21), 1); d.salu("s_mul_i32", s(22), s(22), WOCH)
    d.salu("s_and_b32", s(23), s(21), 1); d.salu("s_mul_i32", s(23), s(23), 5120)
    d.salu("s_add_u32", s(22), s(22), s(23)); d.salu("s_add_u32", s(22), s(22), dw_off(0))
    d.valu("v_lshlrev_b32", v(7), 4, v(1))
    d.valu("v_and_b32", v(8), 1, v(4)); d.valu("v_lshrrev_b32", v(9), 3, v(3))
    d.valu("v_cmp_eq_u32", "vcc", v(8), v(9))
    d.valu("v_and_b32", v(10), 1, v(3))
    d.valu("v_lshlrev_b32", v(10), 4, v(10))
    d.mov(v(11), 0xffff); d.valu("v_lshlrev_b32", v(11), v(10), v(11))
    d.valu("v_cndmask_b32", v(11), 0, v(11), "vcc")
    d.valu("v_bfe_u32", v(12), v(3), 1, 2)
    for q in range(4):
        d.valu("v_cmp_eq_u32", "vcc", q, v(12))
        d.valu("v_cndmask_b32", v(20 + q), 0, v(11), "vcc")
    d.valu("v_lshrrev_b32", v(13), 1, v(4))
    def one(pexpr_sgpr):
        d.salu("s_lshl_b32", s(24), pexpr_sgpr, 1)
        d.valu("v_add_u32", v(14), s(24), v(13))
        d.valu("v_mul_u32_u24", v(15), 768, v(14))
        d.salu("s_lshl_b32", s(25), s(21), 5)
        d.valu("v_lshl_add_u32", v(16), v(3), 1, v(15))
        d.vld(v(17), v(16), s(16, 4), s(25), op="buffer_load_ushort")
        d.valu("v_cmp_eq_u32", "vcc", 9, v(14))
        d.mov(v(18), 0x3f80)
        d.valu("v_cndmask_b32", v(17), v(17), v(18), "vcc")
        d.valu("v_lshl_or_b32", v(17), v(17), 16, v(17))
        for q in range(4): d.valu("v_and_b32", v(24 + q), v(17), v(20 + q))
        d.salu("s_lshl_b32", s(26), pexpr_sgpr, 10); d.salu("s_add_u32", s(26), s(26), s(22))
        d.vst(v(24, 4), v(7), s(12, 4), s(26), 0)
    one(s(20))
    d.raw("s_cmp_lg_u32 s20, 0\ns_cbranch_scc1 L_prep_end", "br", rd=[s(20)], wr=["scc"])
    d.salu("s_mov_b32", s(27), 4)
    one(s(27))
    d.raw("L_prep_end:", "label")
    d.raw("s_endpgm", "br")
    blocks["pd"] = d
    out = finalize(blocks, [("pe", {}), ("pw", {}), ("pe", {}), ("pd", {})], verbose=False)
    lines = []
    for n in ("pe", "pw", "pd"):
        lines += [i.text for i in out[n].ins]
    return lines

PREP_GRID = 120
PREP_LDS = 256
```

```python
from ir import *
from regs import *
from prep import WS_WO, WS_DW, TILE_B, dw_off, WS_USED
from fin import finalize

NPREP = 12
SRD_DBG = s(4, 4)
_pub = [0]
def publish(p, dword):
    p.raw("s_waitcnt vmcnt(0)\ns_barrier", "raw")
    _pub[0] += 1
    lab = f"L_pub{_pub[0]}"
    p.raw(f"s_cmp_lg_u32 s{sW.b}, 0\ns_cbranch_scc1 {lab}\nbuffer_wbl2 sc1\ns_waitcnt vmcnt(0)\n"
          f"v_mov_b32 v2, 1\nv_mov_b32 v3, {4*dword}\ns_mov_b64 exec, 1\nbuffer_atomic_add v2, v3, s[4:7], 0 offen sc1\ns_waitcnt vmcnt(0)\ns_mov_b64 exec, -1\n{lab}:", "raw")

def build_prep_blocks():
    B = {}
    SW = s(24, 4)
    import os
    p = Prog("pq")
    p.label("L_prep")
    if os.environ.get("PREPT"): p.raw("s_memtime s[90:91]\ns_waitcnt lgkmcnt(0)", "raw")
    p.salu("s_and_b32", s(30), S_WG, 3); p.salu("s_lshr_b32", s(31), S_WG, 2)
    p.salu("s_mov_b32", s(24), s(42)); p.salu("s_mov_b32", s(25), s(43)); p.salu("s_mov_b32", s(26), 384 * 2304); p.salu("s_mov_b32", s(27), 0x20000)
    p.salu("s_cmp_eq_u32", s(31), 0); p.salu("s_cselect_b32", s(32), 384, 0)
    p.salu("s_cmp_eq_u32", s(31), 2); p.salu("s_cselect_b32", s(32), 768, s(32))
    p.salu("s_mul_i32", s(33), s(30), 96); p.salu("s_add_u32", s(32), s(32), s(33)); p.salu("s_lshl_b32", s(32), s(32), 1)
    p.salu("s_mul_i32", s(33), s(30), 18); p.salu("s_mul_i32", s(34), s(31), 6); p.salu("s_add_u32", s(33), s(33), s(34))
    p.salu("s_mul_i32", s(35), sW, 18)
    p.salu("s_mov_b32", s(36), 5462); p.salu("s_mov_b32", s(37), 2304)
    for k in range(18):
        q, row, pc = v(4), v(5), v(6)
        p.salu("s_add_u32", s(38), s(35), k); p.salu("s_lshl_b32", s(39), s(38), 6)
        p.valu("v_add_u32", q, s(39), vTID)
        p.valu("v_mul_u32_u24", row, s(36), q); p.valu("v_lshrrev_b32", row, 16, row)
        p.valu("v_mul_u32_u24", pc, 12, row); p.valu("v_sub_u32", pc, q, pc)
        d = v(8 + k)
        p.valu("v_mul_u32_u24", d, s(37), row); p.valu("v_lshl_add_u32", d, pc, 4, d)
        p.salu("s_lshl_b32", "m0", s(38), 10)
        p.dma(d, SW, s(32), 0, res=[("pw", 0)])
    p.bar(wr=[("pw", 0)])
    B["pq"] = p
    def tile_body(name, wo):
        t = Prog(name)
        i_, g_ = v(4), v(5)
        t.valu("v_and_b32", i_, 15, vTID); t.valu("v_lshrrev_b32", g_, 4, vTID)
        b0, b1 = v(6), v(7)
        if not wo:
            t.valu("v_mul_u32_u24", b0, 768, g_)
            t.valu("v_lshl_add_u32", b0, i_, 1, b0)
            t.salu("s_lshl_b32", s(47), s(46), 5); t.valu("v_add_u32", b0, s(47), b0)
            t.valu("v_add_u32", b1, 49152, b0)
        else:
            t.valu("v_lshlrev_b32", b0, 9, g_)
            t.valu("v_lshl_add_u32", b0, i_, 3, b0)
            t.salu("s_lshl_b32", s(47), sW, 1); t.valu("v_add_u32", b0, s(47), b0)
        for kb in range(12):
            for j in range(8):
                if not wo:
                    row = 64 * (kb >> 1) + 2 * (kb & 1) + 16 * (j >> 1) + (j & 1)
                    base, off = (b0, row * 192) if row < 256 else (b1, (row - 256) * 192)
                else:
                    row = 32 * kb + 16 * (j >> 2) + (j & 3); base, off = b0, row * 128
                t.dsr(v(64 + kb * 8 + j), base, off, res=[("pw", 0)], op="ds_read_u16")
        for k in range(96): t.valu("v_lshlrev_b32", v(64 + k), 16, v(64 + k))
        if not wo:
            acc = v(30)
            t.valu("v_add_f32", acc, v(64), v(65))
            for k in range(2, 96): t.valu("v_add_f32", acc, acc, v(64 + k))
            t.mov(v(31), acc); t.swap16(acc, v(31)); t.valu("v_add_f32", acc, acc, v(31))
            t.mov(v(31), acc); t.swap32(acc, v(31)); t.valu("v_add_f32", acc, acc, v(31))
            t.valu("v_mul_f32", acc, 0x3b2aaaab, acc)
            for k in range(96): t.valu("v_sub_f32", v(64 + k), v(64 + k), acc)
        for kb in range(12):
            for q in range(4): t.cvtpk(v(160 + kb * 4 + q), v(64 + kb * 8 + 2 * q), v(64 + kb * 8 + 2 * q + 1))
        for kb in range(12):
            t.salu("s_add_u32", s(39), s(48), kb * 1024)
            t.vst(v(160 + kb * 4, 4), vL16, SRD_WS, s(39), 0)
        return t
    p = Prog("pq_a"); p.salu("s_mov_b32", s(46), sW)
    p.salu("s_add_u32", s(48), s(33), s(46)); p.salu("s_mul_i32", s(48), s(48), TILE_B)
    p.extend(tile_body("t", False)); B["pq_a"] = p
    p = Prog("pq_b")
    p.raw(f"s_cmp_ge_u32 s{sW.b}, 2\ns_cbranch_scc1 L_pq_done", "br", rd=[sW], wr=["scc"])
    p.salu("s_add_u32", s(46), sW, 4)
    p.salu("s_add_u32", s(48), s(33), s(46)); p.salu("s_mul_i32", s(48), s(48), TILE_B)
    p.extend(tile_body("t", False))
    p.label("L_pq_done")
    publish(p, 0)
    if os.environ.get("PREPT"):
        p.raw("s_memtime s[92:93]\ns_waitcnt lgkmcnt(0)\ns_sub_u32 s92, s92, s90\nv_mov_b32 v2, s92\ns_lshl_b32 s93, s2, 2\ns_add_u32 s93, s93, 32\nv_mov_b32 v3, s93\nbuffer_store_dword v2, v3, s[4:7], 0 offen\ns_waitcnt vmcnt(0)", "raw")
    p.raw("s_barrier\ns_cmp_ge_u32 s2, 6\ns_cbranch_scc1 L_prep_dw", "br", rd=[S_WG], wr=["scc"])
    B["pq_b"] = p
    p = Prog("pwo")
    p.salu("s_mov_b32", s(24), s(44)); p.salu("s_mov_b32", s(25), s(45)); p.salu("s_mov_b32", s(26), 384 * 768)
    p.salu("s_lshl_b32", s(32), S_WG, 7)
    p.salu("s_mul_i32", s(35), sW, 12)
    for k in range(12):
        q, row, pc = v(4), v(5), v(6)
        p.salu("s_add_u32", s(38), s(35), k); p.salu("s_lshl_b32", s(39), s(38), 6)
        p.valu("v_add_u32", q, s(39), vTID)
        p.valu("v_lshrrev_b32", row, 3, q); p.valu("v_and_b32", pc, 7, q)
        d = v(8 + k)
        p.valu("v_mul_u32_u24", d, 768, row); p.valu("v_lshl_add_u32", d, pc, 4, d)
        p.salu("s_lshl_b32", "m0", s(38), 10)
        p.dma(d, SW, s(32), 0, res=[("pw", 0)])
    p.bar(wr=[("pw", 0)])
    p.salu("s_lshl_b32", s(48), S_WG, 2); p.salu("s_add_u32", s(48), s(48), sW); p.salu("s_mul_i32", s(48), s(48), TILE_B); p.salu("s_add_u32", s(48), s(48), WS_WO)
    p.extend(tile_body("t", True))
    publish(p, 1)
    p.raw("s_endpgm", "br")
    B["pwo"] = p
    d = Prog("pdw")
    d.label("L_prep_dw")
    d.salu("s_mov_b32", s(24), s(40)); d.salu("s_mov_b32", s(25), s(41)); d.salu("s_mov_b32", s(26), 9 * 768)
    d.salu("s_sub_u32", s(21), S_WG, 6); d.salu("s_lshl_b32", s(21), s(21), 2); d.salu("s_add_u32", s(21), s(21), sW)
    d.salu("s_mul_i32", s(22), s(21), 3072); d.salu("s_add_u32", s(22), s(22), WS_DW)
    i_, g_ = v(3), v(4)
    d.valu("v_and_b32", i_, 15, vTID); d.valu("v_lshrrev_b32", g_, 4, vTID)
    dw_masks(d, i_, g_, [v(20 + q) for q in range(4)], [v(8), v(9), v(10), v(11), v(12)])
    sp_masks(d, i_, [v(44 + q) for q in range(4)], v(8))
    d.salu("s_lshl_b32", s(31), s(21), 5)
    for sx in range(2):
        d.valu("v_add_u32", v(14), 4 * sx, g_)
        d.valu("v_mul_u32_u24", v(15), 768, v(14)); d.valu("v_lshl_add_u32", v(16), i_, 1, v(15))
        d.vld(v(17), v(16), SW, s(31), op="buffer_load_ushort")
        for q in range(4): d.valu("v_and_b32", v(24 + 4 * sx + q), v(17), v(44 + q))
        d.salu("s_add_u32", s(32), s(22), sx * 1024)
        d.vst(v(24 + 4 * sx, 4), vL16, SRD_WS, s(32), 0)
    d.valu("v_lshrrev_b32", v(13), 1, g_)
    d.valu("v_add_u32", v(14), 8, v(13))
    d.valu("v_mul_u32_u24", v(15), 768, v(14)); d.valu("v_lshl_add_u32", v(16), i_, 1, v(15))
    d.vld(v(17), v(16), SW, s(31), op="buffer_load_ushort")
    d.valu("v_cmp_eq_u32", "vcc", 9, v(14)); d.mov(v(18), 0x3f80)
    d.valu("v_cndmask_b32", v(17), v(17), v(18), "vcc")
    d.valu("v_lshl_or_b32", v(17), v(17), 16, v(17))
    for q in range(4): d.valu("v_and_b32", v(32 + q), v(17), v(20 + q))
    d.salu("s_add_u32", s(32), s(22), 2048)
    d.vst(v(32, 4), vL16, SRD_WS, s(32), 0)
    publish(d, 1)
    d.raw("s_endpgm", "br")
    B["pdw"] = d
    order = ["pq", "pq_a", "pq_b", "pwo", "pdw"]
    F = finalize(B, [("pq", {}), ("pq_a", {}), ("pq_b", {}), ("pwo", {}), ("pq", {}), ("pq_a", {}), ("pq_b", {}), ("pdw", {})], verbose=False)
    lines = []
    for n in order:
        for i in F[n].ins: lines += i.text.split("\n")
    return lines

def dw_masks(p, i_, g_, M, T):
    p.valu("v_and_b32", T[0], 1, g_); p.valu("v_lshrrev_b32", T[1], 3, i_)
    p.valu("v_cmp_eq_u32", "vcc", T[0], T[1])
    p.valu("v_and_b32", T[2], 1, i_); p.valu("v_lshlrev_b32", T[2], 4, T[2])
    p.mov(T[3], 0xffff); p.valu("v_lshlrev_b32", T[3], T[2], T[3])
    p.valu("v_cndmask_b32", T[3], 0, T[3], "vcc")
    p.valu("v_bfe_u32", T[4], i_, 1, 2)
    for q in range(4):
        p.valu("v_cmp_eq_u32", "vcc", q, T[4])
        p.valu("v_cndmask_b32", M[q], 0, T[3], "vcc")

def sp_masks(p, i_, M, t):
    p.valu("v_lshrrev_b32", t, 2, i_)
    for q in range(4):
        p.valu("v_cmp_eq_u32", "vcc", q, t)
        p.mov(M[q], 0xffff); p.valu("v_cndmask_b32", M[q], 0, M[q], "vcc")

def sp_index(p, d, t):
    p.valu("v_and_b32", d, 3, vTID); p.valu("v_xor_b32", t, 1, d); p.valu("v_lshl_or_b32", d, t, 2, d)
    p.valu("v_mul_u32_u24", d, 0x1111, d)
```

```python
from ir import *

RING = 0; SLOT = 24576
STOK = 2320
LDS_TOTAL = 163840
STASH = LDS_TOTAL - 12 * STOK
PARK = 98304
DSL = [73728, 73728 + 6144]
XSB = 86016
def xslot(j): return (j % 3) * 16384
PXS = [16384 * i for i in range(4)]
TBL = 65536
EST = 73728
ESTQ = 16 * 800 + 64

S_KARG = s(0, 2); S_WG = s(2)
SRD_X = s(8, 4); SRD_WS = s(12, 4); SRD_OUT = s(16, 4)
sW = s(20); sRound = s(21)
sW6 = s(23); sSrc = s(24); sSrc2 = s(25)
sS0 = s(27); sSl = [s(28), s(29), s(30), s(31)]
sC = s(32); sY0 = s(33); sX0 = s(34); sSR3 = s(35); sQX = s(36)
sT = [s(37 + i) for i in range(12)]
sM1 = s(50, 2); sM2 = s(52, 2); sM3 = s(54, 2)
sEx = s(56, 2); sEx0 = s(58, 2)
sXS = s(60); sNegC = s(61); sWG = s(63)
sEoff = [s(66 + j) for j in range(5)]
sH192 = s(71); sW1 = s(72); sWY7 = s(73); sWX7 = s(74)
sI384 = s(75); sEps = s(76)
sTab = s(77)
sY0n = s(78)
sPf = s(79)
sW8 = s(80)
sPfB = s(87)
sRB = s(22)
sSkip1 = s(26)
sU = [s(81 + i) for i in range(6)]

def X(kb, t): return a(kb * 12 + t * 4, 4)
E0 = 144
def XE(kb): return a(E0 + kb * 4, 4)
def OH0(kb, t): return a(E0 + (kb * 3 + t) * 4, 4)
O1B = 192
def OH1(kb, t): return a(O1B + (kb * 3 + t) * 4, 4)
WRB = 228; NWR = 6
def WR(i): return a(WRB + (i % NWR) * 4, 4)
aDUM = [a(252), a(253), a(254), a(255)]

vTID = v(0); vL16 = v(1)
vWB = [v(2), v(3), v(4)]
RC = [v(5), v(6), v(7)]
def RK(t, r): return v(8 + t * 4 + r)
vSQ = v(20); vSV = v(21); vSW = v(22); vGM = v(23); RCE = v(24); vXB = v(25)
TMP = [v(26 + i) for i in range(10)]
ACC = [[v(36 + st * 12 + t * 4, 4) for t in range(3)] for st in range(2)]
ACCE = v(60, 4)
OH2B = 64
def OH2(kb, t): return v(OH2B + (kb * 3 + t) * 4, 4)
RKB = 100
def Kf(t, s3): return v(RKB + (t * 3 + s3) * 4, 4)
def Vf(a_, u): return v(RKB + a_ * 8 + u * 4, 4)
RQB = 148
def Qf(t, s3): return v(RQB + (t * 3 + s3) * 4, 4)
def Pf(qt, u): return v(RQB + qt * 8 + u * 4, 4)
RSB = 184
def Sf(kt, qt): return v(RSB + (qt * 4 + kt) * 4, 4)
def KE(s3): return Sf(s3, 0)
def QE(s3): return Sf(s3, 1)
OACC = [[v(RSB + 48 + i * 4, 4) for i in range(4)] + [v(RSB + i * 4, 4) for i in range(2)],
        [v(RSB + 8 + i * 4, 4) for i in range(2)] + [v(RSB + 16 + i * 4, 4) for i in range(4)]]
LINV = [v(248 + i) for i in range(4)]
def OH3(kb, t):
    if kb < 2: return v(RQB + t * 8 + kb * 4, 4)
    return [v(RQB + 32, 4), v(252, 4), v(RQB + 24, 4)][t]
def OH(h, kb, t): return [OH0, OH1, OH2, OH3][h](kb, t)

SEL = [v(RSB + 32, 4), v(RSB + 36, 4)]
vOUT = [[v(RSB + 40 + t * 4 + r) if t < 2 else v(60 + r) for r in range(4)] for t in range(3)]
ACC3 = ACC + [[v(100 + t * 4, 4) for t in range(3)]]
_PKB = [208, 210, 244, 246, 248, 250, 24, 26, 28, 30, 32, 204]
def PK(t, r): return v(_PKB[t * 4 + r], 2)
DWA = v(112, 16)
def DWADDR(t, pp): return DWA[t * 5 + pp]
DA = [v(128 + i * 4, 4) for i in range(3)]
DB8 = [v(184, 8), v(192, 8), v(140, 8)]; DB4 = [v(200, 4)]
vIDX = v(19)
DACC = [v(232 + t * 4, 4) for t in range(3)]
XVO = [v(8 + i) for i in range(4)]
DT = [v(212 + i) for i in range(4)]
SUMV = [v(12), v(13), v(14)]; SSQ = [v(15), v(16), v(17)]
vDAb = v(18)
```

```python
import sys, os
from kv2b import *
from sched import schedule
from fin import finalize
from emit import *

def glue(name, text, kind="br", rd=(), wr=()):
    p = Prog(name); p.raw(text, kind, rd=rd, wr=list(wr) + ["scc"]); return p

def waitblk(name, lg=None, vm=None):
    from fin import wait_text
    p = Prog(name); w = I(wait_text(lg, vm), "wait"); w.need = (lg, vm); p.ins.append(w); return p

DUMP_REG = 16 << 20
DUMP_LDS = 160 << 20
def dump_lines():
    L = ["s_waitcnt vmcnt(0) lgkmcnt(0)", "s_nop 15", "s_nop 15", "s_barrier"]
    L += ["s_load_dwordx2 s[80:81], s[0:1], 48", "s_waitcnt lgkmcnt(0)", "s_mov_b32 s84, s80", "s_mov_b32 s85, s81", "s_mov_b32 s86, 0x1a000000", "s_mov_b32 s87, 0x20000"]
    L += ["s_lshl_b32 s88, s2, 2", f"s_add_u32 s88, s88, s{sW.b}", "s_lshl_b32 s88, s88, 17", f"s_add_u32 s88, s88, {DUMP_REG}"]
    L += ["v_accvgpr_write_b32 a255, v1", "v_accvgpr_write_b32 a254, v0", "s_nop 4", "v_lshrrev_b32 v1, 2, v1", "s_nop 4"]
    for r in range(512):
        if r < 256:
            if r == 1: continue
            L += [f"s_add_u32 s89, s88, {r*256}", f"buffer_store_dword v{r}, v1, s[84:87], s89 offen"]
        else:
            L += [f"v_accvgpr_read_b32 v0, a{r-256}", f"s_add_u32 s89, s88, {r*256}", "s_nop 1", "buffer_store_dword v0, v1, s[84:87], s89 offen", "s_waitcnt vmcnt(0)"]
        if r % 32 == 31: L.append("s_waitcnt vmcnt(0)")
    L += ["s_waitcnt vmcnt(0)", f"s_mul_i32 s88, s2, 163840", f"s_add_u32 s88, s88, {DUMP_LDS}", f"s_mul_i32 s90, s{sW.b}, 40960", "s_add_u32 s88, s88, s90",
          "v_lshlrev_b32 v1, 2, v1", "v_add_u32 v2, s90, v1"]
    for k in range(40):
        L += [f"ds_read_b128 v[4:7], v2 offset:{k*1024}", "s_waitcnt lgkmcnt(0)", f"s_add_u32 s89, s88, {k*1024}", "buffer_store_dwordx4 v[4:7], v1, s[84:87], s89 offen", "s_waitcnt vmcnt(0)"]
    L += ["s_endpgm"]
    return L

STAMP_LDS = 135168
STAMP_WS = 8 << 20
def stamp_blk(name):
    p = Prog(name)
    p.raw("s_memtime s[90:91]", "raw", wr=[s(90, 2)])
    w = I("s_waitcnt lgkmcnt(0)", "wait"); w.need = (0, None); p.ins.append(w)
    p.mov(TMP[0], s(90)); p.mov(TMP[1], s(92))
    p.dsw(TMP[1], TMP[0], 0)
    p.salu("s_add_u32", s(92), s(92), 4)
    return p
def fine_dump(name, vreg, n):
    p = Prog(name)
    w = I("s_waitcnt lgkmcnt(0)", "wait"); w.need = (0, None); p.ins.append(w)
    p.raw(f"v_writelane_b32 v{vreg}, s88, {n}\ns_memtime s[88:89]\ns_waitcnt lgkmcnt(0)\nv_writelane_b32 v{vreg}, s88, {n+1}", "valu")
    p.salu("s_mul_i32", s(93), sW, 208); p.salu("s_add_u32", s(93), s(93), STAMP_LDS + 4 * 30)
    p.valu("v_lshlrev_b32", TMP[0], 2, vTID); p.valu("v_add_u32", TMP[0], s(93), TMP[0])
    p.raw(f"v_cmp_gt_u32 vcc, {n+2}, v0\ns_and_saveexec_b64 s[94:95], vcc\nds_write_b32 v{TMP[0].b}, v{vreg}\ns_mov_b64 exec, s[94:95]\ns_waitcnt lgkmcnt(0)", "valu")
    return p
def stamp_init():
    p = Prog("st_init")
    p.salu("s_mul_i32", s(92), sW, 208); p.salu("s_add_u32", s(92), s(92), STAMP_LDS)
    p.raw("s_memrealtime s[64:65]\ns_waitcnt lgkmcnt(0)", "salu", wr=[s(64, 2)])
    return p
def stamp_dump():
    L = ["s_waitcnt vmcnt(0) lgkmcnt(0)", "s_memrealtime s[90:91]", "s_waitcnt lgkmcnt(0)", "s_sub_u32 s90, s90, s64",
         f"s_mul_i32 s93, s{sW.b}, 208", f"s_add_u32 s93, s93, {STAMP_LDS + 4 * 51}", "v_mov_b32 v2, s90", "v_mov_b32 v3, s93", "ds_write_b32 v3, v2", "s_waitcnt lgkmcnt(0)",
         "s_barrier", "s_load_dwordx2 s[80:81], s[0:1], 48", "s_waitcnt lgkmcnt(0)",
         "s_mov_b32 s84, s80", "s_mov_b32 s85, s81", "s_mov_b32 s86, 0x1a000000", "s_mov_b32 s87, 0x20000",
         "v_lshlrev_b32 v2, 2, v0", f"v_add_u32 v3, {STAMP_LDS}, v2", f"s_mul_i32 s88, s{sW.b}, 208", "v_add_u32 v3, s88, v3",
         "ds_read_b32 v4, v3", "s_lshl_b32 s89, s2, 10", f"s_lshl_b32 s88, s{sW.b}, 8", "s_add_u32 s89, s89, s88", f"s_add_u32 s89, s89, {STAMP_WS}",
         "s_waitcnt lgkmcnt(0)", "v_cmp_gt_u32 vcc, 52, v0", "s_and_saveexec_b64 s[94:95], vcc", "buffer_store_dword v4, v2, s[84:87], s89 offen", "s_waitcnt vmcnt(0)"]
    return L

def build(do_sched=True, stop_after=None, verbose=True, dump=None, stamps=False):
    B = {}
    B["entry"], B["entry2"] = blk_entry()
    B["pro"], B["pro_b"] = blk_pro()
    B["parkxe"] = blk_park_xe()
    B["chk0"] = flag_check("chk0", vFLAG, 0, NPREP)
    B["chk1"] = flag_check("chk1", v(255), 1, NPREP)
    for r0 in (True, False):
        for hp in (None, 0, 1, 2):
            b = blk_b1(hp, r0); B[b.name] = b
        b = blk_b2(r0); B[b.name] = b
    B["outx"] = blk_out(True, False); B["out"] = blk_out(False, False); B["outl"] = blk_out(False, True)
    global FINEINFO
    FINEINFO = {n: b.fine for n, b in B.items() if getattr(b, "fine", None)}
    if do_sched:
        for n in list(B):
            if n in ("entry", "entry2", "chk0", "chk1", "parkxe"): continue
            B[n] = schedule(B[n], verbose=verbose)
    order = []
    G = {}
    def g(name, text, **kw): G[name] = glue(name, text, **kw); order.append(name)
    def lab(n): G["lab_" + n] = Prog("lab_" + n); G["lab_" + n].label("L_" + n); order.append("lab_" + n)
    order += ["entry", "PREP", "entry2"]; lab("pro"); order += ["pro", "chk0", "pro_b", "parkxe"]
    seq0 = ["b1x_a", "B2X", "b1x_0", "B2X", "b1x_1", "B2X", "b1x_2", "B2X"]
    def heads(x):
        sfx = "x" if x else ""
        names = [f"b1{sfx}_a", f"b1{sfx}_0", f"b1{sfx}_1", f"b1{sfx}_2"]
        L = f"L_b2{sfx}"
        for k, nm in enumerate(names):
            G[f"lab_{nm}"] = Prog(f"lab_{nm}"); G[f"lab_{nm}"].label(f"L_{nm}"); order.append(f"lab_{nm}")
            order.append(nm)
            if x and k == 2: order.append("chk1")
            if k < 3: g(f"j_{nm}", f"s_branch {L}")
        G[f"lab_b2{sfx}"] = Prog(f"lab_b2{sfx}"); G[f"lab_b2{sfx}"].label(L); order.append(f"lab_b2{sfx}")
        order.append(f"b2{sfx}")
        g(f"ret_b2{sfx}", f"s_cmp_eq_u32 s{sH192.b}, 0\ns_cbranch_scc1 L_{names[1]}\ns_cmp_eq_u32 s{sH192.b}, 192\ns_cbranch_scc1 L_{names[2]}\ns_cmp_eq_u32 s{sH192.b}, 384\ns_cbranch_scc1 L_{names[3]}", rd=[sH192])
        return names
    n0 = heads(True)
    lab("outx"); order += ["outx"]
    G["lab_round"] = Prog("lab_round"); G["lab_round"].label("L_round"); order.append("lab_round")
    n1 = heads(False)
    g("sel_out", f"s_cmp_eq_u32 s{sRound.b}, 2\ns_cbranch_scc1 L_outl", rd=[sRound])
    lab("out"); order += ["out"]
    g("back", "s_branch L_round")
    G["lab_outl"] = Prog("lab_outl"); G["lab_outl"].label("L_outl"); order.append("lab_outl")
    order += ["outl"]
    G["fin"] = Prog("fin"); G["fin"].label("L_end"); G["fin"].raw("s_endpgm\nL_codeend:\ns_endpgm", "br"); order.append("fin")
    B.update(G)
    real = lambda n: n in ("pro_b",) or n.startswith("b1") or n.startswith("b2") or n.startswith("out")
    if stamps:
        B["st_init"] = stamp_init()
        o2 = []
        for n in order:
            if n == "pro": o2 += ["st_init", "st_0"]; B["st_0"] = stamp_blk("st_0")
            o2.append(n)
            if real(n):
                if os.environ.get("FINE") == n.replace("pro_b", "pro"):
                    B["fd_" + n] = fine_dump("fd_" + n, FINEINFO[n][0], FINEINFO[n][1]); o2.append("fd_" + n)
                B["st_" + n] = stamp_blk("st_" + n); o2.append("st_" + n)
        order = o2
    def tr_heads(x, names):
        sfx = "x" if x else ""
        t = []
        for h in range(4):
            env = {"ch": 9 * h, "fr": 9 * h}
            t += [(f"lab_{names[h]}", {}), (names[h], env)]
            if x and h == 2: t += [("chk1", {})]
            if h < 3: t += [(f"j_{names[h]}", {})]
            t += [(f"lab_b2{sfx}", {}), (f"b2{sfx}", env), (f"ret_b2{sfx}", {})]
        return t
    RB = 136
    tr = [("entry", {}), ("entry2", {}), ("pro", {"ch": 0, "fr": 0}), ("chk0", {}), ("pro_b", {"ch": 0, "fr": 0}), ("parkxe", {})] + tr_heads(True, n0) + [("outx", {"ch": 36, "fr": 36, "xb": 20, "xfr": 20, "dw": 20, "dfr": 20})]
    for r in (1, 2):
        off = RB * r
        def sh(t): return [(n, dict({k: vv + off for k, vv in e.items()}, **({"xb": 20 * r, "dw": 20 * r} if e else {}))) for n, e in t]
        tr += [("lab_round", {})] + sh(tr_heads(False, n1)) + [("sel_out", {})]
        if r == 1: tr += [("out", {"ch": 36 + off, "fr": 36 + off, "xb": 40, "xfr": 40, "dw": 40, "dfr": 40}), ("back", {})]
        else: tr += [("lab_outl", {}), ("outl", {"ch": 36 + off, "fr": 36 + off})]
    tr += [("fin", {})]
    if stamps:
        t2 = []
        for (n, e) in tr:
            if n == "pro": t2 += [("st_init", {}), ("st_0", {})]
            t2.append((n, e))
            if real(n):
                if os.environ.get("FINE") == n.replace("pro_b", "pro"): t2.append(("fd_" + n, {}))
                t2.append(("st_" + n, {}))
        tr = t2
        print("TRACE", ",".join(n for n, e in tr if real(n)))
    if stop_after is not None:
        lin = []; cnt = 0
        for (n, e) in tr:
            if n.startswith("lab_") or n.startswith("j_") or n.startswith("ret_") or n in ("sel_out", "back", "fin"): continue
            lin.append((n, e))
            if n not in ("entry", "entry2", "pro", "chk0", "chk1", "parkxe"):
                cnt += 1
                if cnt == stop_after: break
        print("debug trace:", [n for n, e in lin])
        F = finalize(B, lin, verbose=False)
        lines = []
        from prep2 import build_prep_blocks
        for (n, e) in lin:
            for i in F[n].ins: lines += i.text.split("\n")
            if n == "entry": lines += build_prep_blocks()
        lines += dump_lines()
        return lines
    F = finalize(B, tr, verbose=verbose)
    lines = []
    from prep2 import build_prep_blocks
    for n in order:
        if n == "PREP":
            lines += build_prep_blocks(); continue
        if stamps and n == "fin":
            lines += ["L_end:"] + stamp_dump() + ["s_endpgm", "L_codeend:", "s_endpgm"]; continue
        for i in F[n].ins:
            if i.text: lines += i.text.split("\n")
    return lines

if __name__ == "__main__":
    do_sched = "-n" not in sys.argv
    out = [a for a in sys.argv[1:] if not a.startswith("-")]
    stop = None
    for a_ in sys.argv[1:]:
        if a_.startswith("-s"): stop = int(a_[2:])
    lines = build(do_sched, stop_after=stop, verbose="-q" not in sys.argv, stamps="-t" in sys.argv)
    macros, lines = compact(lines)
    km = kernel_text("standalone__window_attn_davit__vision_kernel", lines, 512, 256)
    txt = single_file_text(NWG, 256, LDS_TOTAL, [km], macros)
    open(out[0] if out else "k.s", "w").write(txt)
    print("lines", len(lines), "bytes", len(txt))
```

```python
from ir import *
from regs import *
from prep import WS_WO, WS_DW, WS_END, WS_XS, WS_TAB, WS_USED, TILE_B, dw_off
import math, os, struct

XBYTES = 378 * 378 * 768
ROWB = 378 * 768
OOB = 0x80000000
C_LOG2 = math.log2(math.e) / math.sqrt(96.0)
def f2u(x): return struct.unpack("<I", struct.pack("<f", x))[0]
NPRE = 4
XMOD = os.environ.get("XMOD", "_nt").replace("_", " ")
XMOD2 = os.environ.get("XMOD2", "").replace("_", " ")
TAGK = int(os.environ.get("TAGK", "7"))

def ex_bundle(p, mask, fn, kind, rd, wr, cost):
    q = Prog("tmp"); fn(q)
    txt = f"s_mov_b64 exec, {mask}\n" + "\n".join(i.text for i in q.ins) + "\ns_mov_b64 exec, -1"
    rds = [r for i in q.ins for r in i.rd] + mask.regs(); wrs = [r for i in q.ins for r in i.wr]
    return p.add(I(txt, kind, rds + list(rd), wrs + list(wr), cost=cost))

_cp = [0]
def code_touch(p, lab_from, lab_to, T, dst, sel=None, prio=0):
    if os.environ.get("NOCODE"): return
    _cp[0] += 1
    L = f"L_cp{_cp[0]}"
    A = v(T[0].b, 2); t = T[2]
    s96, s97, s98, s99, s100, s101 = [s(96 + i) for i in range(6)]
    p.add(I(f"s_getpc_b64 s[96:97]\n{L}:", "salu", [], [s(96, 2)], prio=prio))
    p.add(I(f"s_mov_b32 s98, {lab_from}-{L}", "salu", [], [s98], prio=prio))
    p.add(I(f"s_mov_b32 s99, {lab_to}-{lab_from}", "salu", [], [s99], prio=prio))
    if sel is not None:
        sr, val, f2, t2 = sel
        p.add(I(f"s_mov_b32 s100, {f2}-{L}", "salu", [], [s100], prio=prio))
        p.add(I(f"s_mov_b32 s101, {t2}-{f2}", "salu", [], [s101], prio=prio))
        p.salu("s_cmp_eq_u32", sr, val, prio=prio); p.salu("s_cselect_b32", s98, s100, s98, prio=prio); p.salu("s_cselect_b32", s99, s101, s99, prio=prio)
    p.salu("s_ashr_i32", s100, s98, 31, scc_w=True, prio=prio)
    p.salu("s_add_u32", s96, s96, s98, prio=prio); p.salu("s_addc_u32", s97, s97, s100, prio=prio)
    p.salu("s_lshr_b32", s100, S_WG, 3, prio=prio); p.salu("s_and_b32", s100, s100, 31, prio=prio); p.salu("s_lshl_b32", s100, s100, 13, prio=prio)
    p.salu("s_add_u32", s101, s99, 8191, prio=prio); p.salu("s_and_b32", s101, s101, 0xffffe000, prio=prio)
    for sh in (3, 2, 1, 0):
        p.salu("s_lshl_b32", s98, s101, sh, prio=prio); p.salu("s_cmp_ge_u32", s100, s98, prio=prio)
        p.salu("s_cselect_b32", s98, s98, 0, prio=prio); p.salu("s_sub_u32", s100, s100, s98, prio=prio)
    p.salu("s_sub_u32", s99, s99, 4, prio=prio)
    p.valu("v_lshlrev_b32", t, 7, vTID, prio=prio); p.valu("v_add_u32", t, s100, t, prio=prio); p.valu("v_min_u32", t, s99, t, prio=prio)
    p.add(I(f"v_add_co_u32 {A[0]}, vcc, s96, {t}", "valu", [s96, t], [A[0], "vcc"], prio=prio))
    p.mov(A[1], s97, prio=prio)
    p.add(I(f"v_addc_co_u32 {A[1]}, vcc, 0, {A[1]}, vcc", "valu", [A[1], "vcc"], [A[1], "vcc"], prio=prio))
    p.add(I(f"global_load_dword {dst}, {A}, off", "vld", [A], [dst], cost=8, prio=prio))

SRD_DBG = s(4, 4); SRD_DW = s(96, 4)
NPREP = 12; NWG = NPREP + 243
def blk_entry():
    p = Prog("entry")
    p.raw(f"s_cmp_lt_u32 s2, {NWG}\ns_cbranch_scc1 L_go\ns_endpgm\nL_go:", "br", rd=[s(2)], wr=["scc"])
    p.raw("s_load_dwordx2 s[4:5], s[0:1], 40\ns_load_dwordx2 s[6:7], s[0:1], 32\ns_load_dwordx2 s[38:39], s[0:1], 48\n"
          "s_load_dwordx4 s[40:43], s[0:1], 8\ns_load_dwordx2 s[44:45], s[0:1], 24\ns_load_dwordx2 s[46:47], s[0:1], 0\ns_waitcnt lgkmcnt(0)",
          "salu", wr=[s(4, 2), s(6, 2), s(38, 2), s(40, 4), s(44, 2), s(46, 2)])
    for dst, src, n in ((8, 46, XBYTES), (16, 6, XBYTES), (12, 38, WS_USED)):
        p.salu("s_mov_b32", s(dst), s(src)); p.salu("s_mov_b32", s(dst + 1), s(src + 1))
        p.salu("s_mov_b32", s(dst + 2), n); p.salu("s_mov_b32", s(dst + 3), 0x20000)
    p.salu("s_mov_b32", s(6), 256); p.salu("s_mov_b32", s(7), 0x20000)
    p.valu("v_lshrrev_b32", TMP[0], 6, vTID)
    p.valu("v_and_b32", vTID, 63, vTID)
    p.valu("v_readfirstlane_b32", sW, TMP[0])
    p.valu("v_lshlrev_b32", vL16, 4, vTID)
    p.raw(f"s_cmp_ge_u32 s2, {NPREP}\ns_cbranch_scc1 L_main", "br", rd=[s(2)], wr=["scc"])
    p1 = p; p = Prog("entry2"); p.label("L_main")
    p.salu("s_mov_b32", s(96), s(40)); p.salu("s_mov_b32", s(97), s(41)); p.salu("s_mov_b32", s(98), 9 * 768); p.salu("s_mov_b32", s(99), 0x20000)
    p.salu("s_and_b32", sT[11], S_WG, 7)
    p.salu("s_lshr_b32", s(49), S_WG, 3)
    p.salu("s_cmp_lt_u32", sT[11], 4); p.salu("s_cselect_b32", s(62), 2, 1); p.salu("s_sub_u32", s(49), s(49), s(62))
    p.salu("s_mul_i32", s(62), sT[11], 30); p.salu("s_add_u32", s(49), s(49), s(62))
    p.salu("s_max_u32", s(62), sT[11], 4); p.salu("s_sub_u32", s(62), s(62), 4); p.salu("s_add_u32", sWG, s(49), s(62))
    p.salu("s_mul_i32", sT[0], sWG, 2428); p.salu("s_lshr_b32", sT[0], sT[0], 16)
    p.salu("s_mul_i32", sT[1], sT[0], 27); p.salu("s_sub_u32", sQX, sWG, sT[1])
    p.salu("s_mul_i32", sSR3, sT[0], 3); p.salu("s_mul_i32", sX0, sQX, 14)
    p.salu("s_mul_i32", sW6, sW, 6144); p.salu("s_lshl_b32", sW4k, sW, 12)
    p.salu("s_mov_b32", sC, f2u(C_LOG2)); p.salu("s_mov_b32", sNegC, f2u(-C_LOG2))
    p.salu("s_mov_b32", sI384, f2u(1.0 / 384)); p.salu("s_mov_b32", sEps, f2u(1e-5))
    p.salu("s_mov_b32", sRound, 0)
    p.salu("s_lshl_b32", sXS, sWG, 2); p.salu("s_add_u32", sXS, sXS, sW); p.salu("s_mul_i32", sXS, sXS, 6144); p.salu("s_add_u32", sXS, sXS, WS_XS)
    p.salu("s_lshl_b32", sT[0], sWG, 2); p.salu("s_add_u32", sT[0], sT[0], sW); p.salu("s_lshl_b32", sT[0], sT[0], 13); p.salu("s_add_u32", sTab, sT[0], WS_TAB)
    p.salu("s_and_b32", sT[1], sW, 1); p.salu("s_mul_i32", sW1, sT[1], 12288); p.salu("s_mul_i32", sWX7, sT[1], 7)
    p.salu("s_lshr_b32", sT[1], sW, 1); p.salu("s_mul_i32", sWY7, sT[1], 7)
    p.salu("s_mov_b32", sSkip1, 49)
    for w, val in ((1, 43), (2, 7), (3, 1)):
        p.salu("s_cmp_eq_u32", sW, w); p.salu("s_cselect_b32", sSkip1, val, sSkip1)
    n_ = TMP[1]; g_ = TMP[2]
    p.valu("v_and_b32", n_, 15, vTID); p.valu("v_lshrrev_b32", g_, 4, vTID)
    p.valu("v_and_b32", TMP[3], 3, n_)
    p.valu("v_cmp_eq_u32", sM1, 1, TMP[3]); p.valu("v_cmp_eq_u32", sM2, 2, TMP[3]); p.valu("v_cmp_eq_u32", sM3, 3, TMP[3])
    p.valu("v_cmp_gt_u32", sEx, 12, n_); p.valu("v_cmp_eq_u32", sEx0, 0, n_)
    p.valu("v_cmp_eq_u32", "vcc", 0, g_)
    p.valu("v_cndmask_b32", vGM, 0, 1.0, "vcc")
    p.valu("v_mul_u32_u24", vSW, STOK, n_); p.valu("v_lshl_add_u32", vSW, g_, 4, vSW); p.valu("v_add_u32", vSW, STASH, vSW)
    for j in range(5):
        vals = []
        for w in range(4):
            u = 4 * j + w if j < 4 else 16 + (w & 1)
            ty, a_ = divmod(u, 6)
            vals.append([768, 0, 1536][ty] + (a_ >> 1) * 64 + (a_ & 1) * 8)
        d = sEoff[j]
        p.salu("s_mov_b32", d, vals[0])
        for w in range(1, 4):
            p.salu("s_cmp_eq_u32", sW, w); p.salu("s_cselect_b32", d, vals[w], d)
    return p1, p

def round_setup(p, next_round):
    if next_round: p.salu("s_add_u32", sRound, sRound, 1)
    p.salu("s_add_u32", sT[0], sSR3, sRound); p.salu("s_mul_i32", sY0, sT[0], 14)
    p.salu("s_lshl_b32", sT[2], sRound, 2); p.salu("s_add_u32", sT[2], sT[2], sW)
    p.salu("s_mul_i32", sT[2], sT[2], STOK); p.salu("s_add_u32", sT[2], sT[2], STASH)
    n_ = TMP[1]; g_ = TMP[2]
    p.valu("v_and_b32", n_, 15, vTID); p.valu("v_lshrrev_b32", g_, 4, vTID)
    p.valu("v_lshlrev_b32", vSQ, 4, g_); p.valu("v_add_u32", vSQ, sT[2], vSQ)
    p.valu("v_lshrrev_b32", TMP[3], 2, n_); p.valu("v_lshlrev_b32", TMP[3], 4, TMP[3])
    p.valu("v_and_b32", TMP[4], 3, n_); p.valu("v_lshl_add_u32", TMP[3], TMP[4], 1, TMP[3])
    p.salu("s_add_u32", sT[2], sT[2], 1536)
    p.valu("v_add_u32", vSV, sT[2], TMP[3])

def tap_dydx(tap):
    if tap == 9: tap = 4
    return tap // 3 - 1, tap % 3 - 1

def gen_dw_addrs(p, dst, T):
    n_, g_, hi, b16, R0, C0, tR, tC, tL, tq = T
    p.valu("v_and_b32", n_, 15, vTID); p.valu("v_lshrrev_b32", g_, 4, vTID)
    p.valu("v_lshrrev_b32", hi, 1, g_)
    p.valu("v_and_b32", b16, 1, g_); p.valu("v_lshlrev_b32", b16, 4, b16)
    p.valu("v_cmp_eq_u32", "vcc", 1, hi)
    for t in range(3):
        p.valu("v_add_u32", tq, 16 * t + 1, n_)
        p.valu("v_subrev_u32", R0, sSkip1, tq); p.valu("v_lshrrev_b32", R0, 31, R0); p.valu("v_sub_u32", tq, tq, R0)
        p.valu("v_mul_u32_u24", R0, 37, tq); p.valu("v_lshrrev_b32", R0, 8, R0)
        p.valu("v_mul_u32_u24", C0, 7, R0); p.valu("v_sub_u32", C0, tq, C0)
        p.salu("s_add_u32", sT[0], sWY7, 1); p.salu("s_add_u32", sT[1], sWX7, 1)
        p.valu("v_add_u32", R0, sT[0], R0); p.valu("v_add_u32", C0, sT[1], C0)
        for pp in range(5):
            dy0, dx0 = tap_dydx(2 * pp); dy1, dx1 = tap_dydx(2 * pp + 1)
            p.mov(tR, dy0); p.mov(tq, dy1); p.valu("v_cndmask_b32", tR, tR, tq, "vcc"); p.valu("v_add_u32", tR, tR, R0)
            p.mov(tC, dx0); p.mov(tq, dx1); p.valu("v_cndmask_b32", tC, tC, tq, "vcc"); p.valu("v_add_u32", tC, tC, C0)
            p.valu("v_mul_u32_u24", tL, 7, tR); p.valu("v_add_u32", tL, tL, tC); p.valu("v_and_b32", tL, 7, tL)
            d = dst(t, pp)
            p.valu("v_lshlrev_b32", d, 10, tR)
            p.valu("v_lshl_add_u32", d, tL, 5, d)
            p.valu("v_lshrrev_b32", tC, 3, tC)
            p.valu("v_lshl_add_u32", d, tC, 8, d)
            p.valu("v_add_u32", d, d, b16)

def gen_x_cols(p, xvo, T):
    u, be, hh, chi, kap, base, cc, xx, t8 = T[:9]
    p.valu("v_lshrrev_b32", u, 4, vTID); p.valu("v_and_b32", be, 15, vTID)
    p.valu("v_lshrrev_b32", hh, 1, u); p.valu("v_and_b32", chi, 1, u)
    p.valu("v_lshrrev_b32", kap, 1, be)
    p.valu("v_and_b32", base, 1, be); p.valu("v_lshlrev_b32", base, 4, base)
    p.valu("v_lshl_add_u32", base, hh, 5, base)
    p.valu("v_lshlrev_b32", chi, 3, chi)
    p.salu("s_lshl_b32", sU[0], sW, 2)
    p.salu("s_sub_u32", sU[2], sX0, 1); p.salu("s_mov_b32", sU[5], 378)
    p.mov(t8, OOB)
    for i in range(4):
        p.salu("s_add_u32", sU[1], sU[0], i)
        p.valu("v_add_u32", cc, sU[1], kap); p.valu("v_and_b32", cc, 7, cc); p.valu("v_add_u32", cc, cc, chi)
        p.valu("v_add_u32", xx, sU[2], cc)
        p.valu("v_mul_u32_u24", xvo[i], 768, xx); p.valu("v_add_u32", xvo[i], xvo[i], base)
        p.valu("v_cmp_gt_u32", "vcc", sU[5], xx)
        p.valu("v_cndmask_b32", xvo[i], t8, xvo[i], "vcc")

def gen_x_rows(p, sy0):
    p.salu("s_lshl_b32", sU[0], sW, 2); p.salu("s_add_u32", sU[0], sU[0], sy0); p.salu("s_sub_u32", sU[0], sU[0], 1)
    for i in range(4):
        p.salu("s_add_u32", sU[1], sU[0], i); p.salu("s_mul_i32", sRow[i], sU[1], ROWB)
        p.salu("s_cmp_lt_u32", sU[1], 378); p.salu("s_cselect_b32", sRow[i], sRow[i], OOB)

def x_dma_list(p, xvo, j, ldsbase, res, rd_res, prio=0):
    if os.environ.get("NOXDMA") and p.name != "pro": return []
    xm = XMOD if p.name == "pro" else XMOD2
    def one(i):
        def f(tag=None):
            a_ = p.salu("s_add_u32", "m0", sW4k, ldsbase + i * 1024, prio=prio)
            if tag is not None: a_.rd.append(tag)
            p.salu("s_add_u32", sU[0], sRow[i], j * 64, prio=prio)
            p.dma(xvo[i], SRD_X, sU[0], 0, res=res, rd_res=rd_res, prio=prio, mods=xm)
        return f
    return [one(i) for i in range(4)]
def x_dma(p, xvo, j, ldsbase, res, rd_res, prio=0):
    for f in x_dma_list(p, xvo, j, ldsbase, res, rd_res, prio): f()

def dwfrag_list(p, j, ldsbase, res, rd_res, prio=0):
    src = dw_off(j)
    def mk(k):
        def f(tag=None):
            if k == 0: a_ = p.salu("s_lshl_b32", sT[7], sW, 10, prio=prio)
            else:
                a_ = p.salu("s_and_b32", sT[7], sW, 1, prio=prio); p.salu("s_lshl_b32", sT[7], sT[7], 10, prio=prio)
            if tag is not None: a_.rd.append(tag)
            p.salu("s_add_u32", sT[8], sT[7], src + k * 4096, prio=prio); p.salu("s_add_u32", "m0", sT[7], ldsbase + k * 4096, prio=prio)
            p.dma(vL16, SRD_WS, sT[8], 0, res=res, rd_res=rd_res, prio=prio)
        return f
    return [mk(0), mk(1)]
def dwfrag_dma(*a, **k):
    for f in dwfrag_list(*a, **k): f()

class DwRegs:
    def __init__(self, addr, A, B8, B4, acc, T, sumv, ssq, idx):
        self.addr, self.A, self.B8, self.B4, self.acc, self.T, self.sumv, self.ssq, self.idx = addr, A, B8, B4, acc, T, sumv, ssq, idx
        self.b8 = 0; self.b4 = 0; self.ai = 0; self.ti = 0; self.ci = 0

def dw_ctile_gen(p, D, j, hh, abase, aoff, xoff, res, hook=None):
    nA = len(D.A)
    A = []
    for f in range(3):
        r = D.A[D.ai % nA]; D.ai += 1
        if abase is None: build_afrag(p, r, f, 2 * j + hh)
        else: p.dsr(r, abase, aoff + hh * 3072 + f * 1024, res=res)
        A.append(r)
    for t in range(getattr(D, "ntile", 3)):
        acc = D.acc[D.ci % len(D.acc)]; D.ci += 1
        def rd(dst, pp):
            if t < 3: p.dsr(dst, D.addr(t, pp), xoff, res=res)
            else: p.dsr(dst, D.eaddr(pp), j * 64 + hh * 32, res=[("est", 0)])
        B = D.B4[D.b4 % len(D.B4)]; D.b4 += 1
        rd(B, 4)
        i = p.mfma(acc, A[2], B, None)
        if hook: hook(i)
        for sx in range(2):
            B = D.B8[D.b8 % len(D.B8)]; D.b8 += 1
            rd(B[0:4], 2 * sx); rd(B[4:8], 2 * sx + 1)
            i = p.smfmac(acc, A[sx], B, D.idx)
            if hook: hook(i)
        first = (j == 0 and hh == 0)
        if not getattr(D, "stats", True): pass
        elif first:
            p.valu("v_add_f32", D.sumv[t], acc[0], acc[1]); p.valu("v_mul_f32", D.ssq[t], acc[0], acc[0])
            p.valu("v_add_f32", D.sumv[t], D.sumv[t], acc[2]); p.valu("v_fma_f32", D.ssq[t], acc[1], acc[1], D.ssq[t])
            p.valu("v_add_f32", D.sumv[t], D.sumv[t], acc[3]); p.valu("v_fma_f32", D.ssq[t], acc[2], acc[2], D.ssq[t])
            p.valu("v_fma_f32", D.ssq[t], acc[3], acc[3], D.ssq[t])
        else:
            for r in range(4):
                p.valu("v_add_f32", D.sumv[t], D.sumv[t], acc[r]); p.valu("v_fma_f32", D.ssq[t], acc[r], acc[r], D.ssq[t])
        t0 = D.T[D.ti % len(D.T)]; t1 = D.T[(D.ti + 1) % len(D.T)]; D.ti += 2
        p.cvtpk(t0, acc[0], acc[1]); p.cvtpk(t1, acc[2], acc[3])
        ct = 2 * j + hh; G = ct >> 2; u = ct & 3
        XX = (lambda kb: X(kb, t)) if t < 3 else XE
        p.accw(XX(2 * G)[u], t0); p.accw(XX(2 * G + 1)[u], t1)
        yield t

def dw_ctile(*a, **k):
    for _ in dw_ctile_gen(*a, **k): pass

def stats_mfma(p, kbs, S, G, ONE):
    for kb in kbs:
        for t in range(3):
            p.mfma(S[t], ONE, X(kb, t), None if kb == 0 else S[t])
            p.mfma(G[t], X(kb, t), X(kb, t), None if kb == 0 else G[t])

def stats_mfma_fin(p, S, G, T):
    t0, t1, t2, adr, g16 = T[:5]
    p.valu("v_and_b32", t0, 15, vTID); p.valu("v_lshrrev_b32", t1, 2, t0)
    p.valu("v_lshl_add_u32", adr, t1, 4, t0); p.valu("v_lshlrev_b32", adr, 2, adr)
    for t in range(3):
        g = G[t]
        p.valu("v_cndmask_b32", t0, g[0], g[1], sM1); p.valu("v_cndmask_b32", t0, t0, g[2], sM2); p.valu("v_cndmask_b32", t0, t0, g[3], sM3)
        p.bperm(t1, adr, t0)
        p.valu("v_mul_f32", t2, sI384, S[t][0]); p.valu("v_mul_f32", t2, t2, t2)
        p.valu("v_fma_f32", t1, t1, sI384, Neg(t2)); p.valu("v_max_f32", t1, 0, t1); p.valu("v_add_f32", t1, sEps, t1)
        p.trans("v_rsq_f32", RC[t], t1)
    p.valu("v_lshrrev_b32", g16, 4, vTID); p.valu("v_lshlrev_b32", g16, 4, g16)
    for t in range(3):
        for r in range(4):
            i = p.bperm(RK(t, r), g16, RC[t]); i.text += f" offset:{4*r}"

def stats_valu(p, D, T):
    t2, t0, g16 = T[:3]
    for t in range(getattr(D, "ntile", 3)):
        for x in (D.sumv[t], D.ssq[t]):
            p.mov(t2, x); p.swap16(x, t2); p.valu("v_add_f32", x, x, t2)
            p.mov(t2, x); p.swap32(x, t2); p.valu("v_add_f32", x, x, t2)
        p.valu("v_mul_f32", t2, sI384, D.sumv[t])
        p.valu("v_mul_f32", t0, t2, t2)
        p.valu("v_fma_f32", t0, D.ssq[t], sI384, Neg(t0))
        p.valu("v_max_f32", t0, 0, t0); p.valu("v_add_f32", t0, sEps, t0)
        p.trans("v_rsq_f32", RC[t] if t < 3 else RCE, t0)
    p.valu("v_lshrrev_b32", g16, 4, vTID); p.valu("v_lshlrev_b32", g16, 4, g16)
    for t in range(3):
        for r in range(4):
            i = p.bperm(RK(t, r), g16, RC[t]); i.text += f" offset:{4*r}"

def slots_setup(p, reset=False, adv=0):
    if reset: p.salu("s_mov_b32", sS0, 0)
    if adv: p.salu("s_add_u32", sS0, sS0, adv)
    for k in range(4):
        p.salu("s_add_u32", sT[0], sS0, k); p.salu("s_and_b32", sT[0], sT[0], 3); p.salu("s_mul_i32", sSl[k], sT[0], SLOT)

def ring_dma_list(p, cid, first=False, prio=0, slot=None):
    sl = sSl[cid & 3] if slot is None else slot
    def mk(k):
        def f(tag=None):
            if k == 0:
                if first: p.salu("s_mov_b32", sSrc, sW6)
                if isinstance(sl, R): p.salu("s_add_u32", sRB, sl, sW6, prio=prio)
                else: p.salu("s_add_u32", sRB, sW6, sl, prio=prio)
            if k == 4: p.salu("s_add_u32", sSrc2, sSrc, 4096, prio=prio)
            if k < 4: p.salu("s_mov_b32", "m0", sRB, prio=prio)
            else: p.salu("s_add_u32", "m0", sRB, 4096, prio=prio)
            i = p.dma(vL16, SRD_WS, sSrc if k < 4 else sSrc2, (k % 4) * 1024, res=[("ch", cid)], rd_res=[("fr", cid)], prio=prio)
            if tag is not None: i.rd.append(tag)
            if k == 5: p.salu("s_add_u32", sSrc, sSrc, SLOT, prio=prio)
        return f
    return [mk(k) for k in range(6)]
def ring_dma(p, cid, first=False, prio=0, slot=None):
    for f in ring_dma_list(p, cid, first, prio, slot): f()

class Pacer:
    cnt = [0]
    def __init__(self, p): self.n = 0; self.q = []; self.p = p
    def add(self, items, start, step):
        for k, f in enumerate(items): self.q.append((self.n + start + k * step, f))
        self.q.sort(key=lambda x: x[0])
    def tick(self, i):
        self.n += 1
        while self.q and self.q[0][0] <= self.n:
            Pacer.cnt[0] += 1
            tag = ("TP", Pacer.cnt[0]); i.wr.append(tag)
            n0 = len(self.p.ins)
            self.q.pop(0)[1](tag)
            for x in self.p.ins[n0:]: x.pin = i
    def flush(self):
        while self.q: self.q.pop(0)[1](None)

PADDR = v(100, 16)
PXVO = [v(116 + i) for i in range(4)]
PDA = [v(120 + i * 4, 4) for i in range(6)]
PDB8 = [v(144 + i * 8, 8) for i in range(6)]
PDB4 = [v(192 + i * 4, 4) for i in range(2)]
PIDX = v(88); vTS = v(89); MS = [v(90 + q) for q in range(4)]
PACC = [v(200 + i * 4, 4) for i in range(6)]
PSUM = [v(224 + i) for i in range(4)]; PSSQ = [v(228 + i) for i in range(4)]
PDT = [v(70 + i) for i in range(6)]
EADDR = [v(82 + i) for i in range(5)]
vTA = v(68); AM = [v(60 + q) for q in range(4)]
ATMP = [v(76), v(77), v(78), v(79), v(80)]
EVS = [v(36 + i) for i in range(10)]

_at = [0]
def build_afrag(p, dst, f, ct):
    tmp = ATMP[_at[0] % len(ATMP)]; _at[0] += 1
    if f < 2:
        p.dsr(tmp, vTS, f * 3072 + ct * 32, res=[("tbl", 0)], op="ds_read_u16")
        for q in range(4): p.valu("v_and_b32", dst[q], tmp, MS[q])
    else:
        p.dsr(tmp, vTA, 4 * 1536 + ct * 32, res=[("tbl", 0)], op="ds_read_u16")
        p.valu("v_lshl_or_b32", tmp, tmp, 16, tmp)
        for q in range(4): p.valu("v_and_b32", dst[q], tmp, AM[q])

def stage_calc(p):
    u, q, tk, pc, t5 = TMP[0], TMP[1], TMP[2], TMP[3], TMP[4]
    p.salu("s_mul_i32", sU[0], sW, 640)
    p.salu("s_mov_b32", sU[3], 14 * ROWB); p.salu("s_mov_b32", sU[4], ROWB)
    for k in range(10):
        p.valu("v_add_u32", u, sU[0], vTID); p.valu("v_add_u32", u, 64 * k, u)
        p.valu("v_mul_u32_u24", tk, 1338, u); p.valu("v_lshrrev_b32", tk, 16, tk)
        p.valu("v_mul_u32_u24", t5, 49, tk); p.valu("v_sub_u32", pc, u, t5)
        p.valu("v_lshrrev_b32", q, 4, tk)
        d = EVS[k]
        p.valu("v_mul_lo_u32", d, q, sU[3])
        p.valu("v_bfe_u32", t5, tk, 2, 2); p.valu("v_mul_lo_u32", t5, t5, sU[4]); p.valu("v_add_u32", d, d, t5)
        p.valu("v_and_b32", t5, 3, tk); p.valu("v_mul_u32_u24", t5, 768, t5); p.valu("v_add_u32", d, d, t5)
        p.valu("v_lshl_add_u32", d, pc, 4, d)
        p.valu("v_cmp_gt_u32", "vcc", 48, tk); p.mov(t5, OOB); p.valu("v_cndmask_b32", d, t5, d, "vcc")
        p.valu("v_cmp_gt_u32", "vcc", 48, pc); p.valu("v_cndmask_b32", d, t5, d, "vcc")
def stage_dma(p):
    p.salu("s_mul_i32", sU[0], sW, 640)
    p.salu("s_mul_i32", sU[2], sSR3, 14); p.salu("s_add_u32", sU[2], sU[2], 5); p.salu("s_mul_i32", sU[2], sU[2], ROWB)
    p.salu("s_add_u32", sU[3], sX0, 5); p.salu("s_mul_i32", sU[3], sU[3], 768); p.salu("s_add_u32", sT[11], sU[2], sU[3])
    for k in range(10):
        p.salu("s_mul_i32", sU[5], sW, 640 * 16); p.salu("s_add_u32", "m0", sU[5], EST + 1024 * k)
        p.dma(EVS[k], SRD_X, sT[11], 0, res=[("est", 0)], mods=XMOD)

def gen_eaddr(p):
    n_, g_, hi, base, pr, pc, tq = TMP[0:7]
    p.valu("v_and_b32", n_, 15, vTID); p.valu("v_min_u32", n_, 11, n_); p.valu("v_lshrrev_b32", g_, 4, vTID); p.valu("v_lshrrev_b32", hi, 1, g_)
    p.valu("v_lshrrev_b32", tq, 2, n_); p.valu("v_mul_u32_u24", base, ESTQ, tq)
    p.valu("v_and_b32", tq, 1, g_); p.valu("v_lshl_add_u32", base, tq, 4, base); p.valu("v_add_u32", base, EST, base)
    p.valu("v_cmp_eq_u32", "vcc", 1, hi)
    for pp in range(5):
        dy0, dx0 = tap_dydx(2 * pp); dy1, dx1 = tap_dydx(2 * pp + 1)
        p.mov(pr, dy0 + 1); p.mov(tq, dy1 + 1); p.valu("v_cndmask_b32", pr, pr, tq, "vcc")
        p.valu("v_bfe_u32", tq, n_, 1, 1); p.valu("v_add_u32", pr, pr, tq)
        p.mov(pc, dx0 + 1); p.mov(tq, dx1 + 1); p.valu("v_cndmask_b32", pc, pc, tq, "vcc")
        p.valu("v_and_b32", tq, 1, n_); p.valu("v_add_u32", pc, pc, tq)
        p.valu("v_lshl_add_u32", pr, pr, 2, pc); p.valu("v_mul_u32_u24", pr, 784, pr); p.valu("v_add_u32", EADDR[pp], pr, base)

PADDR2 = v(240, 16)
CHK = int(os.environ.get("CHK", "9"))
def gen_out_rel(p, dst, T):
    n_, g_, tq, rr, cc = T
    p.valu("v_and_b32", n_, 15, vTID); p.valu("v_lshrrev_b32", g_, 4, vTID)
    p.salu("s_mov_b32", sT[2], ROWB)
    p.valu("v_lshlrev_b32", n_, 3, n_); p.valu("v_lshlrev_b32", g_, 2, g_)
    for t in range(3):
        for r in range(4):
            p.valu("v_add_u32", tq, 16 * t + r + 1, g_)
            p.valu("v_subrev_u32", rr, sSkip1, tq); p.valu("v_lshrrev_b32", rr, 31, rr); p.valu("v_sub_u32", tq, tq, rr)
            p.valu("v_mul_u32_u24", rr, 37, tq); p.valu("v_lshrrev_b32", rr, 8, rr)
            p.valu("v_mul_u32_u24", cc, 7, rr); p.valu("v_sub_u32", cc, tq, cc)
            p.valu("v_mul_lo_u32", rr, rr, sT[2]); p.valu("v_mul_u32_u24", cc, 768, cc)
            p.valu("v_add3_u32", dst(t, r), rr, cc, n_)

def blk_pro():
    from prep2 import dw_masks, sp_masks, sp_index
    p = Prog("pro")
    if os.environ.get("FINE") == "pro": p.fine = [99, 0]; p.raw("s_memtime s[88:89]", "salu")
    round_setup(p, False)
    slots_setup(p, reset=True)
    gen_x_rows(p, sY0)
    gen_x_cols(p, PXVO, TMP)
    for k in range(2):
        p.salu("s_lshl_b32", sT[7], sW, 10); p.salu("s_add_u32", sT[8], sT[7], k * 4096); p.salu("s_add_u32", "m0", sT[8], TBL)
        p.dma(vL16, SRD_DW, sT[8], 0, res=[("tbl", 0)], prio=-7000)
    def pair_items(G, first=False):
        a_ = x_dma_list(p, PXVO, 2 * G, PXS[(2 * G) % 6], [("xb", 2 * G)], [] if first else [("xfr", 2 * G)], prio=-9000 if first else 0)
        b_ = x_dma_list(p, PXVO, 2 * G + 1, PXS[(2 * G + 1) % 6], [("xb", 2 * G + 1)], [] if first else [("xfr", 2 * G + 1)], prio=-9000 if first else 0)
        return [f for ab in zip(a_, b_) for f in ab]
    for f in pair_items(0, True): f()
    stage_calc(p)
    stage_dma(p)
    for f in pair_items(1, True): f()
    gen_dw_addrs(p, lambda t, pp: PADDR[t * 5 + pp], TMP)
    p.mov(PADDR[15], 0)
    for k in range(15): p.valu("v_add_u32", PADDR2[k], 65536, PADDR[k])
    gen_eaddr(p)
    i_, g_ = TMP[0], TMP[1]
    p.valu("v_and_b32", i_, 15, vTID); p.valu("v_lshrrev_b32", g_, 4, vTID)
    dw_masks(p, i_, g_, AM, TMP[2:7])
    p.valu("v_lshrrev_b32", TMP[2], 1, g_); p.valu("v_mul_u32_u24", vTA, 768, TMP[2]); p.valu("v_lshl_add_u32", vTA, i_, 1, vTA); p.valu("v_add_u32", vTA, TBL, vTA)
    sp_masks(p, i_, MS, TMP[2]); sp_index(p, PIDX, TMP[2])
    p.valu("v_mul_u32_u24", vTS, 768, g_); p.valu("v_lshl_add_u32", vTS, i_, 1, vTS); p.valu("v_add_u32", vTS, TBL, vTS)
    p.bar(wr=[("tbl", 0)])
    p.mov(TMP[3], 0x3f803f80); p.valu("v_lshlrev_b32", TMP[4], 2, vTID); p.valu("v_add_u32", TMP[4], TBL + 9 * 768, TMP[4])
    for k in range(3): p.dsw(TMP[4], TMP[3], k * 256, res=[("tbl", 0)])
    D = DwRegs(lambda t, pp: PADDR[t * 5 + pp], PDA, PDB8, PDB4, PACC, PDT, PSUM, PSSQ, PIDX)
    D.ntile = 4; D.eaddr = lambda pp: EADDR[pp]
    progs = [p]
    p.pacer = Pacer(p)
    for j in range(12):
        if j == CHK:
            p.pacer.flush()
            p = Prog("pro_b"); progs.append(p); p.pacer = Pacer(p)
            if progs[0].__dict__.get("fine") is not None: p.fine = progs[0].fine
        wr = [("xb", j)]
        if j == 0: wr += [("tbl", 0), ("est", 0)]
        if j >= 1: wr.append(("xb", j - 1))
        G = (j + 4) // 2
        if j % 2 == 0 and G <= 5: wr += [("xfr", 2 * G), ("xfr", 2 * G + 1)]
        if j == CHK: wr.append(("fr", 0))
        if j == CHK + 1: wr.append(("fr", 1))
        if j == 11: wr.append(("fr", 2))
        p.bar(wr=wr)
        if j % 2 == 0 and G <= 5:
            items = pair_items(G)
            if j + 1 == CHK: p.pacer.add(items, 2, 3)
            else: p.pacer.add(items, 2, 6)
        if j == 1: code_touch(p, "L_pro_b", "L_round", [v(it) for it in (232, 233, 234)], aDUM[2])
        if j == 3:
            TBQ = [v(b, 4) for b in (36, 40, 44, 48, 52, 56, 64, 10)]
            TB = lambda k: TBQ[k >> 2][k & 3]
            for k in range(16): p.valu("v_add_u32", TB(k), XSB, PADDR[k])
            gen_out_rel(p, lambda t, r: TB(16 + 4 * t + r), [v(94), v(95), v(96), v(97), v(98)])
            p.salu("s_add_u32", sT[11], sTab, 4096)
            def st(k):
                def f(tag=None):
                    i = p.vst(TBQ[k], vL16, SRD_WS, sTab if k < 4 else sT[11], (k % 4) * 1024, res=[("tab", 0)])
                    if tag is not None: i.rd.append(tag)
                return f
            p.pacer.add([st(k) for k in range(7)], 3, 5)
        if j == CHK - 2: p.vld(vFLAG, vZERO(p), SRD_DBG, 0, 0, mods=" sc1")
        if j == CHK: p.pacer.add(ring_dma_list(p, 0, first=True), 1, 4)
        if j == CHK + 1: p.pacer.add(ring_dma_list(p, 1), 1, 4)
        if j == 11: p.pacer.add(ring_dma_list(p, 2), 1 if CHK + 1 < 11 else 1, 4)
        hi = (j % 6) >= 4
        D.addr = (lambda t, pp: PADDR2[t * 5 + pp]) if hi else (lambda t, pp: PADDR[t * 5 + pp])
        for hh in range(2):
            dw_ctile(p, D, j, hh, None, 0, PXS[j % 6] - (65536 if hi else 0) + hh * 512, [("xb", j)], hook=p.pacer.tick)
    p.pacer.flush()
    stats_valu(p, D, TMP[5:8])
    p.bar(wr=[("ch", 0), ("xb", 11), ("tbl", 0), ("est", 0)])
    p.valu("v_add_u32", vWB[0], sSl[0], vL16)
    for f in range(NPRE): p.dsr(WR(f), vWB[0], f * 1024, res=[("ch", 0)])
    return progs

def blk_park_xe():
    p = Prog("parkxe")
    def variant(par):
        t = ""
        for j in range(6):
            t += f"s_add_u32 s49, s{sXS.b}, {j*1024}\nbuffer_store_dwordx4 {XE(2*j+par)}, v{vL16.b}, s[12:15], s49 offen\n"
        return t
    txt = f"s_cmp_ge_u32 s{sW.b}, 2\ns_cbranch_scc1 L_pxe1\n" + variant(0) + "s_branch L_pxe2\nL_pxe1:\n" + variant(1) + "L_pxe2:"
    for j in range(6):
        i = I(txt if j == 0 else "", "vst", [XE(2*j), XE(2*j+1), vL16, SRD_WS, sXS, sW], [("xs", 0), s(49), "scc"], cost=24)
        p.add(i)
    return p

vFLAG = v(8)
def vZERO(p):
    p.mov(v(9), 0, prio=-20000); return v(9)

def flag_check(name, vflag, dword, target):
    p = Prog(name)
    if os.environ.get("NOCHK"): return p
    p.valu("v_readfirstlane_b32", s(49), vflag)
    L = f"L_{name}"
    p.raw(f"s_cmp_ge_u32 s49, {target}\ns_cbranch_scc1 {L}_ok\ns_mov_b32 s62, 0\n{L}_spin:\n"
          f"v_mov_b32 {vflag}, {4*dword}\ns_nop 1\nbuffer_load_dword {vflag}, {vflag}, s[4:7], 0 offen sc1\ns_waitcnt vmcnt(0)\n"
          f"v_readfirstlane_b32 s49, {vflag}\ns_add_u32 s62, s62, 1\ns_nop 3\ns_cmp_ge_u32 s49, {target}\ns_cbranch_scc1 {L}_ok\n"
          f"s_cmp_lt_u32 s62, 0x40000\ns_cbranch_scc1 {L}_spin\n{L}_ok:", "br", rd=[s(49), vflag], wr=[s(49), s(62), "scc", vflag])
    return p
```

```python
from kv2 import *

def wbase(p, cc):
    r = vWB[cc % 3]
    p.valu("v_add_u32", r, sSl[cc & 3], vL16)
    return r

class FragStream:
    def __init__(self, p, pre): self.p = p; self.n = 0; self.pre = pre
    def get(self, base, off, res):
        w = WR(self.n)
        if self.n >= self.pre: self.p.dsr(w, base, off, res=res)
        self.n += 1
        return w

def gemm_tile(p, fs, base, toff, cres, kind, accset, tagk=None, tag=None, extra=None):
    acc = ACC[accset]
    skip = max(0, fs.pre - fs.n)
    for kb in range(12):
        w = fs.get(base, toff + kb * 1024, [cres])
        for t in range(3):
            c = None if kb == 0 else acc[t]
            if kind == "kq": i = p.mfma(acc[t], w, X(kb, t), c)
            else: i = p.mfma(acc[t], X(kb, t), w, c)
            if tag is not None and kb == tagk and t == 0: i.wr.append(tag)
            if getattr(p, "pacer", None): p.pacer.tick(i)
        if extra is not None and kb >= skip: next(extra)
    if extra is not None:
        for _ in extra: pass

def epi_kq(p, accset, a_, dstf):
    acc = ACC[accset]
    for t in range(3):
        if not os.environ.get("NOEPI"):
            for r in range(4): p.valu("v_mul_f32", acc[t][r], RC[t], acc[t][r])
        d = dstf(t, a_ >> 1)
        p.cvtpk(d[2 * (a_ & 1)], acc[t][0], acc[t][1]); p.cvtpk(d[2 * (a_ & 1) + 1], acc[t][2], acc[t][3])

def epi_v(p, accset, a_):
    acc = ACC[accset]
    for t in range(3):
        d = Vf(a_, t >> 1); o = (t & 1) * 2
        p.cvtpk(d[o], acc[t][0], acc[t][1]); p.cvtpk(d[o + 1], acc[t][2], acc[t][3])

def extra_block(p, fs, j, cc_a, cc_b, stash_res):
    if cc_a != cc_b:
        p.salu("s_cmp_ge_u32", sW, 2); p.salu("s_cselect_b32", sT[0], sSl[cc_b & 3], sSl[cc_a & 3])
        p.salu("s_add_u32", sT[0], sT[0], sW1)
    else:
        p.salu("s_add_u32", sT[0], sSl[cc_a & 3], sW1)
    p.valu("v_add_u32", vXB, sT[0], vL16)
    for kb in range(12):
        w = fs.get(vXB, kb * 1024, [("ch", cc_a), ("ch", cc_b)])
        p.mfma(ACCE, w, XE(kb), None if kb == 0 else ACCE)
        yield kb
    for r in range(4): p.valu("v_mul_f32", ACCE[r], RCE, ACCE[r])
    t = v(TMP[8].b, 2)
    p.cvtpk(t[0], ACCE[0], ACCE[1]); p.cvtpk(t[1], ACCE[2], ACCE[3])
    p.salu("s_add_u32", sT[1], sEoff[j], sH192)
    p.valu("v_add_u32", TMP[7], sT[1], vSW)
    ex_bundle(p, sEx, lambda q: q.dsw(TMP[7], t, 0), "dsw", [], [stash_res], 20)

def extra_for(p, fs, cc, r0):
    if not r0: return None
    if cc in (1, 3, 5, 7): return extra_block(p, fs, (cc - 1) // 2, cc - 1, cc, ("sKQ", 0) if cc < 7 else ("sV", 0))
    if cc == 8: return extra_block(p, fs, 4, 8, 8, ("sV", 0))
    return None

QORD = [3, 0, 1, 2]
def s_phase(p):
    order = [(3, 3), (3, 2), (0, 3), (1, 3), (2, 3), (3, 0), (3, 1),
             (0, 2), (1, 2), (2, 2), (0, 0), (1, 0), (2, 0), (0, 1), (1, 1), (2, 1)]
    for (kt, qt) in order:
        d = Sf(kt, qt)
        for s3 in range(3):
            A = KE(s3) if kt == 3 else Kf(kt, s3)
            B = QE(s3) if qt == 3 else Qf(qt, s3)
            p.mfma(d, A, B, None if s3 == 0 else d)

def softmax(p, qt, k, part="AB"):
    if part == "B": return softmax_b(p, qt)
    m = TMP[(k % 2) * 3]; m2 = TMP[(k % 2) * 3 + 1]; ng = TMP[(k % 2) * 3 + 2]; l = LINV[qt]; l2 = TMP[6]
    vals = [Sf(kt, qt)[r] for kt in range(3) for r in range(4)] + [Sf(3, qt)[0]]
    p.valu("v_max3_f32", m, vals[0], vals[1], vals[2])
    for i in range(3, 13, 2): p.valu("v_max3_f32", m, m, vals[i], vals[i + 1])
    p.mov(m2, m); p.swap16(m, m2); p.valu("v_max_f32", m, m, m2)
    p.mov(m2, m); p.swap32(m, m2); p.valu("v_max_f32", m, m, m2)
    p.valu("v_mul_f32", ng, sNegC, m)
    for x in vals:
        p.valu("v_fma_f32", x, x, sC, ng)
        p.trans("v_exp_f32", x, x)
    e = vals[12]
    p.valu("v_mul_f32", e, vGM, e)
    p.valu("v_add_f32", l, vals[0], vals[1])
    for x in vals[2:]: p.valu("v_add_f32", l, l, x)
    p.mov(l2, l); p.swap16(l, l2); p.valu("v_add_f32", l, l, l2)
    p.mov(l2, l); p.swap32(l, l2); p.valu("v_add_f32", l, l, l2)
    p.trans("v_rcp_f32", l, l)
    if "B" in part: softmax_b(p, qt)

def softmax_b(p, qt):
    l = LINV[qt]; e = Sf(3, qt)[0]
    for kt in range(3):
        sf = Sf(kt, qt)
        for r in range(4): p.valu("v_mul_f32", sf[r], RK(kt, r), sf[r])
        for r in range(4): p.valu("v_mul_f32", sf[r], l, sf[r])
        d = Pf(qt, kt >> 1); o = (kt & 1) * 2
        p.cvtpk(d[o], sf[0], sf[1]); p.cvtpk(d[o + 1], sf[2], sf[3])
    d = Pf(qt, 1)
    p.valu("v_mul_f32", e, l, e)
    p.cvtpk(d[2], e, 0); p.mov(d[3], 0)

vPK = v(254)
NSM = int(os.environ.get("NSM", "2"))
SMPART = os.environ.get("SMPART", "AB")
def pv_group(p, h, park, k):
    qt = QORD[k]
    oa = OACC[k % 2]
    for a_ in range(6): p.mfma(oa[a_], Vf(a_, 0), Pf(qt, 0), None)
    for a_ in range(6): p.mfma(oa[a_], Vf(a_, 1), Pf(qt, 1), oa[a_])
    for a_ in range(6):
        o = oa[a_]
        if qt == 3:
            t = v(TMP[8].b, 2)
            p.cvtpk(t[0], o[0], o[1]); p.cvtpk(t[1], o[2], o[3])
            off = h * 192 + (a_ >> 1) * 64 + (a_ & 1) * 8
            ex_bundle(p, sEx0, lambda q: q.dsw(vSQ, t, off), "dsw", [], [("sO", 0)], 20)
        else:
            home = OH(h, a_ >> 1, qt); hh = (a_ & 1) * 2
            if h == 0 and park:
                t = v(TMP[8].b, 2)
                p.cvtpk(t[0], o[0], o[1]); p.cvtpk(t[1], o[2], o[3])
                p.dsw(vPK, t, ((a_ >> 1) * 3 + qt) * 1024 + (a_ & 1) * 8, res=[("park", 0)])
            elif home.c == "a":
                t0, t1 = TMP[8], TMP[9]
                p.cvtpk(t0, o[0], o[1]); p.cvtpk(t1, o[2], o[3])
                p.accw(home[hh], t0); p.accw(home[hh + 1], t1)
            else:
                p.cvtpk(home[hh], o[0], o[1]); p.cvtpk(home[hh + 1], o[2], o[3])

def pv_start(p, h):
    n0 = len(p.ins)
    epi_v(p, 1, 5)
    for a_ in range(6):
        p.dsr(Vf(a_, 1)[2], vSV, h * 192 + (a_ >> 1) * 64 + (a_ & 1) * 8, res=[("sV", 0)], op="ds_read_u16")
    for i in p.ins[n0:]: i.prio = -10**6
    for k in range(NSM, 4): softmax(p, QORD[k], k, SMPART)

def pv_phase(p, h, park):
    pv_start(p, h)
    for k in range(4): pv_group(p, h, park, k)

def chunk_mid(p, cc, r0, fs, extra_wr=(), extra_rd=()):
    wr = [("ch", cc + 1), ("ch", cc - 1), ("fr", cc + 3)] + list(extra_wr)
    if not os.environ.get("NOBAR"): p.bar(rd=[("T", cc)] + list(extra_rd), wr=wr)
    if not os.environ.get("NORING"):
        last = cc in (2, 8)
        st = int(os.environ.get("RSTEP", "11"))
        p.pacer.add(ring_dma_list(p, cc + 3), 1, 6 if last else st)

def prefetch_next(p, cc_next):
    base = wbase(p, cc_next)
    for f in range(NPRE): p.dsr(WR(f), base, f * 1024, res=[("ch", cc_next)])

MSTAT = not os.environ.get("VSTAT")
def roll_regs():
    D = DwRegs(DWADDR, DA, DB8, DB4, DACC, DT, SUMV, SSQ, vIDX)
    D.stats = not MSTAT
    return D
MS_S = [v(216 + 4 * t, 4) for t in range(3)]; MS_ONE = v(228, 4); MS_G = [v(204, 4), v(208, 4), v(244, 4)]

def blk_b1(hprev, r0):
    roll_tail = (hprev is None and not r0)
    p = Prog(f"b1{'x' if r0 else ''}_{'a' if hprev is None else hprev}")
    if os.environ.get("FINE") == p.name: p.fine = [255, 0]; p.raw("s_memtime s[88:89]", "salu")
    if hprev is None:
        p.salu("s_mov_b32", sH192, 0)
    else:
        slots_setup(p, adv=9)
        p.salu("s_add_u32", sH192, sH192, 192)
    if r0 and hprev == 0:
        p.salu("s_mul_i32", sT[0], sW, 9216); p.salu("s_add_u32", sT[0], sT[0], PARK); p.valu("v_add_u32", vPK, sT[0], vL16)
    fs = FragStream(p, NPRE); p.pacer = Pacer(p)
    if r0 and hprev == 1:
        p.mov(v(253), 4); p.vld(v(255), v(253), SRD_DBG, 0, 0, mods=" sc1")
    PVAT = [int(x) for x in os.environ.get("PVAT", "0,1,2,4").split(",")]
    if hprev is not None: pv_start(p, hprev)
    tile = 0
    if roll_tail:
        slots_setup(p, reset=True)
        D = roll_regs()
        base = vWB[0]
        def part(tt, kbs, tag=None):
            acc = ACC[tt]
            for kb in kbs:
                w = fs.get(base, tt * TILE_B + kb * 1024, [("ch", 0)])
                for t in range(3):
                    i = p.mfma(acc[t], w, X(kb, t), None if kb == 0 else acc[t])
                    if tag is not None and kb == kbs[-1] and t == 0: i.wr.append(tag)
                    p.pacer.tick(i)
        p.valu("v_add_u32", vDAb, DSL[0], vL16)
        if MSTAT:
            for q in range(4): p.mov(MS_ONE[q], 0x3f803f80)
            stats_mfma(p, range(10), MS_S, MS_G, MS_ONE)
        for hh in range(2): dw_ctile(p, D, 10, hh, vDAb, 0, xslot(10) + hh * 512, [("xb", 10), ("dw", 10)])
        part(0, list(range(10)), ("T", 0))
        p.bar(rd=[("T", 0)], wr=[("ch", 1), ("last", 0), ("fr", 2), ("dw", 11), ("xb", 11)])
        p.pacer.add(ring_dma_list(p, 2), 1, 5)
        for hh in range(2): dw_ctile(p, D, 11, hh, vDAb, 6144, xslot(11) + hh * 512, [("xb", 11), ("dw", 11)])
        part(1, list(range(10)), ("T", 50))
        p.bar(rd=[("T", 50)], wr=[("fr", 3), ("dw", 10), ("dw", 11), ("xb", 10), ("xb", 11)])
        if MSTAT:
            stats_mfma(p, (10, 11), MS_S, MS_G, MS_ONE)
            stats_mfma_fin(p, MS_S, MS_G, TMP[0:5])
        else: stats_valu(p, D, [TMP[0], TMP[1], TMP[2]])
        p.pacer.add(ring_dma_list(p, 3), 1, 8)
        part(0, [10, 11]); part(1, [10, 11])
        epi_kq(p, 0, 0, Kf); epi_kq(p, 1, 1, Kf)
        tile = 2
    for cc in range(1 if roll_tail else 0, 3):
        base = vWB[cc % 3] if cc == 0 else wbase(p, cc)
        for tt in range(2):
            a_ = cc * 2 + tt
            if hprev is not None:
                for k in range(4):
                    if PVAT[k] == a_: pv_group(p, hprev, r0, k)
            gemm_tile(p, fs, base, tt * TILE_B, ("ch", cc), "kq", tile % 2, tagk=TAGK, tag=("T", cc) if tt == 0 else None, extra=extra_for(p, fs, cc, r0) if tt == 0 else None)
            if a_ < 5: epi_kq(p, tile % 2, a_, Kf)
            tile += 1
            if tt == 0: chunk_mid(p, cc, r0, fs)
    p.pacer.flush()
    prefetch_next(p, 3)
    return p

def touch(p, i):
    idx, row, col, t3 = TMP[7], TMP[8], TMP[9], v(253)
    if i == 0:
        p.salu("s_lshr_b32", sU[2], sH192, 6); p.salu("s_mul_i32", sU[2], sU[2], 86); p.salu("s_lshr_b32", sU[2], sU[2], 8)
        p.salu("s_mul_i32", sPf, sU[2], 6)
        p.salu("s_add_u32", sU[3], sY0, 13); p.salu("s_mul_i32", sU[4], sU[3], ROWB)
        p.salu("s_mul_i32", sU[5], sX0, 768); p.salu("s_add_u32", sU[4], sU[4], sU[5]); p.salu("s_sub_u32", sPfB, sU[4], 768)
    p.salu("s_add_u32", sU[2], sPf, i)
    p.salu("s_and_b32", sU[3], sU[2], 3); p.salu("s_lshl_b32", sU[2], sU[2], 6)
    p.salu("s_cmp_eq_u32", sU[3], sW); p.salu("s_cselect_b32", sU[4], 378, 0)
    p.salu("s_cmp_eq_u32", sRound, 2); p.salu("s_cselect_b32", sU[4], 0, sU[4])
    p.valu("v_add_u32", idx, sU[2], vTID)
    p.valu("v_mul_u32_u24", row, 683, idx); p.valu("v_lshrrev_b32", row, 16, row)
    p.valu("v_mul_u32_u24", col, 96, row); p.valu("v_sub_u32", col, idx, col)
    p.salu("s_mov_b32", sU[5], ROWB)
    p.valu("v_mul_lo_u32", idx, row, sU[5]); p.valu("v_lshl_add_u32", idx, col, 7, idx); p.valu("v_add_u32", idx, sPfB, idx)
    p.salu("s_add_u32", sU[3], sY0, 13)
    p.valu("v_add_u32", row, sU[3], row)
    p.valu("v_cmp_gt_u32", "vcc", sU[4], row)
    p.mov(t3, OOB); p.valu("v_cndmask_b32", idx, t3, idx, "vcc")
    p.vld(aDUM[i % 2], idx, SRD_X, 0, 0)

CT = [v(62), v(63), v(61)]
def blk_b2(r0):
    p = Prog(f"b2{'x' if r0 else ''}")
    if os.environ.get("FINE") == p.name: p.fine = [255, 0]; p.raw("s_memtime s[88:89]", "salu")
    fs = FragStream(p, NPRE); p.pacer = Pacer(p)
    vq = v(252)
    p.valu("v_add_u32", vq, sH192, vSQ)
    epi_kq(p, 1, 5, Kf)
    tile = 6
    for cc in range(3, 9):
        base = vWB[cc % 3] if cc == 3 else wbase(p, cc)
        if cc == 6:
            s_phase(p)
            for a_ in (4, 5): p.mov(Vf(a_, 1)[3], 0)
            for k, qt in enumerate(QORD): (softmax(p, qt, k, "AB") if k < NSM else (softmax(p, qt, k, "A") if SMPART == "B" else None))
        for tt in range(2):
            a_ = (cc % 3) * 2 + tt
            kind = "kq" if cc < 6 else "v"
            gemm_tile(p, fs, base, tt * TILE_B, ("ch", cc), kind, tile % 2, tagk=TAGK, tag=("T", cc) if tt == 0 else None, extra=extra_for(p, fs, cc, r0) if tt == 0 else None)
            if kind == "kq": epi_kq(p, tile % 2, a_, Qf)
            elif a_ < 5: epi_v(p, tile % 2, a_)
            tile += 1
            if tt == 0:
                ew = []
                if r0 and cc == 5: ew = [("sKQ", 0)]
                if r0 and cc == 8: ew = [("sV", 0)]
                chunk_mid(p, cc, r0, fs, extra_wr=ew)
                if not os.environ.get("NOTOUCH"):
                    p.pacer.add([lambda tag=None, i=cc - 3: touch(p, i)], 34 if cc == 8 else int(os.environ.get("TPOS", "62")), 1)
                if cc == 3:
                    if r0: code_touch(p, "L_b1x_a", "L_b2x", [v(253), v(254), v(255)] if False else CT, aDUM[2], sel=(sH192, 576, "L_out", "L_outl"))
                    else: code_touch(p, "L_b1_a", "L_b2", CT, aDUM[2], sel=(sH192, 576, "L_out", "L_codeend"))
                if cc == 5:
                    for s3 in range(3):
                        p.dsr(KE(s3), vq, 768 + s3 * 64, res=[("sKQ", 0)])
                        p.dsr(QE(s3), vq, s3 * 64, res=[("sKQ", 0)])
    p.pacer.flush()
    prefetch_next(p, 9)
    return p

def gen_sel(p):
    n_, g_, tq, c = v(24), v(25), v(60), v(61)
    t1 = v(62)
    p.valu("v_and_b32", n_, 15, vTID); p.valu("v_lshrrev_b32", g_, 4, vTID)
    p.valu("v_and_b32", tq, 3, n_); p.valu("v_cmp_eq_u32", "vcc", tq, g_)
    p.valu("v_lshrrev_b32", c, 2, n_); p.mov(tq, 63); p.valu("v_cndmask_b32", c, tq, c, "vcc")
    p.mov(n_, 0x3f80)
    for q in range(4):
        p.valu("v_cmp_eq_u32", "vcc", q, c)
        p.valu("v_cndmask_b32", tq, 0, n_, "vcc"); p.accw(SEL[0][q], tq)
        p.valu("v_lshlrev_b32", t1, 16, tq); p.accw(SEL[1][q], t1)

def gen_out_offsets(p):
    n_ = TMP[0]; g_ = TMP[1]; tq = TMP[2]; rr = TMP[3]; cc = TMP[4]
    p.valu("v_and_b32", n_, 15, vTID); p.valu("v_lshrrev_b32", g_, 4, vTID)
    p.salu("s_add_u32", sT[0], sY0, sWY7); p.salu("s_mul_i32", sT[0], sT[0], ROWB)
    p.salu("s_add_u32", sT[1], sX0, sWX7); p.salu("s_mul_i32", sT[1], sT[1], 768); p.salu("s_add_u32", sT[0], sT[0], sT[1])
    p.salu("s_mov_b32", sT[2], ROWB)
    p.valu("v_lshlrev_b32", n_, 3, n_); p.valu("v_add_u32", n_, sT[0], n_); p.valu("v_lshlrev_b32", g_, 2, g_)
    for t in range(3):
        for r in range(4):
            p.valu("v_add_u32", tq, 16 * t + r + 1, g_)
            p.valu("v_subrev_u32", rr, sSkip1, tq); p.valu("v_lshrrev_b32", rr, 31, rr); p.valu("v_sub_u32", tq, tq, rr)
            p.valu("v_mul_u32_u24", rr, 37, tq); p.valu("v_lshrrev_b32", rr, 8, rr)
            p.valu("v_mul_u32_u24", cc, 7, rr); p.valu("v_sub_u32", cc, tq, cc)
            p.valu("v_mul_lo_u32", rr, rr, sT[2]); p.valu("v_mul_u32_u24", cc, 768, cc)
            p.valu("v_add3_u32", vOUT[t][r], rr, cc, n_)

OE = [v(120 + kb * 4, 4) for kb in range(7)] + [v(184 + kb * 4, 4) for kb in range(5)]
XEF = [v(112, 4), v(116, 4), v(236, 4), v(240, 4), v(12, 4), v(16, 4)]
vOE = v(206); vOUTE = v(207); ETMP = [v(212), v(213), v(215), v(5)]; SELW = v(8, 4); vXBL = v(214)

TABLAT = int(os.environ.get("TABLAT", "2200"))
BARKS = int(os.environ.get("BARKS", "16"))
def out_tiles(p, fs, cc, base, tile, dwf=None, extra=None, pre=None):
    G = cc >> 1
    hook = p.pacer.tick
    dgs = [dwf(0, hook), dwf(1, hook)] if dwf else []
    def step():
        while dgs:
            try:
                next(dgs[0]); return
            except StopIteration: dgs.pop(0)
    barks = BARKS if dwf else 11
    last = int(os.environ.get("DWLAST", "11"))
    units = [round(1 + (last - 1) * k / 5) for k in range(6)] if dwf else []
    accs = [ACC3[tile[0] % 3], ACC3[(tile[0] + 1) % 3]]; tile[0] += 2
    if cc == 0:
        order = [(0, kb) for kb in range(9)] + [(1, kb) for kb in range(9)] + [(0, kb) for kb in range(9, 12)] + [(1, kb) for kb in range(9, 12)]
    else:
        order = [(e, kb) for e in range(2) for kb in range(12)]
    for ks, (e, kb) in enumerate(order):
        acc = accs[e]
        if kb == 0:
            for t in range(3): hook(p.mfma(acc[t], X(2 * G + (cc & 1), t), SEL[e], None))
        if pre and ks in pre:
            for f in pre[ks]: f()
        res = [("ch", cc)] + ([("last", 0)] if cc == 11 else [])
        w = fs.get(base, e * TILE_B + kb * 1024, res)
        for t in range(3):
            i = p.mfma(acc[t], OH(kb // 3, kb % 3, t), w, acc[t])
            if ks == (barks if dwf else TAGK) and t == 0: i.wr.append(("T", cc))
            hook(i)
        for _ in range(units.count(ks)): step()
        if extra is not None and ks < 12: next(extra)
        if ks == 11 and extra is not None:
            for _ in extra: pass
        if ks == barks:
            while dgs: step()
            yield ks

def blk_parkload():
    p = Prog("parkld")
    for kb in range(3):
        for t in range(3): p.dsr(OH0(kb, t), vPK, (kb * 3 + t) * 1024, res=[("park", 0)])
    return p

ACCE2 = v(232, 4)
def blk_out(r0, last):
    from prep2 import sp_index
    p = Prog("out" + ("x" if r0 else "") + ("l" if last else ""))
    if os.environ.get("FINE") == p.name: p.fine = [207 if not last else 215, 0]; p.raw("s_memtime s[88:89]", "salu")
    fs = FragStream(p, NPRE); p.pacer = Pacer(p)
    roll = not last
    OPV = [int(x) for x in os.environ.get("OPV", "-1,-1,12,16").split(",")]
    n0 = len(p.ins); gen_sel(p)
    for i in p.ins[n0:]: i.prio = -10**6
    pv_start(p, 3)
    OUTT = [v(224, 4), v(228, 4), v(60, 4)]
    p.salu("s_add_u32", sU[4], sTab, 4096)
    for t in range(3):
        i = p.vld(OUTT[t], vL16, SRD_WS, sU[4], 1024 * t, res=[("tab", 0)]); i.lat = TABLAT
    p.salu("s_add_u32", sT[0], sY0, sWY7); p.salu("s_mul_i32", sT[0], sT[0], ROWB)
    p.salu("s_add_u32", sT[1], sX0, sWX7); p.salu("s_mul_i32", sT[1], sT[1], 768); p.salu("s_add_u32", sT[2], sT[0], sT[1])
    for t in range(3):
        for r in range(4): p.valu("v_add_u32", vOUT[t][r], sT[2], vOUT[t][r])
    if roll:
        p.salu("s_add_u32", sY0n, sY0, 14)
        gen_x_rows(p, sY0n)
        gen_x_cols(p, XVO, TMP)
        p.bar(wr=[("park", 0), ("ch", -1), ("xfr", 0), ("xfr", 1), ("xfr", 2), ("dfr", 0), ("dfr", 1)])
        for j in range(3): x_dma(p, XVO, j, XSB + xslot(j), [("xb", j)], [("xfr", j)], prio=-int(os.environ.get("XPRIO", "200")))
        for j in range(2): dwfrag_dma(p, j, DSL[j], [("dw", j)], [("dfr", j)])
    for k in range(4):
        if OPV[k] < 0: pv_group(p, 3, False, k)
    DD = []
    def post_pv_setup():
        if roll:
            for k in range(4):
                i = p.vld(DWA[4 * k:4 * k + 4], vL16, SRD_WS, sTab, k * 1024, res=[("tab", 0)]); i.lat = TABLAT
            sp_index(p, vIDX, TMP[6])
            p.valu("v_add_u32", vDAb, DSL[0], vL16)
            DD.append(roll_regs())
        else:
            n_ = TMP[0]; g_ = TMP[1]; ye = TMP[3]; xe = TMP[4]; tq = TMP[2]
            p.valu("v_and_b32", n_, 15, vTID); p.valu("v_lshrrev_b32", g_, 4, vTID)
            p.valu("v_min_u32", tq, 11, n_); p.valu("v_mul_u32_u24", vOE, STOK, tq); p.valu("v_lshl_add_u32", vOE, g_, 4, vOE); p.valu("v_add_u32", vOE, STASH, vOE)
            p.valu("v_lshrrev_b32", ye, 2, n_); p.valu("v_add_u32", ye, sSR3, ye); p.valu("v_mul_u32_u24", ye, 14, ye)
            p.valu("v_bfe_u32", tq, n_, 1, 1); p.valu("v_add3_u32", ye, ye, tq, 6)
            p.valu("v_and_b32", tq, 1, n_); p.valu("v_add3_u32", xe, tq, sX0, 6)
            p.salu("s_mov_b32", sT[3], ROWB)
            p.valu("v_mul_lo_u32", ye, ye, sT[3]); p.valu("v_mul_u32_u24", xe, 768, xe)
            p.salu("s_lshl_b32", sT[3], sW, 1); p.salu("s_and_b32", sT[4], sW, 1)
            p.valu("v_lshlrev_b32", tq, 5, g_); p.valu("v_add3_u32", vOUTE, ye, xe, tq); p.valu("v_add_u32", vOUTE, sT[3], vOUTE)
            p.mov(tq, OOB); p.valu("v_cndmask_b32", vOUTE, tq, vOUTE, sEx)
            p.valu("v_cmp_eq_u32", s(82, 2), 1, sT[4])
            for q in range(4):
                p.accr(SELW[q], SEL[0][q]); p.accr(tq, SEL[1][q]); p.valu("v_cndmask_b32", SELW[q], SELW[q], tq, s(82, 2))
            for j in range(6):
                p.salu("s_add_u32", sT[8], sXS, j * 1024)
                i = p.vld(XEF[j], vL16, SRD_WS, sT[8], 0, res=[("xs", 0)]); i.lat = TABLAT

    def pvk(k):
        pv_group(p, 3, False, k)
        if k == 3: post_pv_setup()
    pre0 = {}
    for k in range(4):
        if OPV[k] >= 0: pre0.setdefault(OPV[k], []).append(lambda k=k: pvk(k))
    if OPV[3] < 0: post_pv_setup()
    tile = [0]
    W0, WS_, X0_, XS_, D0_, S0, SS_ = [int(x) for x in os.environ.get("PACE", "6,6,46,6,1,4,7").split(",")]
    for cc in range(12):
        slot = (cc % 3) * SLOT if roll else (cc & 3) * SLOT
        br = vWB[cc % 3]
        if cc > 0: p.valu("v_add_u32", br, slot, vL16)
        t0 = tile[0]
        dwf = None
        if roll and cc >= 2:
            dwf = lambda hh, hook, j=cc - 2: dw_ctile_gen(p, DD[0], j, hh, vDAb, (j % 2) * 6144, xslot(j) + hh * 512, [("dw", j), ("xb", j)], hook)
        ex = None
        if last and cc % 2 == 1:
            def exgen(cc=cc):
                j = cc // 2
                if cc == 1:
                    for kb in range(12): p.dsr(OE[kb], vOE, kb * 64, res=[("sO", 0)])
                p.salu("s_cmp_ge_u32", sW, 2); p.salu("s_mov_b32", sT[1], ((cc - 1) & 3) * SLOT); p.salu("s_cselect_b32", sT[0], (cc & 3) * SLOT, sT[1])
                p.salu("s_add_u32", sT[0], sT[0], sW1)
                p.valu("v_add_u32", vXBL, sT[0], vL16)
                p.mfma(ACCE2, SELW, XEF[j], None)
                for kb in range(12):
                    w = fs.get(vXBL, kb * 1024, [("ch", cc - 1), ("ch", cc)])
                    p.pacer.tick(p.mfma(ACCE2, w, OE[kb], ACCE2))
                    yield kb
                sts = []
                for r in range(4):
                    p.cvtpk(ETMP[r], ACCE2[r], ACCE2[r])
                    def st(tag=None, r=r, j=j):
                        i = p.vst(ETMP[r], vOUTE, SRD_OUT, 0, j * 128 + r * 8, op="buffer_store_short")
                        if tag is not None: i.rd.append(tag)
                    sts.append(st)
                p.pacer.add(sts, 6, 6)
            ex = exgen()
        g = out_tiles(p, fs, cc, br, tile, dwf, ex, pre0 if cc == 0 else None)
        next(g)
        if roll:
            wr = [("ch", cc + 1), ("ch", cc - 1), ("fr", cc + 2)]
            if cc >= 1: wr += [("xb", cc - 1), ("dw", cc - 1)]
            if cc >= 2: wr += [("xb", cc - 2), ("xfr", cc + 1), ("dw", cc - 2), ("dfr", cc)]
            if cc == 10: wr += [("fr", 100)]
            if cc == 11: wr += [("fr", 101), ("ch", 100)]
            p.bar(rd=[("T", cc)], wr=wr)
            if 2 <= cc <= 11: p.pacer.add(dwfrag_list(p, cc, DSL[cc % 2], [("dw", cc)], [("dfr", cc)]), D0_, 2)
            if not os.environ.get("NOWDMA"):
                if 1 <= cc <= 9: p.pacer.add(ring_dma_list(p, cc + 2, slot=((cc + 2) % 3) * SLOT), W0, WS_)
            if cc == 10: p.pacer.add(ring_dma_list(p, 100, first=True, slot=0), W0, WS_)
            if cc == 11: p.pacer.add(ring_dma_list(p, 101, slot=SLOT), W0, 5)
            if 2 <= cc <= 10: p.pacer.add(x_dma_list(p, XVO, cc + 1, XSB + xslot(cc + 1), [("xb", cc + 1)], [("xfr", cc + 1)]), X0_, XS_)
            if cc == 8: code_touch(p, "L_round", "L_out", [v(212), v(213), v(214)], aDUM[2])
            if cc in [int(x) for x in os.environ.get("RETOUCH", "").split(",") if x]: code_touch(p, "L_out", "L_outl", [v(212), v(213), v(214)], aDUM[2])
        else:
            if cc in [int(x) for x in os.environ.get("RETOUCHL", "").split(",") if x]: code_touch(p, "L_outl", "L_codeend", [v(6), v(7), v(21)], aDUM[2])
            if cc < 11:
                wr = [("ch", cc + 1), ("ch", cc - 1), ("fr", cc + 3)]
                if cc == 0: wr += [("sO", 0)]
                p.bar(rd=[("T", cc)], wr=wr)
                if cc + 3 <= 11 and not os.environ.get("NOWDMA"): p.pacer.add(ring_dma_list(p, cc + 3, slot=((cc + 3) & 3) * SLOT), 1, 11)
        for _ in g: pass
        accs = [ACC3[t0 % 3], ACC3[(t0 + 1) % 3]]
        h = cc & 1; G = cc >> 1
        sts = []
        for t in range(3):
            for r in range(4):
                p.cvtpk(PK(t, r)[h], accs[0][t][r], accs[1][t][r])
                if h == 1 and not os.environ.get("NOSTORE"):
                    def st(tag=None, t=t, r=r, G=G):
                        i = p.vst(PK(t, r), vOUT[t][r], SRD_OUT, 0, G * 128, mods=os.environ.get("STMOD", "").replace("_", " "))
                        if tag is not None: i.rd.append(tag)
                    sts.append(st)
        p.pacer.add(sts, S0, SS_ if roll else 5)
    p.pacer.flush()
    if roll:
        round_setup(p, True)
        p.valu("v_add_u32", vWB[0], 0, vL16)
        for f in range(NPRE): p.dsr(WR(f), vWB[0], f * 1024, res=[("ch", 100)])
    return p
```

```python
from ir import *
from regs import *
from prep import WS_WO, WS_DW, TILE_B, dw_off, WS_USED
from fin import finalize

NPREP = 12
SRD_DBG = s(4, 4)
_pub = [0]
def publish(p, dword):
    p.raw("s_waitcnt vmcnt(0)\ns_barrier", "raw")
    _pub[0] += 1
    lab = f"L_pub{_pub[0]}"
    p.raw(f"s_cmp_lg_u32 s{sW.b}, 0\ns_cbranch_scc1 {lab}\nbuffer_wbl2 sc1\ns_waitcnt vmcnt(0)\n"
          f"v_mov_b32 v2, 1\nv_mov_b32 v3, {4*dword}\ns_mov_b64 exec, 1\nbuffer_atomic_add v2, v3, s[4:7], 0 offen sc1\ns_waitcnt vmcnt(0)\ns_mov_b64 exec, -1\n{lab}:", "raw")

def build_prep_blocks():
    B = {}
    SW = s(24, 4)
    import os
    p = Prog("pq")
    p.label("L_prep")
    if os.environ.get("PREPT"): p.raw("s_memtime s[90:91]\ns_waitcnt lgkmcnt(0)", "raw")
    p.salu("s_and_b32", s(30), S_WG, 3); p.salu("s_lshr_b32", s(31), S_WG, 2)
    p.salu("s_mov_b32", s(24), s(42)); p.salu("s_mov_b32", s(25), s(43)); p.salu("s_mov_b32", s(26), 384 * 2304); p.salu("s_mov_b32", s(27), 0x20000)
    p.salu("s_cmp_eq_u32", s(31), 0); p.salu("s_cselect_b32", s(32), 384, 0)
    p.salu("s_cmp_eq_u32", s(31), 2); p.salu("s_cselect_b32", s(32), 768, s(32))
    p.salu("s_mul_i32", s(33), s(30), 96); p.salu("s_add_u32", s(32), s(32), s(33)); p.salu("s_lshl_b32", s(32), s(32), 1)
    p.salu("s_mul_i32", s(33), s(30), 18); p.salu("s_mul_i32", s(34), s(31), 6); p.salu("s_add_u32", s(33), s(33), s(34))
    p.salu("s_mul_i32", s(35), sW, 18)
    p.salu("s_mov_b32", s(36), 5462); p.salu("s_mov_b32", s(37), 2304)
    for k in range(18):
        q, row, pc = v(4), v(5), v(6)
        p.salu("s_add_u32", s(38), s(35), k); p.salu("s_lshl_b32", s(39), s(38), 6)
        p.valu("v_add_u32", q, s(39), vTID)
        p.valu("v_mul_u32_u24", row, s(36), q); p.valu("v_lshrrev_b32", row, 16, row)
        p.valu("v_mul_u32_u24", pc, 12, row); p.valu("v_sub_u32", pc, q, pc)
        d = v(8 + k)
        p.valu("v_mul_u32_u24", d, s(37), row); p.valu("v_lshl_add_u32", d, pc, 4, d)
        p.salu("s_lshl_b32", "m0", s(38), 10)
        p.dma(d, SW, s(32), 0, res=[("pw", 0)])
    p.bar(wr=[("pw", 0)])
    B["pq"] = p
    def tile_fast(name):
        t = Prog(name)
        g_, r_, c_ = v(4), v(5), v(6)
        t.valu("v_lshrrev_b32", g_, 4, vTID); t.valu("v_bfe_u32", r_, vTID, 2, 2); t.valu("v_and_b32", c_, 3, vTID)
        b0, b1 = v(7), v(8)
        t.valu("v_lshrrev_b32", b0, 1, r_); t.valu("v_lshlrev_b32", b0, 4, b0); t.valu("v_and_b32", b1, 1, r_); t.valu("v_add_u32", b0, b0, b1)
        t.valu("v_lshl_add_u32", b0, g_, 2, b0); t.valu("v_mul_u32_u24", b0, 192, b0); t.valu("v_lshl_add_u32", b0, c_, 3, b0)
        t.salu("s_lshl_b32", s(47), s(46), 5); t.valu("v_add_u32", b0, s(47), b0)
        t.valu("v_add_u32", b1, 49152, b0)
        for q in range(4): t.mov(v(12 + q), 0x3f803f80)
        for kb in range(12):
            for hf in range(2):
                row = 64 * (kb >> 1) + 2 * (kb & 1) + 32 * hf
                base, off = (b0, row * 192) if row < 256 else (b1, (row - 256) * 192)
                t.dsr(v(64 + kb * 4 + 2 * hf, 2), base, off, res=[("pw", 0)], op="ds_read_b64_tr_b16")
        acc = v(16, 4)
        for kb in range(12): t.mfma(acc, v(12, 4), v(64 + kb * 4, 4), None if kb == 0 else acc)
        mean = v(20)
        t.valu("v_mul_f32", mean, 0x3b2aaaab, acc[0])
        for k in range(48):
            x = v(64 + k); lo = v(24 + (k % 4) * 2); hi = v(25 + (k % 4) * 2)
            t.valu("v_lshlrev_b32", lo, 16, x); t.valu("v_and_b32", hi, 0xffff0000, x)
            t.valu("v_sub_f32", lo, lo, mean); t.valu("v_sub_f32", hi, hi, mean)
            t.cvtpk(x, lo, hi)
        for kb in range(12):
            t.salu("s_add_u32", s(39), s(48), kb * 1024)
            t.vst(v(64 + kb * 4, 4), vL16, SRD_WS, s(39), 0)
        return t
    def tile_body(name, wo):
        t = Prog(name)
        i_, g_ = v(4), v(5)
        t.valu("v_and_b32", i_, 15, vTID); t.valu("v_lshrrev_b32", g_, 4, vTID)
        b0 = v(6)
        t.valu("v_lshlrev_b32", b0, 9, g_)
        t.valu("v_lshl_add_u32", b0, i_, 3, b0)
        t.salu("s_lshl_b32", s(47), sW, 1); t.valu("v_add_u32", b0, s(47), b0)
        for kb in range(12):
            for j in range(8):
                row = 32 * kb + 16 * (j >> 2) + (j & 3)
                t.dsr(v(64 + kb * 8 + j), b0, row * 128, res=[("pw", 0)], op="ds_read_u16")
        for kb in range(12):
            for q in range(4):
                t.valu("v_lshl_or_b32", v(160 + kb * 4 + q), v(64 + kb * 8 + 2 * q + 1), 16, v(64 + kb * 8 + 2 * q))
        for kb in range(12):
            t.salu("s_add_u32", s(39), s(48), kb * 1024)
            t.vst(v(160 + kb * 4, 4), vL16, SRD_WS, s(39), 0)
        return t
    p = Prog("pq_a"); p.salu("s_mov_b32", s(46), sW)
    p.salu("s_add_u32", s(48), s(33), s(46)); p.salu("s_mul_i32", s(48), s(48), TILE_B)
    p.extend(tile_fast("t")); B["pq_a"] = p
    p = Prog("pq_b")
    p.raw(f"s_cmp_ge_u32 s{sW.b}, 2\ns_cbranch_scc1 L_pq_done", "br", rd=[sW], wr=["scc"])
    p.salu("s_add_u32", s(46), sW, 4)
    p.salu("s_add_u32", s(48), s(33), s(46)); p.salu("s_mul_i32", s(48), s(48), TILE_B)
    p.extend(tile_fast("t"))
    p.label("L_pq_done")
    publish(p, 0)
    if os.environ.get("PREPT"):
        p.raw("s_memtime s[92:93]\ns_waitcnt lgkmcnt(0)\ns_sub_u32 s92, s92, s90\nv_mov_b32 v2, s92\ns_lshl_b32 s93, s2, 2\ns_add_u32 s93, s93, 32\nv_mov_b32 v3, s93\nbuffer_store_dword v2, v3, s[4:7], 0 offen\ns_waitcnt vmcnt(0)", "raw")
    p.raw("s_barrier\ns_cmp_ge_u32 s2, 6\ns_cbranch_scc1 L_prep_dw", "br", rd=[S_WG], wr=["scc"])
    B["pq_b"] = p
    p = Prog("pwo")
    p.salu("s_mov_b32", s(24), s(44)); p.salu("s_mov_b32", s(25), s(45)); p.salu("s_mov_b32", s(26), 384 * 768)
    p.salu("s_lshl_b32", s(32), S_WG, 7)
    p.salu("s_mul_i32", s(35), sW, 12)
    for k in range(12):
        q, row, pc = v(4), v(5), v(6)
        p.salu("s_add_u32", s(38), s(35), k); p.salu("s_lshl_b32", s(39), s(38), 6)
        p.valu("v_add_u32", q, s(39), vTID)
        p.valu("v_lshrrev_b32", row, 3, q); p.valu("v_and_b32", pc, 7, q)
        d = v(8 + k)
        p.valu("v_mul_u32_u24", d, 768, row); p.valu("v_lshl_add_u32", d, pc, 4, d)
        p.salu("s_lshl_b32", "m0", s(38), 10)
        p.dma(d, SW, s(32), 0, res=[("pw", 0)])
    p.bar(wr=[("pw", 0)])
    p.salu("s_lshl_b32", s(48), S_WG, 2); p.salu("s_add_u32", s(48), s(48), sW); p.salu("s_mul_i32", s(48), s(48), TILE_B); p.salu("s_add_u32", s(48), s(48), WS_WO)
    p.extend(tile_body("t", True))
    publish(p, 1)
    p.raw("s_endpgm", "br")
    B["pwo"] = p
    d = Prog("pdw")
    d.label("L_prep_dw")
    d.salu("s_mov_b32", s(24), s(40)); d.salu("s_mov_b32", s(25), s(41)); d.salu("s_mov_b32", s(26), 9 * 768)
    d.salu("s_sub_u32", s(21), S_WG, 6); d.salu("s_lshl_b32", s(21), s(21), 2); d.salu("s_add_u32", s(21), s(21), sW)
    d.salu("s_mul_i32", s(22), s(21), 3072); d.salu("s_add_u32", s(22), s(22), WS_DW)
    i_, g_ = v(3), v(4)
    d.valu("v_and_b32", i_, 15, vTID); d.valu("v_lshrrev_b32", g_, 4, vTID)
    dw_masks(d, i_, g_, [v(20 + q) for q in range(4)], [v(8), v(9), v(10), v(11), v(12)])
    sp_masks(d, i_, [v(44 + q) for q in range(4)], v(8))
    d.salu("s_lshl_b32", s(31), s(21), 5)
    for sx in range(2):
        d.valu("v_add_u32", v(14), 4 * sx, g_)
        d.valu("v_mul_u32_u24", v(15), 768, v(14)); d.valu("v_lshl_add_u32", v(16), i_, 1, v(15))
        d.vld(v(17), v(16), SW, s(31), op="buffer_load_ushort")
        for q in range(4): d.valu("v_and_b32", v(24 + 4 * sx + q), v(17), v(44 + q))
        d.salu("s_add_u32", s(32), s(22), sx * 1024)
        d.vst(v(24 + 4 * sx, 4), vL16, SRD_WS, s(32), 0)
    d.valu("v_lshrrev_b32", v(13), 1, g_)
    d.valu("v_add_u32", v(14), 8, v(13))
    d.valu("v_mul_u32_u24", v(15), 768, v(14)); d.valu("v_lshl_add_u32", v(16), i_, 1, v(15))
    d.vld(v(17), v(16), SW, s(31), op="buffer_load_ushort")
    d.valu("v_cmp_eq_u32", "vcc", 9, v(14)); d.mov(v(18), 0x3f80)
    d.valu("v_cndmask_b32", v(17), v(17), v(18), "vcc")
    d.valu("v_lshl_or_b32", v(17), v(17), 16, v(17))
    for q in range(4): d.valu("v_and_b32", v(32 + q), v(17), v(20 + q))
    d.salu("s_add_u32", s(32), s(22), 2048)
    d.vst(v(32, 4), vL16, SRD_WS, s(32), 0)
    publish(d, 1)
    d.raw("s_endpgm", "br")
    B["pdw"] = d
    order = ["pq", "pq_a", "pq_b", "pwo", "pdw"]
    F = finalize(B, [("pq", {}), ("pq_a", {}), ("pq_b", {}), ("pwo", {}), ("pq", {}), ("pq_a", {}), ("pq_b", {}), ("pdw", {})], verbose=False)
    lines = []
    for n in order:
        for i in F[n].ins: lines += i.text.split("\n")
    return lines

def dw_masks(p, i_, g_, M, T):
    p.valu("v_and_b32", T[0], 1, g_); p.valu("v_lshrrev_b32", T[1], 3, i_)
    p.valu("v_cmp_eq_u32", "vcc", T[0], T[1])
    p.valu("v_and_b32", T[2], 1, i_); p.valu("v_lshlrev_b32", T[2], 4, T[2])
    p.mov(T[3], 0xffff); p.valu("v_lshlrev_b32", T[3], T[2], T[3])
    p.valu("v_cndmask_b32", T[3], 0, T[3], "vcc")
    p.valu("v_bfe_u32", T[4], i_, 1, 2)
    for q in range(4):
        p.valu("v_cmp_eq_u32", "vcc", q, T[4])
        p.valu("v_cndmask_b32", M[q], 0, T[3], "vcc")

def sp_masks(p, i_, M, t):
    p.valu("v_lshrrev_b32", t, 2, i_)
    for q in range(4):
        p.valu("v_cmp_eq_u32", "vcc", q, t)
        p.mov(M[q], 0xffff); p.valu("v_cndmask_b32", M[q], 0, M[q], "vcc")

def sp_index(p, d, t):
    p.valu("v_and_b32", d, 3, vTID); p.valu("v_xor_b32", t, 1, d); p.valu("v_lshl_or_b32", d, t, 2, d)
    p.valu("v_mul_u32_u24", d, 0x1111, d)
```

```python
from ir import *

RING = 0; SLOT = 24576
STOK = 2320
LDS_TOTAL = 163840
STASH = LDS_TOTAL - 12 * STOK
PARK = 98304
DSL = [73728, 73728 + 6144]
XSB = 86016
def xslot(j): return (j % 3) * 16384
PXS = [16384 * i for i in range(6)]
TBL = STASH + 4096
EST = 98304
ESTQ = 16 * 784

S_KARG = s(0, 2); S_WG = s(2)
SRD_X = s(8, 4); SRD_WS = s(12, 4); SRD_OUT = s(16, 4)
sW = s(20); sRound = s(21)
sW6 = s(23); sSrc = s(24); sSrc2 = s(25)
sS0 = s(27); sSl = [s(28), s(29), s(30), s(31)]
sC = s(32); sY0 = s(33); sX0 = s(34); sSR3 = s(35); sQX = s(36)
sT = [s(37 + i) for i in range(12)]
sM1 = s(50, 2); sM2 = s(52, 2); sM3 = s(54, 2)
sEx = s(56, 2); sEx0 = s(58, 2)
sXS = s(60); sNegC = s(61); sWG = s(63)
sEoff = [s(66 + j) for j in range(5)]
sH192 = s(71); sW1 = s(72); sWY7 = s(73); sWX7 = s(74)
sI384 = s(75); sEps = s(76)
sTab = s(77)
sY0n = s(78)
sPf = s(79)
sW4k = s(80)
sRow = [s(42), s(43), s(46), s(47)]
sPfB = s(87)
sRB = s(22)
sSkip1 = s(26)
sU = [s(81 + i) for i in range(6)]

def X(kb, t): return a(kb * 12 + t * 4, 4)
E0 = 144
def XE(kb): return a(E0 + kb * 4, 4)
def OH0(kb, t): return a(E0 + (kb * 3 + t) * 4, 4)
O1B = 192
def OH1(kb, t): return a(O1B + (kb * 3 + t) * 4, 4)
WRB = 228; NWR = 6
def WR(i): return a(WRB + (i % NWR) * 4, 4)
aDUM = [a(252), a(253), a(254), a(255)]

vTID = v(0); vL16 = v(1)
vWB = [v(2), v(3), v(4)]
RC = [v(5), v(6), v(7)]
def RK(t, r): return v(8 + t * 4 + r)
vSQ = v(20); vSV = v(21); vSW = v(22); vGM = v(23); RCE = v(24); vXB = v(25)
TMP = [v(26 + i) for i in range(10)]
ACC = [[v(36 + st * 12 + t * 4, 4) for t in range(3)] for st in range(2)]
ACCE = v(60, 4)
OH2B = 64
def OH2(kb, t): return v(OH2B + (kb * 3 + t) * 4, 4)
RKB = 100
def Qf(t, s3): return v(RKB + (t * 3 + s3) * 4, 4)
def Vf(a_, u): return v(RKB + a_ * 8 + u * 4, 4)
RQB = 148
def Kf(t, s3): return v(RQB + [[24, 28, 32], [0, 4, 8], [12, 16, 20]][s3][t], 4)
def Pf(qt, u): return v(RQB + qt * 8 + u * 4, 4)
RSB = 184
def Sf(kt, qt): return v(RSB + (qt * 4 + kt) * 4, 4)
def KE(s3): return Sf(s3, 0)
def QE(s3): return Sf(s3, 1)
OACC = [[v(RSB + 48 + i * 4, 4) for i in range(4)] + [v(RSB + i * 4, 4) for i in range(2)],
        [v(RSB + 8 + i * 4, 4) for i in range(2)] + [v(RSB + 16 + i * 4, 4) for i in range(4)]]
LINV = [v(248 + i) for i in range(4)]
def OH3(kb, t):
    if kb < 2: return v(RQB + t * 8 + kb * 4, 4)
    return [v(RQB + 32, 4), v(252, 4), v(RQB + 24, 4)][t]
def OH(h, kb, t): return [OH0, OH1, OH2, OH3][h](kb, t)

SEL = [a(180, 4), a(184, 4)]
vOUT = [[v(RSB + 40 + t * 4 + r) if t < 2 else v(60 + r) for r in range(4)] for t in range(3)]
ACC3 = ACC + [[v(100 + t * 4, 4) for t in range(3)]]
_PKB = [208, 210, 244, 246, 248, 250, 24, 26, 28, 30, 32, 204]
def PK(t, r): return v(_PKB[t * 4 + r], 2)
DWA = v(112, 16)
def DWADDR(t, pp): return DWA[t * 5 + pp]
DA = [v(128 + i * 4, 4) for i in range(3)]
DB8 = [v(184, 8), v(192, 8), v(140, 8), v(12, 8)]; DB4 = [v(200, 4), v(176, 4)]
vIDX = v(6)
DACC = [v(232 + t * 4, 4) for t in range(3)]
XVO = [v(8 + i) for i in range(4)]
DT = [v(212 + i) for i in range(4)]
SUMV = [v(12), v(13), v(14)]; SSQ = [v(15), v(16), v(17)]
vDAb = v(5)
```

```python
from ir import *
import heapq

LDS_LAT = 110
WBON = int(__import__('os').environ.get('WBON', '100000'))
URG = bool(__import__('os').environ.get('URG'))
SV_LAT = int(__import__('os').environ.get('SVLAT', '20'))
PIN_SLACK = int(__import__('os').environ.get('PINSLACK', '140'))
VLD_LAT = 900
DMA_LAT = int(__import__("os").environ.get("DMALAT", "750"))

def is_pseudo(r): return r[0] not in ("v", "a", "s", "vcc", "scc", "exec", "m0")

def cost_of(i, prev_kind):
    k = i.kind
    if k == "mfma": return 8
    if k in ("trans", "perm"): c = 8
    elif k == "valu": c = 4
    elif k in SCALAR_KINDS: c = 4
    elif i.cost is not None: c = i.cost
    else: c = 4
    if (k in DS_KINDS or k in VM_KINDS) and prev_kind in VALU_KINDS: c += 8
    if k in DS_KINDS and prev_kind in DS_KINDS: c += 4
    if k in VM_KINDS and prev_kind == "salu": c += 4
    if k in VM_KINDS and prev_kind in DS_KINDS: c += 4
    return c

def raw_lat(p, c, reg):
    pk, ck = p.kind, c.kind
    if p.lat is not None: return p.lat
    if pk == "dsr": return LDS_LAT
    if pk == "dsp": return 70
    if pk == "dsw": return 40
    if pk == "vld": return VLD_LAT
    if pk == "dma": return DMA_LAT
    if pk == "vst": return 400
    if pk == "mfma":
        if ck == "mfma" and c.mc and reg in c.mc: return 16
        return 40
    if pk in VALU_KINDS:
        base = 8 if pk != "valu" else 4
        if ck == "mfma": return base + 8
        if ck == "perm": return base + 8
        if pk == "trans": return base + 4
        if ck == "salu": return base + 12
        if reg[0] in ("s", "vcc"): return base + 8
        return base
    if pk == "salu":
        if ck in VM_KINDS: return SV_LAT
        return 4
    if pk == "bar": return 4
    return 4

def build_deps(ins):
    n = len(ins)
    preds = [dict() for _ in range(n)]
    lastw = {}; readers = {}
    last_fence = None
    for j, c in enumerate(ins):
        def edge(p, lat):
            if p == j: return
            if preds[j].get(p, -1) < lat: preds[j][p] = lat
        for r in c.rd:
            if r in lastw: edge(lastw[r], raw_lat(ins[lastw[r]], c, r))
        for r in c.wr:
            if r in lastw:
                p = ins[lastw[r]]
                if p.kind == "mfma" and c.kind == "mfma": lat = 4
                elif p.kind == "mfma": lat = 40
                elif p.kind in ("dsr", "dsp", "vld", "dma", "dsw", "vst"): lat = raw_lat(p, c, r) if not (p.kind == c.kind and is_pseudo(r)) else 0
                else: lat = 0
                edge(lastw[r], lat)
            for q in readers.get(r, ()):
                p = ins[q]
                if p.kind == "mfma" and p.mc and r in p.mc and c.kind in VALU_KINDS: lat = 20
                elif p.kind == "dsr" and is_pseudo(r): lat = LDS_LAT
                elif p.kind == "vst" and c.kind in VALU_KINDS and not is_pseudo(r): lat = p.cost if p.cost else 8
                elif p.kind == "dsw" and not is_pseudo(r): lat = p.cost
                else: lat = 0
                edge(q, lat)
        for r in c.rd: readers.setdefault(r, []).append(j)
        for r in c.wr:
            lastw[r] = j; readers[r] = []
    return preds

def keep_order_classes(ins, preds):
    last = {}
    for j, c in enumerate(ins):
        cls = None
        if c.kind == "bar": cls = "bar"
        elif c.kind in VM_KINDS: cls = "vm"
        if cls:
            if cls in last: preds[j].setdefault(last[cls], 0)
            last[cls] = j

def schedule(prog, vm_in_order=True, verbose=False, lds_lat=None):
    ins = prog.ins
    n = len(ins)
    for i in ins: assert i.kind not in ("label", "br", "wait", "nop"), i
    preds = build_deps(ins)
    if vm_in_order: keep_order_classes(ins, preds)
    succs = [[] for _ in range(n)]
    for j in range(n):
        for p, l in preds[j].items(): succs[p].append((j, l))
    mf = [j for j in range(n) if ins[j].kind == "mfma"]
    nom = {}
    for k, j in enumerate(mf): nom[j] = 16 * k
    tend = 16 * len(mf) + 200
    pos = {id(ins[j]): j for j in mf}
    INF = 10**9
    dl = [INF] * n
    for j in range(n - 1, -1, -1):
        d = tend
        if j in nom: d = nom[j]
        for (sj, l) in succs[j]:
            d = min(d, dl[sj] - max(l, 4))
        dl[j] = d + ins[j].prio
        pin = ins[j].pin
        if pin is not None and id(pin) in pos: dl[j] = min(dl[j], nom[pos[id(pin)]] + PIN_SLACK)
    npred = [len(preds[j]) for j in range(n)]
    es = [0] * n
    ready_m = []; ready_f = []
    def push(j):
        if ins[j].kind == "mfma": ready_m.append(j)
        else: ready_f.append(j)
    for j in range(n):
        if npred[j] == 0: push(j)
    out = []
    t_vec = 0
    t_sc = 0
    m_free = 0
    t_valu = 0
    prev_kind = None
    issued = 0
    stall_m = 0
    times = []
    lds_free = 0
    LDSQ = int(__import__("os").environ.get("LDSQ", "12"))
    def lds_cost(c):
        if c.kind == "dsr": return 16 if "b128" in c.text else 8
        if c.kind == "dsw": return 16
        if c.kind == "dsp": return 8
        return 0
    while issued < n:
        bm = None; tM = None
        if ready_m:
            best = None
            for j in ready_m:
                tj = max(t_vec, m_free, es[j])
                key = (tj, j)
                if best is None or key < best[0]: best = (key, j)
            bm = best[1]; tM = best[0][0]
        cand = None
        bestk = None
        for j in ready_f:
            c = ins[j]
            sc = c.kind in SCALAR_KINDS
            t0 = max(t_sc if sc else t_vec, es[j])
            if c.kind in VALU_KINDS: t0 = max(t0, t_valu)
            cst = cost_of(c, prev_kind)
            fin = t0 + cst
            if c.kind in DS_KINDS and tM is not None and lds_free - t0 > LDSQ and dl[j] > t0 + 24: continue
            if tM is not None:
                fits = fin <= tM
                if not fits and cst > 8 and prev_kind == "mfma" and c.kind in ("vst", "dsw") and t0 <= t_vec: fits = True
                urgent = dl[j] + 0 < dl[bm] - 0 and dl[j] <= t0 + 8 and (tM > t_vec or URG)
                if not fits and not urgent: continue
            bonus = 0
            if (c.kind in DS_KINDS or c.kind in VM_KINDS):
                if prev_kind == "mfma" or prev_kind in SCALAR_KINDS:
                    bonus = -48
                    if c.kind == "dsr" and c.wr and c.wr[0][0] == "a" and 228 <= c.wr[0][1] < 252: bonus = -WBON
                else: bonus = 64
                if c.kind == "dsr" and (tM is None or tM - t_vec > 40) and t0 <= t_vec and lds_free - t0 <= 16: bonus = -10**6
            key = (t0 > (t_sc if sc else t_vec) + 0, dl[j] + bonus, j) if tM is not None else (t0, dl[j] + bonus, j)
            if bestk is None or key < bestk: bestk = key; cand = j
        if cand is not None:
            j = cand; c = ins[j]
            sc = c.kind in SCALAR_KINDS
            t0 = max(t_sc if sc else t_vec, es[j])
            if c.kind in VALU_KINDS: t0 = max(t0, t_valu)
            cst = cost_of(c, prev_kind)
            t_sc = t0 + cst
            t_vec = max(t_vec, t_sc) if sc else t0 + cst
            t_sc = max(t_sc, t_sc)
            ready_f.remove(j)
            if c.kind in DS_KINDS: lds_free = max(lds_free, t0) + lds_cost(c)
        else:
            assert bm is not None, "deadlock in scheduler"
            j = bm; c = ins[j]; t0 = tM
            if t0 > m_free and issued > 0 and m_free > 0: stall_m += t0 - m_free
            m_free = t0 + 16
            t_vec = t0 + 8; t_sc = t0 + 4
            t_valu = t0 + (12 if "smfmac" in c.text else 8)
            ready_m.remove(j)
        out.append(c); times.append(t0)
        prev_kind = c.kind
        issued += 1
        tq = max(t0, lds_free - 16) if c.kind == "dsr" else t0
        for (sj, l) in succs[j]:
            es[sj] = max(es[sj], (tq if l >= LDS_LAT else t0) + l)
            npred[sj] -= 1
            if npred[sj] == 0: push(sj)
    total = max(t_vec, m_free)
    if verbose:
        from collections import Counter
        cnt = Counter(i.kind for i in ins)
        print(f"[sched] {prog.name}: n={n} mfma={len(mf)} est={total} cyc (mfma-bound {16*len(mf)}), stall={stall_m}  {dict(cnt)}")
    p2 = Prog(prog.name); p2.ins = out;
    p2.est = total
    return p2
```

```python
import sys, os
from kv2b import *
from sched import schedule
from fin import finalize
from emit import *

def glue(name, text, kind="br", rd=(), wr=()):
    p = Prog(name); p.raw(text, kind, rd=rd, wr=list(wr) + ["scc"]); return p

def waitblk(name, lg=None, vm=None):
    from fin import wait_text
    p = Prog(name); w = I(wait_text(lg, vm), "wait"); w.need = (lg, vm); p.ins.append(w); return p

DUMP_REG = 16 << 20
DUMP_LDS = 160 << 20
def dump_lines():
    L = ["s_waitcnt vmcnt(0) lgkmcnt(0)", "s_nop 15", "s_nop 15", "s_barrier"]
    L += ["s_load_dwordx2 s[80:81], s[0:1], 48", "s_waitcnt lgkmcnt(0)", "s_mov_b32 s84, s80", "s_mov_b32 s85, s81", "s_mov_b32 s86, 0x1a000000", "s_mov_b32 s87, 0x20000"]
    L += ["s_lshl_b32 s88, s2, 2", f"s_add_u32 s88, s88, s{sW.b}", "s_lshl_b32 s88, s88, 17", f"s_add_u32 s88, s88, {DUMP_REG}"]
    L += ["v_accvgpr_write_b32 a255, v1", "v_accvgpr_write_b32 a254, v0", "s_nop 4", "v_lshrrev_b32 v1, 2, v1", "s_nop 4"]
    for r in range(512):
        if r < 256:
            if r == 1: continue
            L += [f"s_add_u32 s89, s88, {r*256}", f"buffer_store_dword v{r}, v1, s[84:87], s89 offen"]
        else:
            L += [f"v_accvgpr_read_b32 v0, a{r-256}", f"s_add_u32 s89, s88, {r*256}", "s_nop 1", "buffer_store_dword v0, v1, s[84:87], s89 offen", "s_waitcnt vmcnt(0)"]
        if r % 32 == 31: L.append("s_waitcnt vmcnt(0)")
    L += ["s_waitcnt vmcnt(0)", f"s_mul_i32 s88, s2, 163840", f"s_add_u32 s88, s88, {DUMP_LDS}", f"s_mul_i32 s90, s{sW.b}, 40960", "s_add_u32 s88, s88, s90",
          "v_lshlrev_b32 v1, 2, v1", "v_add_u32 v2, s90, v1"]
    for k in range(40):
        L += [f"ds_read_b128 v[4:7], v2 offset:{k*1024}", "s_waitcnt lgkmcnt(0)", f"s_add_u32 s89, s88, {k*1024}", "buffer_store_dwordx4 v[4:7], v1, s[84:87], s89 offen", "s_waitcnt vmcnt(0)"]
    L += ["s_endpgm"]
    return L

STAMP_LDS = 135168
STAMP_WS = 8 << 20
def stamp_blk(name):
    p = Prog(name)
    p.raw("s_memtime s[90:91]", "raw", wr=[s(90, 2)])
    w = I("s_waitcnt lgkmcnt(0)", "wait"); w.need = (0, None); p.ins.append(w)
    if name == "st_0":
        p.salu("s_mov_b32", s(3), s(90)); p.salu("s_add_u32", s(92), s(92), 4)
        return p
    if name == "st_pro_b":
        p.mov(TMP[0], s(3)); p.salu("s_sub_u32", s(93), s(92), 4); p.mov(TMP[1], s(93)); p.dsw(TMP[1], TMP[0], 0)
    p.mov(TMP[0], s(90)); p.mov(TMP[1], s(92))
    p.dsw(TMP[1], TMP[0], 0)
    p.salu("s_add_u32", s(92), s(92), 4)
    return p
def fine_dump(name, vreg, n):
    p = Prog(name)
    if os.environ.get("FIRSTONLY"):
        p.raw(f"s_cmp_lg_u32 s{sRound.b}, {os.environ['FIRSTONLY']}\ns_cbranch_scc1 L_skipfd_{name}", "br")
    w = I("s_waitcnt lgkmcnt(0)", "wait"); w.need = (0, None); p.ins.append(w)
    p.raw(f"v_writelane_b32 v{vreg}, s88, {n}\ns_memtime s[88:89]\ns_waitcnt lgkmcnt(0)\nv_writelane_b32 v{vreg}, s88, {n+1}", "valu")
    p.salu("s_mul_i32", s(93), sW, 208); p.salu("s_add_u32", s(93), s(93), STAMP_LDS + 4 * 30)
    p.valu("v_lshlrev_b32", TMP[0], 2, vTID); p.valu("v_add_u32", TMP[0], s(93), TMP[0])
    p.raw(f"v_cmp_gt_u32 vcc, {n+2}, v0\ns_and_saveexec_b64 s[94:95], vcc\nds_write_b32 v{TMP[0].b}, v{vreg}\ns_mov_b64 exec, s[94:95]\ns_waitcnt lgkmcnt(0)", "valu")
    if os.environ.get("FIRSTONLY"): p.raw(f"L_skipfd_{name}:", "label")
    return p
def stamp_init():
    p = Prog("st_init")
    p.salu("s_mul_i32", s(92), sW, 208); p.salu("s_add_u32", s(92), s(92), STAMP_LDS)
    p.raw("s_memrealtime s[64:65]\ns_waitcnt lgkmcnt(0)", "salu", wr=[s(64, 2)])
    return p
def stamp_dump():
    L = ["s_waitcnt vmcnt(0) lgkmcnt(0)", "s_memrealtime s[90:91]", "s_waitcnt lgkmcnt(0)", "s_sub_u32 s90, s90, s64",
         f"s_mul_i32 s93, s{sW.b}, 208", f"s_add_u32 s93, s93, {STAMP_LDS + 4 * 51}", "v_mov_b32 v2, s90", "v_mov_b32 v3, s93", "ds_write_b32 v3, v2", "s_waitcnt lgkmcnt(0)",
         "s_barrier", "s_load_dwordx2 s[80:81], s[0:1], 48", "s_waitcnt lgkmcnt(0)",
         "s_mov_b32 s84, s80", "s_mov_b32 s85, s81", "s_mov_b32 s86, 0x1a000000", "s_mov_b32 s87, 0x20000",
         "v_lshlrev_b32 v2, 2, v0", f"v_add_u32 v3, {STAMP_LDS}, v2", f"s_mul_i32 s88, s{sW.b}, 208", "v_add_u32 v3, s88, v3",
         "ds_read_b32 v4, v3", "s_lshl_b32 s89, s2, 10", f"s_lshl_b32 s88, s{sW.b}, 8", "s_add_u32 s89, s89, s88", f"s_add_u32 s89, s89, {STAMP_WS}",
         "s_waitcnt lgkmcnt(0)", "v_cmp_gt_u32 vcc, 52, v0", "s_and_saveexec_b64 s[94:95], vcc", "buffer_store_dword v4, v2, s[84:87], s89 offen", "s_waitcnt vmcnt(0)"]
    return L

def build(do_sched=True, stop_after=None, verbose=True, dump=None, stamps=False):
    B = {}
    B["entry"], B["entry2"] = blk_entry()
    B["pro"], B["pro_b"] = blk_pro()
    B["parkxe"] = blk_park_xe()
    B["chk0"] = flag_check("chk0", vFLAG, 0, NPREP)
    B["chk1"] = flag_check("chk1", v(255), 1, NPREP)
    for r0 in (True, False):
        for hp in (None, 0, 1, 2):
            b = blk_b1(hp, r0); B[b.name] = b
        b = blk_b2(r0); B[b.name] = b
    B["parkld"] = blk_parkload(); B["out"] = blk_out(False, False); B["outl"] = blk_out(False, True)
    global FINEINFO
    FINEINFO = {n: b.fine for n, b in B.items() if getattr(b, "fine", None)}
    if do_sched:
        for n in list(B):
            if n in ("entry", "entry2", "chk0", "chk1", "parkxe", "parkld"): continue
            B[n] = schedule(B[n], verbose=verbose)
    if os.environ.get("FINE2"):
        nm, a0, st = os.environ["FINE2"].split(":"); a0 = int(a0); st = int(st)
        vr = {"out": 207, "outx": 207, "outl": 215, "b2": 255, "b2x": 255}.get(nm, 255)
        k = 0; n = 0
        for i in B[nm].ins:
            if i.kind == "mfma":
                n += 1
                if n >= a0 and (n - a0) % st == 0 and k < 17:
                    i.text += f"\nv_writelane_b32 v{vr}, s88, {k}\ns_memtime s[88:89]"; k += 1
        FINEINFO[nm] = [vr, k]
        os.environ["FINE"] = nm
    order = []
    G = {}
    def g(name, text, **kw): G[name] = glue(name, text, **kw); order.append(name)
    def lab(n): G["lab_" + n] = Prog("lab_" + n); G["lab_" + n].label("L_" + n); order.append("lab_" + n)
    order += ["entry", "PREP", "entry2"]; lab("pro"); order += ["pro", "chk0"]; lab("pro_b"); order += ["pro_b"]
    seq0 = ["b1x_a", "B2X", "b1x_0", "B2X", "b1x_1", "B2X", "b1x_2", "B2X"]
    def heads(x):
        sfx = "x" if x else ""
        names = [f"b1{sfx}_a", f"b1{sfx}_0", f"b1{sfx}_1", f"b1{sfx}_2"]
        L = f"L_b2{sfx}"
        for k, nm in enumerate(names):
            G[f"lab_{nm}"] = Prog(f"lab_{nm}"); G[f"lab_{nm}"].label(f"L_{nm}"); order.append(f"lab_{nm}")
            order.append(nm)
            if x and k == 2: order.append("chk1")
            if x and k == 1: order.append("parkxe")
            if k < 3: g(f"j_{nm}", f"s_branch {L}")
        G[f"lab_b2{sfx}"] = Prog(f"lab_b2{sfx}"); G[f"lab_b2{sfx}"].label(L); order.append(f"lab_b2{sfx}")
        order.append(f"b2{sfx}")
        g(f"ret_b2{sfx}", f"s_cmp_eq_u32 s{sH192.b}, 0\ns_cbranch_scc1 L_{names[1]}\ns_cmp_eq_u32 s{sH192.b}, 192\ns_cbranch_scc1 L_{names[2]}\ns_cmp_eq_u32 s{sH192.b}, 384\ns_cbranch_scc1 L_{names[3]}", rd=[sH192])
        return names
    n0 = heads(True)
    order += ["parkld"]; g("j_out", "s_branch L_out")
    G["lab_round"] = Prog("lab_round"); G["lab_round"].label("L_round"); order.append("lab_round")
    n1 = heads(False)
    g("sel_out", f"s_cmp_eq_u32 s{sRound.b}, 2\ns_cbranch_scc1 L_outl", rd=[sRound])
    lab("out"); order += ["out"]
    g("back", "s_branch L_round")
    G["lab_outl"] = Prog("lab_outl"); G["lab_outl"].label("L_outl"); order.append("lab_outl")
    order += ["outl"]
    G["fin"] = Prog("fin"); G["fin"].label("L_end"); G["fin"].raw("s_endpgm\nL_codeend:\ns_endpgm", "br"); order.append("fin")
    B.update(G)
    real = lambda n: n in ("pro_b",) or n.startswith("b1") or n.startswith("b2") or n.startswith("out")
    if stamps:
        B["st_init"] = stamp_init()
        o2 = []
        for n in order:
            if n == "pro": o2 += ["st_init", "st_0"]; B["st_0"] = stamp_blk("st_0")
            o2.append(n)
            if real(n):
                if os.environ.get("FINE") == n.replace("pro_b", "pro"):
                    B["fd_" + n] = fine_dump("fd_" + n, FINEINFO[n][0], FINEINFO[n][1]); o2.append("fd_" + n)
                B["st_" + n] = stamp_blk("st_" + n); o2.append("st_" + n)
        order = o2
    def tr_heads(x, names):
        sfx = "x" if x else ""
        t = []
        for h in range(4):
            env = {"ch": 9 * h, "fr": 9 * h}
            t += [(f"lab_{names[h]}", {}), (names[h], env)]
            if x and h == 2: t += [("chk1", {})]
            if x and h == 1: t += [("parkxe", {})]
            if h < 3: t += [(f"j_{names[h]}", {})]
            t += [(f"lab_b2{sfx}", {}), (f"b2{sfx}", env), (f"ret_b2{sfx}", {})]
        return t
    RB = 136
    tr = [("entry", {}), ("entry2", {}), ("pro", {"ch": 0, "fr": 0}), ("chk0", {}), ("pro_b", {"ch": 0, "fr": 0})] + tr_heads(True, n0) + [("parkld", {}), ("j_out", {}), ("out", {"ch": 36, "fr": 36, "xb": 20, "xfr": 20, "dw": 20, "dfr": 20}), ("back", {})]
    for r in (1, 2):
        off = RB * r
        def sh(t): return [(n, dict({k: vv + off for k, vv in e.items()}, **({"xb": 20 * r, "dw": 20 * r} if e else {}))) for n, e in t]
        tr += [("lab_round", {})] + sh(tr_heads(False, n1)) + [("sel_out", {})]
        if r == 1: tr += [("out", {"ch": 36 + off, "fr": 36 + off, "xb": 40, "xfr": 40, "dw": 40, "dfr": 40}), ("back", {})]
        else: tr += [("lab_outl", {}), ("outl", {"ch": 36 + off, "fr": 36 + off})]
    tr += [("fin", {})]
    if stamps:
        t2 = []
        for (n, e) in tr:
            if n == "pro": t2 += [("st_init", {}), ("st_0", {})]
            t2.append((n, e))
            if real(n):
                if os.environ.get("FINE") == n.replace("pro_b", "pro"): t2.append(("fd_" + n, {}))
                t2.append(("st_" + n, {}))
        tr = t2
        print("TRACE", ",".join(n for n, e in tr if real(n)))
    if stop_after is not None:
        lin = []; cnt = 0
        for (n, e) in tr:
            if n.startswith("lab_") or n.startswith("j_") or n.startswith("ret_") or n in ("sel_out", "back", "fin"): continue
            lin.append((n, e))
            if n not in ("entry", "entry2", "pro", "chk0", "chk1", "parkxe", "parkld"):
                cnt += 1
                if cnt == stop_after: break
        print("debug trace:", [n for n, e in lin])
        F = finalize(B, lin, verbose=False)
        lines = []
        from prep2 import build_prep_blocks
        for (n, e) in lin:
            for i in F[n].ins: lines += i.text.split("\n")
            if n == "entry": lines += build_prep_blocks()
        lines += dump_lines()
        return lines
    F = finalize(B, tr, verbose=verbose)
    lines = []
    from prep2 import build_prep_blocks
    for n in order:
        if n == "PREP":
            lines += build_prep_blocks(); continue
        if stamps and n == "fin":
            lines += ["L_end:"] + stamp_dump() + ["s_endpgm", "L_codeend:", "s_endpgm"]; continue
        for i in F[n].ins:
            if i.text: lines += i.text.split("\n")
    return lines

if __name__ == "__main__":
    do_sched = "-n" not in sys.argv
    out = [a for a in sys.argv[1:] if not a.startswith("-")]
    stop = None
    for a_ in sys.argv[1:]:
        if a_.startswith("-s"): stop = int(a_[2:])
    lines = build(do_sched, stop_after=stop, verbose="-q" not in sys.argv, stamps="-t" in sys.argv)
    macros, lines = compact(lines)
    km = kernel_text("standalone__window_attn_davit__vision_kernel", lines, 512, 256)
    txt = single_file_text(NWG, 256, LDS_TOTAL, [km], macros)
    open(out[0] if out else "k.s", "w").write(txt)
    print("lines", len(lines), "bytes", len(txt))
```

```python
from ir import *
from regs import *
from prep import WS_WO, WS_DW, WS_END, WS_XS, WS_TAB, WS_USED, TILE_B, dw_off
import math, os, struct

XBYTES = 378 * 378 * 768
ROWB = 378 * 768
OOB = 0x80000000
C_LOG2 = math.log2(math.e) / math.sqrt(96.0)
def f2u(x): return struct.unpack("<I", struct.pack("<f", x))[0]
NPRE = 4
XMOD = os.environ.get("XMOD", "_nt").replace("_", " ")
XMOD2 = os.environ.get("XMOD2", "").replace("_", " ")
TAGK = int(os.environ.get("TAGK", "7"))

def ex_bundle(p, mask, fn, kind, rd, wr, cost):
    q = Prog("tmp"); fn(q)
    txt = f"s_mov_b64 exec, {mask}\n" + "\n".join(i.text for i in q.ins) + "\ns_mov_b64 exec, -1"
    rds = [r for i in q.ins for r in i.rd] + mask.regs(); wrs = [r for i in q.ins for r in i.wr]
    return p.add(I(txt, kind, rds + list(rd), wrs + list(wr), cost=cost))

_cp = [0]
def code_touch(p, lab_from, lab_to, T, dst, sel=None, prio=0):
    if os.environ.get("NOCODE"): return
    _cp[0] += 1
    L = f"L_cp{_cp[0]}"
    A = v(T[0].b, 2); t = T[2]
    s96, s97, s98, s99, s100, s101 = [s(96 + i) for i in range(6)]
    p.add(I(f"s_getpc_b64 s[96:97]\n{L}:", "salu", [], [s(96, 2)], prio=prio))
    p.add(I(f"s_mov_b32 s98, {lab_from}-{L}", "salu", [], [s98], prio=prio))
    p.add(I(f"s_mov_b32 s99, {lab_to}-{lab_from}", "salu", [], [s99], prio=prio))
    if sel is not None:
        sr, val, f2, t2 = sel
        p.add(I(f"s_mov_b32 s100, {f2}-{L}", "salu", [], [s100], prio=prio))
        p.add(I(f"s_mov_b32 s101, {t2}-{f2}", "salu", [], [s101], prio=prio))
        p.salu("s_cmp_eq_u32", sr, val, prio=prio); p.salu("s_cselect_b32", s98, s100, s98, prio=prio); p.salu("s_cselect_b32", s99, s101, s99, prio=prio)
    p.salu("s_ashr_i32", s100, s98, 31, scc_w=True, prio=prio)
    p.salu("s_add_u32", s96, s96, s98, prio=prio); p.salu("s_addc_u32", s97, s97, s100, prio=prio)
    p.salu("s_lshr_b32", s100, S_WG, 3, prio=prio); p.salu("s_and_b32", s100, s100, 31, prio=prio); p.salu("s_lshl_b32", s100, s100, 13, prio=prio)
    p.salu("s_add_u32", s101, s99, 8191, prio=prio); p.salu("s_and_b32", s101, s101, 0xffffe000, prio=prio)
    for sh in (3, 2, 1, 0):
        p.salu("s_lshl_b32", s98, s101, sh, prio=prio); p.salu("s_cmp_ge_u32", s100, s98, prio=prio)
        p.salu("s_cselect_b32", s98, s98, 0, prio=prio); p.salu("s_sub_u32", s100, s100, s98, prio=prio)
    p.salu("s_sub_u32", s99, s99, 4, prio=prio)
    p.valu("v_lshlrev_b32", t, 7, vTID, prio=prio); p.valu("v_add_u32", t, s100, t, prio=prio); p.valu("v_min_u32", t, s99, t, prio=prio)
    p.add(I(f"v_add_co_u32 {A[0]}, vcc, s96, {t}", "valu", [s96, t], [A[0], "vcc"], prio=prio))
    p.mov(A[1], s97, prio=prio)
    p.add(I(f"v_addc_co_u32 {A[1]}, vcc, 0, {A[1]}, vcc", "valu", [A[1], "vcc"], [A[1], "vcc"], prio=prio))
    p.add(I(f"global_load_dword {dst}, {A}, off", "vld", [A], [dst], cost=8, prio=prio))

SRD_DBG = s(4, 4); SRD_DW = s(96, 4)
NPREP = 12; NWG = NPREP + 243
def blk_entry():
    p = Prog("entry")
    p.raw(f"s_cmp_lt_u32 s2, {NWG}\ns_cbranch_scc1 L_go\ns_endpgm\nL_go:", "br", rd=[s(2)], wr=["scc"])
    p.raw("s_load_dwordx2 s[4:5], s[0:1], 40\ns_load_dwordx2 s[6:7], s[0:1], 32\ns_load_dwordx2 s[38:39], s[0:1], 48\n"
          "s_load_dwordx4 s[40:43], s[0:1], 8\ns_load_dwordx2 s[44:45], s[0:1], 24\ns_load_dwordx2 s[46:47], s[0:1], 0\ns_waitcnt lgkmcnt(0)",
          "salu", wr=[s(4, 2), s(6, 2), s(38, 2), s(40, 4), s(44, 2), s(46, 2)])
    for dst, src, n in ((8, 46, XBYTES), (16, 6, XBYTES), (12, 38, WS_USED)):
        p.salu("s_mov_b32", s(dst), s(src)); p.salu("s_mov_b32", s(dst + 1), s(src + 1))
        p.salu("s_mov_b32", s(dst + 2), n); p.salu("s_mov_b32", s(dst + 3), 0x20000)
    p.salu("s_mov_b32", s(6), 256); p.salu("s_mov_b32", s(7), 0x20000)
    p.valu("v_lshrrev_b32", TMP[0], 6, vTID)
    p.valu("v_and_b32", vTID, 63, vTID)
    p.valu("v_readfirstlane_b32", sW, TMP[0])
    p.valu("v_lshlrev_b32", vL16, 4, vTID)
    p.raw(f"s_cmp_ge_u32 s2, {NPREP}\ns_cbranch_scc1 L_main", "br", rd=[s(2)], wr=["scc"])
    p1 = p; p = Prog("entry2"); p.label("L_main")
    p.salu("s_mov_b32", s(96), s(40)); p.salu("s_mov_b32", s(97), s(41)); p.salu("s_mov_b32", s(98), 9 * 768); p.salu("s_mov_b32", s(99), 0x20000)
    p.salu("s_and_b32", sT[11], S_WG, 7)
    p.salu("s_lshr_b32", s(49), S_WG, 3)
    p.salu("s_cmp_lt_u32", sT[11], 4); p.salu("s_cselect_b32", s(62), 2, 1); p.salu("s_sub_u32", s(49), s(49), s(62))
    p.salu("s_mul_i32", s(62), sT[11], 30); p.salu("s_add_u32", s(49), s(49), s(62))
    p.salu("s_max_u32", s(62), sT[11], 4); p.salu("s_sub_u32", s(62), s(62), 4); p.salu("s_add_u32", sWG, s(49), s(62))
    p.salu("s_mul_i32", sT[0], sWG, 2428); p.salu("s_lshr_b32", sT[0], sT[0], 16)
    p.salu("s_mul_i32", sT[1], sT[0], 27); p.salu("s_sub_u32", sQX, sWG, sT[1])
    p.salu("s_mul_i32", sSR3, sT[0], 3); p.salu("s_mul_i32", sX0, sQX, 14)
    p.salu("s_mul_i32", sW6, sW, 6144); p.salu("s_lshl_b32", sW4k, sW, 12)
    p.salu("s_mov_b32", sC, f2u(C_LOG2)); p.salu("s_mov_b32", sNegC, f2u(-C_LOG2))
    p.salu("s_mov_b32", sI384, f2u(1.0 / 384)); p.salu("s_mov_b32", sEps, f2u(1e-5))
    p.salu("s_mov_b32", sRound, 0)
    p.salu("s_lshl_b32", sXS, sWG, 2); p.salu("s_add_u32", sXS, sXS, sW); p.salu("s_mul_i32", sXS, sXS, 6144); p.salu("s_add_u32", sXS, sXS, WS_XS)
    p.salu("s_lshl_b32", sT[0], sWG, 2); p.salu("s_add_u32", sT[0], sT[0], sW); p.salu("s_lshl_b32", sT[0], sT[0], 13); p.salu("s_add_u32", sTab, sT[0], WS_TAB)
    p.salu("s_and_b32", sT[1], sW, 1); p.salu("s_mul_i32", sW1, sT[1], 12288); p.salu("s_mul_i32", sWX7, sT[1], 7)
    p.salu("s_lshr_b32", sT[1], sW, 1); p.salu("s_mul_i32", sWY7, sT[1], 7)
    p.salu("s_mov_b32", sSkip1, 49)
    for w, val in ((1, 43), (2, 7), (3, 1)):
        p.salu("s_cmp_eq_u32", sW, w); p.salu("s_cselect_b32", sSkip1, val, sSkip1)
    n_ = TMP[1]; g_ = TMP[2]
    p.valu("v_and_b32", n_, 15, vTID); p.valu("v_lshrrev_b32", g_, 4, vTID)
    p.valu("v_and_b32", TMP[3], 3, n_)
    if os.environ.get("ZM"):
        assert os.environ.get("VSTAT"), "ZM reuses sM3"
        p.valu("v_cmp_eq_u32", sM3, 0, g_)
    else:
        p.valu("v_cmp_eq_u32", sM1, 1, TMP[3]); p.valu("v_cmp_eq_u32", sM2, 2, TMP[3]); p.valu("v_cmp_eq_u32", sM3, 3, TMP[3])
    p.valu("v_cmp_gt_u32", sEx, 12, n_); p.valu("v_cmp_eq_u32", sEx0, 0, n_)
    p.valu("v_cmp_eq_u32", "vcc", 0, g_)
    p.valu("v_cndmask_b32", vGM, 0, 1.0, "vcc")
    p.valu("v_mul_u32_u24", vSW, STOK, n_); p.valu("v_lshl_add_u32", vSW, g_, 4, vSW); p.valu("v_add_u32", vSW, STASH, vSW)
    for j in range(5):
        vals = []
        for w in range(4):
            u = 4 * j + w if j < 4 else 16 + (w & 1)
            ty, a_ = divmod(u, 6)
            vals.append([768, 0, 1536][ty] + (a_ >> 1) * 64 + (a_ & 1) * 8)
        d = sEoff[j]
        p.salu("s_mov_b32", d, vals[0])
        for w in range(1, 4):
            p.salu("s_cmp_eq_u32", sW, w); p.salu("s_cselect_b32", d, vals[w], d)
    return p1, p

def round_setup(p, next_round):
    if next_round: p.salu("s_add_u32", sRound, sRound, 1)
    p.salu("s_add_u32", sT[0], sSR3, sRound); p.salu("s_mul_i32", sY0, sT[0], 14)
    p.salu("s_lshl_b32", sT[2], sRound, 2); p.salu("s_add_u32", sT[2], sT[2], sW)
    p.salu("s_mul_i32", sT[2], sT[2], STOK); p.salu("s_add_u32", sT[2], sT[2], STASH)
    n_ = TMP[1]; g_ = TMP[2]
    p.valu("v_and_b32", n_, 15, vTID); p.valu("v_lshrrev_b32", g_, 4, vTID)
    p.valu("v_lshlrev_b32", vSQ, 4, g_); p.valu("v_add_u32", vSQ, sT[2], vSQ)
    p.valu("v_lshrrev_b32", TMP[3], 2, n_); p.valu("v_lshlrev_b32", TMP[3], 4, TMP[3])
    p.valu("v_and_b32", TMP[4], 3, n_); p.valu("v_lshl_add_u32", TMP[3], TMP[4], 1, TMP[3])
    p.salu("s_add_u32", sT[2], sT[2], 1536)
    p.valu("v_add_u32", vSV, sT[2], TMP[3])

def tap_dydx(tap):
    if tap == 9: tap = 4
    return tap // 3 - 1, tap % 3 - 1

def gen_dw_addrs(p, dst, T):
    n_, g_, hi, b16, R0, C0, tR, tC, tL, tq = T
    p.valu("v_and_b32", n_, 15, vTID); p.valu("v_lshrrev_b32", g_, 4, vTID)
    p.valu("v_lshrrev_b32", hi, 1, g_)
    p.valu("v_and_b32", b16, 1, g_); p.valu("v_lshlrev_b32", b16, 4, b16)
    p.valu("v_cmp_eq_u32", "vcc", 1, hi)
    for t in range(3):
        p.valu("v_add_u32", tq, 16 * t + 1, n_)
        p.valu("v_subrev_u32", R0, sSkip1, tq); p.valu("v_lshrrev_b32", R0, 31, R0); p.valu("v_sub_u32", tq, tq, R0)
        p.valu("v_mul_u32_u24", R0, 37, tq); p.valu("v_lshrrev_b32", R0, 8, R0)
        p.valu("v_mul_u32_u24", C0, 7, R0); p.valu("v_sub_u32", C0, tq, C0)
        p.salu("s_add_u32", sT[0], sWY7, 1); p.salu("s_add_u32", sT[1], sWX7, 1)
        p.valu("v_add_u32", R0, sT[0], R0); p.valu("v_add_u32", C0, sT[1], C0)
        for pp in range(5):
            dy0, dx0 = tap_dydx(2 * pp); dy1, dx1 = tap_dydx(2 * pp + 1)
            p.mov(tR, dy0); p.mov(tq, dy1); p.valu("v_cndmask_b32", tR, tR, tq, "vcc"); p.valu("v_add_u32", tR, tR, R0)
            p.mov(tC, dx0); p.mov(tq, dx1); p.valu("v_cndmask_b32", tC, tC, tq, "vcc"); p.valu("v_add_u32", tC, tC, C0)
            p.valu("v_mul_u32_u24", tL, 7, tR); p.valu("v_add_u32", tL, tL, tC); p.valu("v_and_b32", tL, 7, tL)
            d = dst(t, pp)
            p.valu("v_lshlrev_b32", d, 10, tR)
            p.valu("v_lshl_add_u32", d, tL, 5, d)
            p.valu("v_lshrrev_b32", tC, 3, tC)
            p.valu("v_lshl_add_u32", d, tC, 8, d)
            p.valu("v_add_u32", d, d, b16)

def gen_x_cols(p, xvo, T):
    u, be, hh, chi, kap, base, cc, xx, t8 = T[:9]
    p.valu("v_lshrrev_b32", u, 4, vTID); p.valu("v_and_b32", be, 15, vTID)
    p.valu("v_lshrrev_b32", hh, 1, u); p.valu("v_and_b32", chi, 1, u)
    p.valu("v_lshrrev_b32", kap, 1, be)
    p.valu("v_and_b32", base, 1, be); p.valu("v_lshlrev_b32", base, 4, base)
    p.valu("v_lshl_add_u32", base, hh, 5, base)
    p.valu("v_lshlrev_b32", chi, 3, chi)
    p.salu("s_lshl_b32", sU[0], sW, 2)
    p.salu("s_sub_u32", sU[2], sX0, 1); p.salu("s_mov_b32", sU[5], 378)
    p.mov(t8, OOB)
    for i in range(4):
        p.salu("s_add_u32", sU[1], sU[0], i)
        p.valu("v_add_u32", cc, sU[1], kap); p.valu("v_and_b32", cc, 7, cc); p.valu("v_add_u32", cc, cc, chi)
        p.valu("v_add_u32", xx, sU[2], cc)
        p.valu("v_mul_u32_u24", xvo[i], 768, xx); p.valu("v_add_u32", xvo[i], xvo[i], base)
        p.valu("v_cmp_gt_u32", "vcc", sU[5], xx)
        p.valu("v_cndmask_b32", xvo[i], t8, xvo[i], "vcc")

def gen_x_rows(p, sy0):
    p.salu("s_lshl_b32", sU[0], sW, 2); p.salu("s_add_u32", sU[0], sU[0], sy0); p.salu("s_sub_u32", sU[0], sU[0], 1)
    for i in range(4):
        p.salu("s_add_u32", sU[1], sU[0], i); p.salu("s_mul_i32", sRow[i], sU[1], ROWB)
        p.salu("s_cmp_lt_u32", sU[1], 378); p.salu("s_cselect_b32", sRow[i], sRow[i], OOB)

def x_dma_list(p, xvo, j, ldsbase, res, rd_res, prio=0):
    if os.environ.get("NOXDMA") and p.name != "pro": return []
    xm = XMOD if p.name == "pro" else XMOD2
    def one(i):
        def f(tag=None):
            a_ = p.salu("s_add_u32", "m0", sW4k, ldsbase + i * 1024, prio=prio)
            if tag is not None: a_.rd.append(tag)
            p.salu("s_add_u32", sU[0], sRow[i], j * 64, prio=prio)
            p.dma(xvo[i], SRD_X, sU[0], 0, res=res, rd_res=rd_res, prio=prio, mods=xm)
        return f
    return [one(i) for i in range(4)]
def x_dma(p, xvo, j, ldsbase, res, rd_res, prio=0):
    for f in x_dma_list(p, xvo, j, ldsbase, res, rd_res, prio): f()

def dwfrag_list(p, j, ldsbase, res, rd_res, prio=0):
    src = dw_off(j)
    def mk(k):
        def f(tag=None):
            if k == 0: a_ = p.salu("s_lshl_b32", sT[7], sW, 10, prio=prio)
            else:
                a_ = p.salu("s_and_b32", sT[7], sW, 1, prio=prio); p.salu("s_lshl_b32", sT[7], sT[7], 10, prio=prio)
            if tag is not None: a_.rd.append(tag)
            p.salu("s_add_u32", sT[8], sT[7], src + k * 4096, prio=prio); p.salu("s_add_u32", "m0", sT[7], ldsbase + k * 4096, prio=prio)
            p.dma(vL16, SRD_WS, sT[8], 0, res=res, rd_res=rd_res, prio=prio)
        return f
    return [mk(0), mk(1)]
def dwfrag_dma(*a, **k):
    for f in dwfrag_list(*a, **k): f()

class DwRegs:
    def __init__(self, addr, A, B8, B4, acc, T, sumv, ssq, idx):
        self.addr, self.A, self.B8, self.B4, self.acc, self.T, self.sumv, self.ssq, self.idx = addr, A, B8, B4, acc, T, sumv, ssq, idx
        self.b8 = 0; self.b4 = 0; self.ai = 0; self.ti = 0; self.ci = 0

def dw_ctile_gen(p, D, j, hh, abase, aoff, xoff, res, hook=None):
    nA = len(D.A)
    A = []
    for f in range(3):
        r = D.A[D.ai % nA]; D.ai += 1
        if abase is None: build_afrag(p, r, f, 2 * j + hh)
        else: p.dsr(r, abase, aoff + hh * 3072 + f * 1024, res=res)
        A.append(r)
    for t in range(getattr(D, "ntile", 3)):
        acc = D.acc[D.ci % len(D.acc)]; D.ci += 1
        def rd(dst, pp):
            if t < 3: p.dsr(dst, D.addr(t, pp), xoff, res=res)
            else: p.dsr(dst, D.eaddr(pp), j * 64 + hh * 32, res=[("est", 0)])
        B = D.B4[D.b4 % len(D.B4)]; D.b4 += 1
        rd(B, 4)
        i = p.mfma(acc, A[2], B, None)
        if hook: hook(i)
        for sx in range(2):
            B = D.B8[D.b8 % len(D.B8)]; D.b8 += 1
            rd(B[0:4], 2 * sx); rd(B[4:8], 2 * sx + 1)
            i = p.smfmac(acc, A[sx], B, D.idx)
            if hook: hook(i)
        first = (j == 0 and hh == 0)
        if not getattr(D, "stats", True): pass
        elif first:
            p.valu("v_add_f32", D.sumv[t], acc[0], acc[1]); p.valu("v_mul_f32", D.ssq[t], acc[0], acc[0])
            p.valu("v_add_f32", D.sumv[t], D.sumv[t], acc[2]); p.valu("v_fma_f32", D.ssq[t], acc[1], acc[1], D.ssq[t])
            p.valu("v_add_f32", D.sumv[t], D.sumv[t], acc[3]); p.valu("v_fma_f32", D.ssq[t], acc[2], acc[2], D.ssq[t])
            p.valu("v_fma_f32", D.ssq[t], acc[3], acc[3], D.ssq[t])
        else:
            for r in range(4):
                p.valu("v_add_f32", D.sumv[t], D.sumv[t], acc[r]); p.valu("v_fma_f32", D.ssq[t], acc[r], acc[r], D.ssq[t])
        t0 = D.T[D.ti % len(D.T)]; t1 = D.T[(D.ti + 1) % len(D.T)]; D.ti += 2
        p.cvtpk(t0, acc[0], acc[1]); p.cvtpk(t1, acc[2], acc[3])
        ct = 2 * j + hh; G = ct >> 2; u = ct & 3
        XX = (lambda kb: X(kb, t)) if t < 3 else XE
        p.accw(XX(2 * G)[u], t0); p.accw(XX(2 * G + 1)[u], t1)
        yield t

def dw_ctile(*a, **k):
    for _ in dw_ctile_gen(*a, **k): pass

def stats_mfma(p, kbs, S, G, ONE):
    for kb in kbs:
        for t in range(3):
            p.mfma(S[t], ONE, X(kb, t), None if kb == 0 else S[t])
            p.mfma(G[t], X(kb, t), X(kb, t), None if kb == 0 else G[t])

def stats_mfma_fin(p, S, G, T):
    t0, t1, t2, adr, g16 = T[:5]
    p.valu("v_and_b32", t0, 15, vTID); p.valu("v_lshrrev_b32", t1, 2, t0)
    p.valu("v_lshl_add_u32", adr, t1, 4, t0); p.valu("v_lshlrev_b32", adr, 2, adr)
    for t in range(3):
        g = G[t]
        p.valu("v_cndmask_b32", t0, g[0], g[1], sM1); p.valu("v_cndmask_b32", t0, t0, g[2], sM2); p.valu("v_cndmask_b32", t0, t0, g[3], sM3)
        p.bperm(t1, adr, t0)
        p.valu("v_mul_f32", t2, sI384, S[t][0]); p.valu("v_mul_f32", t2, t2, t2)
        p.valu("v_fma_f32", t1, t1, sI384, Neg(t2)); p.valu("v_max_f32", t1, 0, t1); p.valu("v_add_f32", t1, sEps, t1)
        p.trans("v_rsq_f32", RC[t], t1)
    p.valu("v_lshrrev_b32", g16, 4, vTID); p.valu("v_lshlrev_b32", g16, 4, g16)
    for t in range(3):
        for r in range(4):
            i = p.bperm(RK(t, r), g16, RC[t]); i.text += f" offset:{4*r}"

def stats_valu(p, D, T):
    t2, t0, g16 = T[:3]
    for t in range(getattr(D, "ntile", 3)):
        for x in (D.sumv[t], D.ssq[t]):
            p.mov(t2, x); p.swap16(x, t2); p.valu("v_add_f32", x, x, t2)
            p.mov(t2, x); p.swap32(x, t2); p.valu("v_add_f32", x, x, t2)
        p.valu("v_mul_f32", t2, sI384, D.sumv[t])
        p.valu("v_mul_f32", t0, t2, t2)
        p.valu("v_fma_f32", t0, D.ssq[t], sI384, Neg(t0))
        p.valu("v_max_f32", t0, 0, t0); p.valu("v_add_f32", t0, sEps, t0)
        p.trans("v_rsq_f32", RC[t] if t < 3 else RCE, t0)
    p.valu("v_lshrrev_b32", g16, 4, vTID); p.valu("v_lshlrev_b32", g16, 4, g16)
    for t in range(3):
        for r in range(4):
            i = p.bperm(RK(t, r), g16, RC[t]); i.text += f" offset:{4*r}"

def slots_setup(p, reset=False, adv=0):
    if reset: p.salu("s_mov_b32", sS0, 0)
    if adv: p.salu("s_add_u32", sS0, sS0, adv)
    for k in range(4):
        p.salu("s_add_u32", sT[0], sS0, k); p.salu("s_and_b32", sT[0], sT[0], 3); p.salu("s_mul_i32", sSl[k], sT[0], SLOT)

def ring_dma_list(p, cid, first=False, prio=0, slot=None):
    sl = sSl[cid & 3] if slot is None else slot
    def mk(k):
        def f(tag=None):
            if k == 0:
                if first: p.salu("s_mov_b32", sSrc, sW6)
                if isinstance(sl, R): p.salu("s_add_u32", sRB, sl, sW6, prio=prio)
                else: p.salu("s_add_u32", sRB, sW6, sl, prio=prio)
            if k == 4: p.salu("s_add_u32", sSrc2, sSrc, 4096, prio=prio)
            if k < 4: p.salu("s_mov_b32", "m0", sRB, prio=prio)
            else: p.salu("s_add_u32", "m0", sRB, 4096, prio=prio)
            i = p.dma(vL16, SRD_WS, sSrc if k < 4 else sSrc2, (k % 4) * 1024, res=[("ch", cid)], rd_res=[("fr", cid)], prio=prio)
            if tag is not None: i.rd.append(tag)
            if k == 5: p.salu("s_add_u32", sSrc, sSrc, SLOT, prio=prio)
        return f
    return [mk(k) for k in range(6)]
def ring_dma(p, cid, first=False, prio=0, slot=None):
    for f in ring_dma_list(p, cid, first, prio, slot): f()

class Pacer:
    cnt = [0]
    def __init__(self, p): self.n = 0; self.q = []; self.p = p
    def add(self, items, start, step):
        for k, f in enumerate(items): self.q.append((self.n + start + k * step, f))
        self.q.sort(key=lambda x: x[0])
    def tick(self, i):
        self.n += 1
        while self.q and self.q[0][0] <= self.n:
            Pacer.cnt[0] += 1
            tag = ("TP", Pacer.cnt[0]); i.wr.append(tag)
            n0 = len(self.p.ins)
            self.q.pop(0)[1](tag)
            for x in self.p.ins[n0:]: x.pin = i
    def flush(self):
        while self.q: self.q.pop(0)[1](None)

PADDR = v(100, 16)
PXVO = [v(116 + i) for i in range(4)]
PDA = [v(120 + i * 4, 4) for i in range(6)]
PDB8 = [v(144 + i * 8, 8) for i in range(6)]
PDB4 = [v(192 + i * 4, 4) for i in range(2)]
PIDX = v(88); vTS = v(89); MS = [v(90 + q) for q in range(4)]
PACC = [v(200 + i * 4, 4) for i in range(6)]
PSUM = [v(224 + i) for i in range(4)]; PSSQ = [v(228 + i) for i in range(4)]
PDT = [v(70 + i) for i in range(6)]
EADDR = [v(82 + i) for i in range(5)]
vTA = v(68); AM = [v(60 + q) for q in range(4)]
ATMP = [v(76), v(77), v(78), v(79), v(80)]
EVS = [v(36 + i) for i in range(10)]

_at = [0]
def build_afrag(p, dst, f, ct):
    tmp = ATMP[_at[0] % len(ATMP)]; _at[0] += 1
    if f < 2:
        p.dsr(tmp, vTS, f * 3072 + ct * 32, res=[("tbl", 0)], op="ds_read_u16")
        for q in range(4): p.valu("v_and_b32", dst[q], tmp, MS[q])
    else:
        p.dsr(tmp, vTA, 4 * 1536 + ct * 32, res=[("tbl", 0)], op="ds_read_u16")
        p.valu("v_lshl_or_b32", tmp, tmp, 16, tmp)
        for q in range(4): p.valu("v_and_b32", dst[q], tmp, AM[q])

def stage_calc(p):
    u, q, tk, pc, t5 = TMP[0], TMP[1], TMP[2], TMP[3], TMP[4]
    p.salu("s_mul_i32", sU[0], sW, 640)
    p.salu("s_mov_b32", sU[3], 14 * ROWB); p.salu("s_mov_b32", sU[4], ROWB)
    for k in range(10):
        p.valu("v_add_u32", u, sU[0], vTID); p.valu("v_add_u32", u, 64 * k, u)
        p.valu("v_mul_u32_u24", tk, 1338, u); p.valu("v_lshrrev_b32", tk, 16, tk)
        p.valu("v_mul_u32_u24", t5, 49, tk); p.valu("v_sub_u32", pc, u, t5)
        p.valu("v_lshrrev_b32", q, 4, tk)
        d = EVS[k]
        p.valu("v_mul_lo_u32", d, q, sU[3])
        p.valu("v_bfe_u32", t5, tk, 2, 2); p.valu("v_mul_lo_u32", t5, t5, sU[4]); p.valu("v_add_u32", d, d, t5)
        p.valu("v_and_b32", t5, 3, tk); p.valu("v_mul_u32_u24", t5, 768, t5); p.valu("v_add_u32", d, d, t5)
        p.valu("v_lshl_add_u32", d, pc, 4, d)
        p.valu("v_cmp_gt_u32", "vcc", 48, tk); p.mov(t5, OOB); p.valu("v_cndmask_b32", d, t5, d, "vcc")
        p.valu("v_cmp_gt_u32", "vcc", 48, pc); p.valu("v_cndmask_b32", d, t5, d, "vcc")
def stage_dma(p):
    p.salu("s_mul_i32", sU[0], sW, 640)
    p.salu("s_mul_i32", sU[2], sSR3, 14); p.salu("s_add_u32", sU[2], sU[2], 5); p.salu("s_mul_i32", sU[2], sU[2], ROWB)
    p.salu("s_add_u32", sU[3], sX0, 5); p.salu("s_mul_i32", sU[3], sU[3], 768); p.salu("s_add_u32", sT[11], sU[2], sU[3])
    for k in range(10):
        p.salu("s_mul_i32", sU[5], sW, 640 * 16); p.salu("s_add_u32", "m0", sU[5], EST + 1024 * k)
        p.dma(EVS[k], SRD_X, sT[11], 0, res=[("est", 0)], mods=XMOD)

def gen_eaddr(p):
    n_, g_, hi, base, pr, pc, tq = TMP[0:7]
    p.valu("v_and_b32", n_, 15, vTID); p.valu("v_min_u32", n_, 11, n_); p.valu("v_lshrrev_b32", g_, 4, vTID); p.valu("v_lshrrev_b32", hi, 1, g_)
    p.valu("v_lshrrev_b32", tq, 2, n_); p.valu("v_mul_u32_u24", base, ESTQ, tq)
    p.valu("v_and_b32", tq, 1, g_); p.valu("v_lshl_add_u32", base, tq, 4, base); p.valu("v_add_u32", base, EST, base)
    p.valu("v_cmp_eq_u32", "vcc", 1, hi)
    for pp in range(5):
        dy0, dx0 = tap_dydx(2 * pp); dy1, dx1 = tap_dydx(2 * pp + 1)
        p.mov(pr, dy0 + 1); p.mov(tq, dy1 + 1); p.valu("v_cndmask_b32", pr, pr, tq, "vcc")
        p.valu("v_bfe_u32", tq, n_, 1, 1); p.valu("v_add_u32", pr, pr, tq)
        p.mov(pc, dx0 + 1); p.mov(tq, dx1 + 1); p.valu("v_cndmask_b32", pc, pc, tq, "vcc")
        p.valu("v_and_b32", tq, 1, n_); p.valu("v_add_u32", pc, pc, tq)
        p.valu("v_lshl_add_u32", pr, pr, 2, pc); p.valu("v_mul_u32_u24", pr, 784, pr); p.valu("v_add_u32", EADDR[pp], pr, base)

PADDR2 = v(240, 16)
CHK = int(os.environ.get("CHK", "9"))
def gen_out_rel(p, dst, T):
    n_, g_, tq, rr, cc = T
    p.valu("v_and_b32", n_, 15, vTID); p.valu("v_lshrrev_b32", g_, 4, vTID)
    p.salu("s_mov_b32", sT[2], ROWB)
    p.valu("v_lshlrev_b32", n_, 3, n_); p.valu("v_lshlrev_b32", g_, 2, g_)
    for t in range(3):
        for r in range(4):
            p.valu("v_add_u32", tq, 16 * t + r + 1, g_)
            p.valu("v_subrev_u32", rr, sSkip1, tq); p.valu("v_lshrrev_b32", rr, 31, rr); p.valu("v_sub_u32", tq, tq, rr)
            p.valu("v_mul_u32_u24", rr, 37, tq); p.valu("v_lshrrev_b32", rr, 8, rr)
            p.valu("v_mul_u32_u24", cc, 7, rr); p.valu("v_sub_u32", cc, tq, cc)
            p.valu("v_mul_lo_u32", rr, rr, sT[2]); p.valu("v_mul_u32_u24", cc, 768, cc)
            p.valu("v_add3_u32", dst(t, r), rr, cc, n_)

def blk_pro():
    from prep2 import dw_masks, sp_masks, sp_index
    p = Prog("pro")
    if os.environ.get("FINE") == "pro": p.fine = [99, 0]; p.raw("s_memtime s[88:89]", "salu")
    round_setup(p, False)
    slots_setup(p, reset=True)
    gen_x_rows(p, sY0)
    gen_x_cols(p, PXVO, TMP)
    for k in range(2):
        p.salu("s_lshl_b32", sT[7], sW, 10); p.salu("s_add_u32", sT[8], sT[7], k * 4096); p.salu("s_add_u32", "m0", sT[8], TBL)
        p.dma(vL16, SRD_DW, sT[8], 0, res=[("tbl", 0)], prio=-7000)
    def pair_items(G, first=False):
        a_ = x_dma_list(p, PXVO, 2 * G, PXS[(2 * G) % 6], [("xb", 2 * G)], [] if first else [("xfr", 2 * G)], prio=-9000 if first else 0)
        b_ = x_dma_list(p, PXVO, 2 * G + 1, PXS[(2 * G + 1) % 6], [("xb", 2 * G + 1)], [] if first else [("xfr", 2 * G + 1)], prio=-9000 if first else 0)
        return [f for ab in zip(a_, b_) for f in ab]
    for f in pair_items(0, True): f()
    stage_calc(p)
    stage_dma(p)
    for f in pair_items(1, True): f()
    gen_dw_addrs(p, lambda t, pp: PADDR[t * 5 + pp], TMP)
    p.mov(PADDR[15], 0)
    for k in range(15): p.valu("v_add_u32", PADDR2[k], 65536, PADDR[k])
    gen_eaddr(p)
    i_, g_ = TMP[0], TMP[1]
    p.valu("v_and_b32", i_, 15, vTID); p.valu("v_lshrrev_b32", g_, 4, vTID)
    dw_masks(p, i_, g_, AM, TMP[2:7])
    p.valu("v_lshrrev_b32", TMP[2], 1, g_); p.valu("v_mul_u32_u24", vTA, 768, TMP[2]); p.valu("v_lshl_add_u32", vTA, i_, 1, vTA); p.valu("v_add_u32", vTA, TBL, vTA)
    sp_masks(p, i_, MS, TMP[2]); sp_index(p, PIDX, TMP[2])
    p.valu("v_mul_u32_u24", vTS, 768, g_); p.valu("v_lshl_add_u32", vTS, i_, 1, vTS); p.valu("v_add_u32", vTS, TBL, vTS)
    p.bar(wr=[("tbl", 0)])
    p.mov(TMP[3], 0x3f803f80); p.valu("v_lshlrev_b32", TMP[4], 2, vTID); p.valu("v_add_u32", TMP[4], TBL + 9 * 768, TMP[4])
    for k in range(3): p.dsw(TMP[4], TMP[3], k * 256, res=[("tbl", 0)])
    D = DwRegs(lambda t, pp: PADDR[t * 5 + pp], PDA, PDB8, PDB4, PACC, PDT, PSUM, PSSQ, PIDX)
    D.ntile = 4; D.eaddr = lambda pp: EADDR[pp]
    progs = [p]
    p.pacer = Pacer(p)
    for j in range(12):
        if j == CHK:
            p.pacer.flush()
            p = Prog("pro_b"); progs.append(p); p.pacer = Pacer(p)
            if progs[0].__dict__.get("fine") is not None: p.fine = progs[0].fine
        wr = [("xb", j)]
        if j == 0: wr += [("tbl", 0), ("est", 0)]
        if j >= 1: wr.append(("xb", j - 1))
        G = (j + 4) // 2
        if j % 2 == 0 and G <= 5: wr += [("xfr", 2 * G), ("xfr", 2 * G + 1)]
        if j == CHK: wr.append(("fr", 0))
        if j == CHK + 1: wr.append(("fr", 1))
        if j == 11: wr.append(("fr", 2))
        p.bar(wr=wr)
        if j % 2 == 0 and G <= 5:
            items = pair_items(G)
            if j + 1 == CHK: p.pacer.add(items, 2, 3)
            else: p.pacer.add(items, 2, 6)
        if j == 1: code_touch(p, "L_pro_b", "L_round", [v(it) for it in (232, 233, 234)], aDUM[2])
        if j == 3:
            TBQ = [v(b, 4) for b in (36, 40, 44, 48, 52, 56, 64, 10)]
            TB = lambda k: TBQ[k >> 2][k & 3]
            for k in range(16): p.valu("v_add_u32", TB(k), XSB, PADDR[k])
            gen_out_rel(p, lambda t, r: TB(16 + 4 * t + r), [v(94), v(95), v(96), v(97), v(98)])
            p.salu("s_add_u32", sT[11], sTab, 4096)
            def st(k):
                def f(tag=None):
                    i = p.vst(TBQ[k], vL16, SRD_WS, sTab if k < 4 else sT[11], (k % 4) * 1024, res=[("tab", 0)])
                    if tag is not None: i.rd.append(tag)
                return f
            p.pacer.add([st(k) for k in range(7)], 3, 5)
        if j == CHK - 2: p.vld(vFLAG, vZERO(p), SRD_DBG, 0, 0, mods=" sc1")
        if j == CHK: p.pacer.add(ring_dma_list(p, 0, first=True), 1, 4)
        if j == CHK + 1: p.pacer.add(ring_dma_list(p, 1), 1, 4)
        if j == 11: p.pacer.add(ring_dma_list(p, 2), 1 if CHK + 1 < 11 else 1, 4)
        hi = (j % 6) >= 4
        D.addr = (lambda t, pp: PADDR2[t * 5 + pp]) if hi else (lambda t, pp: PADDR[t * 5 + pp])
        for hh in range(2):
            dw_ctile(p, D, j, hh, None, 0, PXS[j % 6] - (65536 if hi else 0) + hh * 512, [("xb", j)], hook=p.pacer.tick)
    p.pacer.flush()
    stats_valu(p, D, TMP[5:8])
    p.bar(wr=[("ch", 0), ("xb", 11), ("tbl", 0), ("est", 0)])
    p.valu("v_add_u32", vWB[0], sSl[0], vL16)
    for f in range(NPRE): p.dsr(WR(f), vWB[0], f * 1024, res=[("ch", 0)])
    return progs

def blk_park_xe():
    p = Prog("parkxe")
    def variant(par):
        t = ""
        for j in range(6):
            t += f"s_add_u32 s49, s{sXS.b}, {j*1024}\nbuffer_store_dwordx4 {XE(2*j+par)}, v{vL16.b}, s[12:15], s49 offen\n"
        return t
    txt = f"s_cmp_ge_u32 s{sW.b}, 2\ns_cbranch_scc1 L_pxe1\n" + variant(0) + "s_branch L_pxe2\nL_pxe1:\n" + variant(1) + "L_pxe2:"
    for j in range(6):
        i = I(txt if j == 0 else "", "vst", [XE(2*j), XE(2*j+1), vL16, SRD_WS, sXS, sW], [("xs", 0), s(49), "scc"], cost=24)
        p.add(i)
    return p

vFLAG = v(8)
def vZERO(p):
    p.mov(v(9), 0, prio=-20000); return v(9)

def flag_check(name, vflag, dword, target):
    p = Prog(name)
    if os.environ.get("NOCHK"): return p
    p.valu("v_readfirstlane_b32", s(49), vflag)
    L = f"L_{name}"
    p.raw(f"s_cmp_ge_u32 s49, {target}\ns_cbranch_scc1 {L}_ok\ns_mov_b32 s62, 0\n{L}_spin:\n"
          f"v_mov_b32 {vflag}, {4*dword}\ns_nop 1\nbuffer_load_dword {vflag}, {vflag}, s[4:7], 0 offen sc1\ns_waitcnt vmcnt(0)\n"
          f"v_readfirstlane_b32 s49, {vflag}\ns_add_u32 s62, s62, 1\ns_nop 3\ns_cmp_ge_u32 s49, {target}\ns_cbranch_scc1 {L}_ok\n"
          f"s_cmp_lt_u32 s62, 0x40000\ns_cbranch_scc1 {L}_spin\n{L}_ok:", "br", rd=[s(49), vflag], wr=[s(49), s(62), "scc", vflag])
    return p
```

```python
from kv2 import *

def wbase(p, cc):
    r = vWB[cc % 3]
    p.valu("v_add_u32", r, sSl[cc & 3], vL16)
    return r

class FragStream:
    def __init__(self, p, pre): self.p = p; self.n = 0; self.pre = pre
    def get(self, base, off, res):
        w = WR(self.n)
        if self.n >= self.pre: self.p.dsr(w, base, off, res=res)
        self.n += 1
        return w

def gemm_tile(p, fs, base, toff, cres, kind, accset, tagk=None, tag=None, extra=None):
    acc = ACC[accset]
    skip = max(0, fs.pre - fs.n)
    for kb in range(12):
        w = fs.get(base, toff + kb * 1024, [cres])
        for t in range(3):
            c = None if kb == 0 else acc[t]
            if kind == "kq": i = p.mfma(acc[t], w, X(kb, t), c)
            else: i = p.mfma(acc[t], X(kb, t), w, c)
            if tag is not None and kb == tagk and t == 0: i.wr.append(tag)
            if getattr(p, "pacer", None): p.pacer.tick(i)
        if extra is not None and kb >= skip: next(extra)
    if extra is not None:
        for _ in extra: pass

def epi_kq(p, accset, a_, dstf):
    acc = ACC[accset]
    for t in range(3):
        if not os.environ.get("NOEPI"):
            for r in range(4): p.valu("v_mul_f32", acc[t][r], RC[t], acc[t][r])
        d = dstf(t, a_ >> 1)
        p.cvtpk(d[2 * (a_ & 1)], acc[t][0], acc[t][1]); p.cvtpk(d[2 * (a_ & 1) + 1], acc[t][2], acc[t][3])

def epi_v(p, accset, a_):
    acc = ACC[accset]
    for t in range(3):
        d = Vf(a_, t >> 1); o = (t & 1) * 2
        p.cvtpk(d[o], acc[t][0], acc[t][1]); p.cvtpk(d[o + 1], acc[t][2], acc[t][3])

def extra_block(p, fs, j, cc_a, cc_b, stash_res):
    if cc_a != cc_b:
        p.salu("s_cmp_ge_u32", sW, 2); p.salu("s_cselect_b32", sT[0], sSl[cc_b & 3], sSl[cc_a & 3])
        p.salu("s_add_u32", sT[0], sT[0], sW1)
    else:
        p.salu("s_add_u32", sT[0], sSl[cc_a & 3], sW1)
    p.valu("v_add_u32", vXB, sT[0], vL16)
    for kb in range(12):
        w = fs.get(vXB, kb * 1024, [("ch", cc_a), ("ch", cc_b)])
        p.mfma(ACCE, w, XE(kb), None if kb == 0 else ACCE)
        yield kb
    for r in range(4): p.valu("v_mul_f32", ACCE[r], RCE, ACCE[r])
    t = v(TMP[8].b, 2)
    p.cvtpk(t[0], ACCE[0], ACCE[1]); p.cvtpk(t[1], ACCE[2], ACCE[3])
    p.salu("s_add_u32", sT[1], sEoff[j], sH192)
    p.valu("v_add_u32", TMP[7], sT[1], vSW)
    ex_bundle(p, sEx, lambda q: q.dsw(TMP[7], t, 0), "dsw", [], [stash_res], 20)

def extra_for(p, fs, cc, r0):
    if not r0: return None
    if cc in (1, 3, 5, 7): return extra_block(p, fs, (cc - 1) // 2, cc - 1, cc, ("sKQ", 0) if cc < 7 else ("sV", 0))
    if cc == 8: return extra_block(p, fs, 4, 8, 8, ("sV", 0))
    return None

QORD = [3, 0, 1, 2]
ZM = bool(os.environ.get("ZM"))
vNM = v(255)
sG0 = s(92, 2) if False else s(54, 2)
def s_phase(p):
    order = [(3, 3), (3, 2), (0, 3), (1, 3), (2, 3), (3, 0), (3, 1),
             (0, 2), (1, 2), (2, 2), (0, 0), (1, 0), (2, 0), (0, 1), (1, 1), (2, 1)]
    for (kt, qt) in order:
        d = Sf(kt, qt)
        for s3 in range(3):
            A = KE(s3) if kt == 3 else Kf(kt, s3)
            B = QE(s3) if qt == 3 else Qf(qt, s3)
            p.mfma(d, A, B, None if s3 == 0 else d)

def softmax(p, qt, k, part="AB"):
    if part == "B": return softmax_b(p, qt)
    m = TMP[(k % 2) * 3]; m2 = TMP[(k % 2) * 3 + 1]; ng = TMP[(k % 2) * 3 + 2]; l = LINV[qt]; l2 = TMP[6]
    vals = [Sf(kt, qt)[r] for kt in range(3) for r in range(4)] + [Sf(3, qt)[0]]
    if ZM: p.valu("v_cndmask_b32", vals[12], vals[0], vals[12], sG0)
    p.valu("v_max3_f32", m, vals[0], vals[1], vals[2])
    for i in range(3, 13, 2): p.valu("v_max3_f32", m, m, vals[i], vals[i + 1])
    p.mov(m2, m); p.swap16(m, m2); p.valu("v_max_f32", m, m, m2)
    p.mov(m2, m); p.swap32(m, m2); p.valu("v_max_f32", m, m, m2)
    p.valu("v_mul_f32", ng, sNegC, m)
    for x in vals:
        p.valu("v_fma_f32", x, x, sC, ng)
        p.trans("v_exp_f32", x, x)
    e = vals[12]
    p.valu("v_mul_f32", e, vGM, e)
    p.valu("v_add_f32", l, vals[0], vals[1])
    for x in vals[2:]: p.valu("v_add_f32", l, l, x)
    p.mov(l2, l); p.swap16(l, l2); p.valu("v_add_f32", l, l, l2)
    p.mov(l2, l); p.swap32(l, l2); p.valu("v_add_f32", l, l, l2)
    p.trans("v_rcp_f32", l, l)
    if ZM and qt == 3: p.valu("v_and_b32", l, vNM, l)
    if "B" in part: softmax_b(p, qt)

def softmax_b(p, qt):
    l = LINV[qt]; e = Sf(3, qt)[0]
    for kt in range(3):
        sf = Sf(kt, qt)
        for r in range(4): p.valu("v_mul_f32", sf[r], RK(kt, r), sf[r])
        for r in range(4): p.valu("v_mul_f32", sf[r], l, sf[r])
        d = Pf(qt, kt >> 1); o = (kt & 1) * 2
        p.cvtpk(d[o], sf[0], sf[1]); p.cvtpk(d[o + 1], sf[2], sf[3])
    d = Pf(qt, 1)
    p.valu("v_mul_f32", e, l, e)
    p.cvtpk(d[2], e, 0); p.mov(d[3], 0)

vPK = v(254)
NSM = int(os.environ.get("NSM", "2"))
SMPART = os.environ.get("SMPART", "AB")
def pv_group(p, h, park, k):
    qt = QORD[k]
    oa = OACC[k % 2]
    for a_ in range(6): p.mfma(oa[a_], Vf(a_, 0), Pf(qt, 0), None)
    for a_ in range(6): p.mfma(oa[a_], Vf(a_, 1), Pf(qt, 1), oa[a_])
    for a_ in range(6):
        o = oa[a_]
        if qt == 3:
            t = v(TMP[8].b, 2)
            p.cvtpk(t[0], o[0], o[1]); p.cvtpk(t[1], o[2], o[3])
            off = h * 192 + (a_ >> 1) * 64 + (a_ & 1) * 8
            ex_bundle(p, sEx0, lambda q: q.dsw(vSQ, t, off), "dsw", [], [("sO", 0)], 20)
        else:
            home = OH(h, a_ >> 1, qt); hh = (a_ & 1) * 2
            if h == 0 and park:
                t = v(TMP[8].b, 2)
                p.cvtpk(t[0], o[0], o[1]); p.cvtpk(t[1], o[2], o[3])
                p.dsw(vPK, t, ((a_ >> 1) * 3 + qt) * 1024 + (a_ & 1) * 8, res=[("park", 0)])
            elif home.c == "a":
                t0, t1 = TMP[8], TMP[9]
                p.cvtpk(t0, o[0], o[1]); p.cvtpk(t1, o[2], o[3])
                p.accw(home[hh], t0); p.accw(home[hh + 1], t1)
            else:
                p.cvtpk(home[hh], o[0], o[1]); p.cvtpk(home[hh + 1], o[2], o[3])

def pv_start(p, h):
    n0 = len(p.ins)
    epi_v(p, 1, 5)
    for a_ in range(6):
        p.dsr(Vf(a_, 1)[2], vSV, h * 192 + (a_ >> 1) * 64 + (a_ & 1) * 8, res=[("sV", 0)], op="ds_read_u16")
    for i in p.ins[n0:]: i.prio = -10**6
    for k in range(NSM, 4): softmax(p, QORD[k], k, SMPART)

def pv_phase(p, h, park):
    pv_start(p, h)
    for k in range(4): pv_group(p, h, park, k)

def chunk_mid(p, cc, r0, fs, extra_wr=(), extra_rd=()):
    wr = [("ch", cc + 1), ("ch", cc - 1), ("fr", cc + 3)] + list(extra_wr)
    if not os.environ.get("NOBAR"): p.bar(rd=[("T", cc)] + list(extra_rd), wr=wr)
    if not os.environ.get("NORING"):
        last = cc in (2, 8)
        st = int(os.environ.get("RSTEP", "11"))
        p.pacer.add(ring_dma_list(p, cc + 3), 1, 6 if last else st)

def prefetch_next(p, cc_next):
    base = wbase(p, cc_next)
    for f in range(NPRE): p.dsr(WR(f), base, f * 1024, res=[("ch", cc_next)])

MSTAT = not os.environ.get("VSTAT")
def roll_regs():
    D = DwRegs(DWADDR, DA, DB8 if MSTAT else DB8[:3], DB4, DACC, DT, SUMV, SSQ, vIDX)
    D.stats = not MSTAT
    return D
MS_S = [v(216 + 4 * t, 4) for t in range(3)]; MS_ONE = v(228, 4); MS_G = [v(204, 4), v(208, 4), v(244, 4)]

def blk_b1(hprev, r0):
    roll_tail = (hprev is None and not r0)
    p = Prog(f"b1{'x' if r0 else ''}_{'a' if hprev is None else hprev}")
    if os.environ.get("FINE") == p.name: p.fine = [255, 0]; p.raw("s_memtime s[88:89]", "salu")
    if hprev is None:
        p.salu("s_mov_b32", sH192, 0)
    else:
        slots_setup(p, adv=9)
        p.salu("s_add_u32", sH192, sH192, 192)
    if r0 and hprev == 0:
        p.salu("s_mul_i32", sT[0], sW, 9216); p.salu("s_add_u32", sT[0], sT[0], PARK); p.valu("v_add_u32", vPK, sT[0], vL16)
    fs = FragStream(p, NPRE); p.pacer = Pacer(p)
    if r0 and hprev == 1:
        p.mov(v(253), 4); p.vld(v(255), v(253), SRD_DBG, 0, 0, mods=" sc1")
    PVAT = [int(x) for x in os.environ.get("PVAT", "0,1,2,4").split(",")]
    if hprev is not None: pv_start(p, hprev)
    tile = 0
    if roll_tail:
        slots_setup(p, reset=True)
        D = roll_regs()
        base = vWB[0]
        def part(tt, kbs, tag=None):
            acc = ACC[tt]
            for kb in kbs:
                w = fs.get(base, tt * TILE_B + kb * 1024, [("ch", 0)])
                for t in range(3):
                    i = p.mfma(acc[t], w, X(kb, t), None if kb == 0 else acc[t])
                    if tag is not None and kb == kbs[-1] and t == 0: i.wr.append(tag)
                    p.pacer.tick(i)
        p.valu("v_add_u32", vDAb, DSL[0], vL16)
        if MSTAT:
            for q in range(4): p.mov(MS_ONE[q], 0x3f803f80)
            stats_mfma(p, range(10), MS_S, MS_G, MS_ONE)
        for hh in range(2): dw_ctile(p, D, 10, hh, vDAb, 0, xslot(10) + hh * 512, [("xb", 10), ("dw", 10)])
        part(0, list(range(10)), ("T", 0))
        p.bar(rd=[("T", 0)], wr=[("ch", 1), ("last", 0), ("fr", 2), ("dw", 11), ("xb", 11)])
        p.pacer.add(ring_dma_list(p, 2), 1, 5)
        for hh in range(2): dw_ctile(p, D, 11, hh, vDAb, 6144, xslot(11) + hh * 512, [("xb", 11), ("dw", 11)])
        part(1, list(range(10)), ("T", 50))
        p.bar(rd=[("T", 50)], wr=[("fr", 3), ("dw", 10), ("dw", 11), ("xb", 10), ("xb", 11)])
        if MSTAT:
            stats_mfma(p, (10, 11), MS_S, MS_G, MS_ONE)
            stats_mfma_fin(p, MS_S, MS_G, TMP[0:5])
        else: stats_valu(p, D, [TMP[0], TMP[1], TMP[2]])
        p.pacer.add(ring_dma_list(p, 3), 1, 8)
        part(0, [10, 11]); part(1, [10, 11])
        epi_kq(p, 0, 0, Kf); epi_kq(p, 1, 1, Kf)
        tile = 2
    for cc in range(1 if roll_tail else 0, 3):
        base = vWB[cc % 3] if cc == 0 else wbase(p, cc)
        for tt in range(2):
            a_ = cc * 2 + tt
            if hprev is not None:
                for k in range(4):
                    if PVAT[k] == a_: pv_group(p, hprev, r0, k)
            gemm_tile(p, fs, base, tt * TILE_B, ("ch", cc), "kq", tile % 2, tagk=TAGK, tag=("T", cc) if tt == 0 else None, extra=extra_for(p, fs, cc, r0) if tt == 0 else None)
            if a_ < 5: epi_kq(p, tile % 2, a_, Kf)
            tile += 1
            if tt == 0: chunk_mid(p, cc, r0, fs)
    p.pacer.flush()
    prefetch_next(p, 3)
    return p

def touch(p, i):
    idx, row, col, t3 = TMP[7], TMP[8], TMP[9], v(253)
    if i == 0:
        p.salu("s_lshr_b32", sU[2], sH192, 6); p.salu("s_mul_i32", sU[2], sU[2], 86); p.salu("s_lshr_b32", sU[2], sU[2], 8)
        p.salu("s_mul_i32", sPf, sU[2], 6)
        p.salu("s_add_u32", sU[3], sY0, 13); p.salu("s_mul_i32", sU[4], sU[3], ROWB)
        p.salu("s_mul_i32", sU[5], sX0, 768); p.salu("s_add_u32", sU[4], sU[4], sU[5]); p.salu("s_sub_u32", sPfB, sU[4], 768)
    p.salu("s_add_u32", sU[2], sPf, i)
    p.salu("s_and_b32", sU[3], sU[2], 3); p.salu("s_lshl_b32", sU[2], sU[2], 6)
    p.salu("s_cmp_eq_u32", sU[3], sW); p.salu("s_cselect_b32", sU[4], 378, 0)
    p.salu("s_cmp_eq_u32", sRound, 2); p.salu("s_cselect_b32", sU[4], 0, sU[4])
    p.valu("v_add_u32", idx, sU[2], vTID)
    p.valu("v_mul_u32_u24", row, 683, idx); p.valu("v_lshrrev_b32", row, 16, row)
    p.valu("v_mul_u32_u24", col, 96, row); p.valu("v_sub_u32", col, idx, col)
    p.salu("s_mov_b32", sU[5], ROWB)
    p.valu("v_mul_lo_u32", idx, row, sU[5]); p.valu("v_lshl_add_u32", idx, col, 7, idx); p.valu("v_add_u32", idx, sPfB, idx)
    p.salu("s_add_u32", sU[3], sY0, 13)
    p.valu("v_add_u32", row, sU[3], row)
    p.valu("v_cmp_gt_u32", "vcc", sU[4], row)
    p.mov(t3, OOB); p.valu("v_cndmask_b32", idx, t3, idx, "vcc")
    p.vld(aDUM[i % 2], idx, SRD_X, 0, 0)

CT = [v(62), v(63), v(61)]
def blk_b2(r0):
    p = Prog(f"b2{'x' if r0 else ''}")
    if os.environ.get("FINE") == p.name: p.fine = [255, 0]; p.raw("s_memtime s[88:89]", "salu")
    fs = FragStream(p, NPRE); p.pacer = Pacer(p)
    vq = v(252)
    p.valu("v_add_u32", vq, sH192, vSQ)
    epi_kq(p, 1, 5, Kf)
    tile = 6
    for cc in range(3, 9):
        base = vWB[cc % 3] if cc == 3 else wbase(p, cc)
        if cc == 6:
            s_phase(p)
            for a_ in (4, 5): p.mov(Vf(a_, 1)[3], 0)
            for k, qt in enumerate(QORD): (softmax(p, qt, k, "AB") if k < NSM else (softmax(p, qt, k, "A") if SMPART == "B" else None))
        for tt in range(2):
            a_ = (cc % 3) * 2 + tt
            kind = "kq" if cc < 6 else "v"
            gemm_tile(p, fs, base, tt * TILE_B, ("ch", cc), kind, tile % 2, tagk=TAGK, tag=("T", cc) if tt == 0 else None, extra=extra_for(p, fs, cc, r0) if tt == 0 else None)
            if kind == "kq": epi_kq(p, tile % 2, a_, Qf)
            elif a_ < 5: epi_v(p, tile % 2, a_)
            tile += 1
            if tt == 0:
                ew = []
                if r0 and cc == 5: ew = [("sKQ", 0)]
                if r0 and cc == 8: ew = [("sV", 0)]
                chunk_mid(p, cc, r0, fs, extra_wr=ew)
                if not os.environ.get("NOTOUCH"):
                    p.pacer.add([lambda tag=None, i=cc - 3: touch(p, i)], 34 if cc == 8 else int(os.environ.get("TPOS", "62")), 1)
                if cc == 3:
                    if r0: code_touch(p, "L_b1x_a", "L_b2x", [v(253), v(254), v(255)] if False else CT, aDUM[2], sel=(sH192, 576, "L_out", "L_outl"))
                    else: code_touch(p, "L_b1_a", "L_b2", CT, aDUM[2], sel=(sH192, 576, "L_out", "L_codeend"))
                if cc == 5:
                    for s3 in range(3):
                        p.dsr(KE(s3), vq, 768 + s3 * 64, res=[("sKQ", 0)])
                        p.dsr(QE(s3), vq, s3 * 64, res=[("sKQ", 0)])
                    if ZM:
                        p.valu("v_cndmask_b32", vNM, 0, -1, sEx0)
                        for s3 in range(3):
                            for q in range(4):
                                p.valu("v_and_b32", KE(s3)[q], vNM, KE(s3)[q]); p.valu("v_and_b32", QE(s3)[q], vNM, QE(s3)[q])
    p.pacer.flush()
    prefetch_next(p, 9)
    return p

def gen_sel(p):
    n_, g_, tq, c = v(24), v(25), v(60), v(61)
    t1 = v(62)
    p.valu("v_and_b32", n_, 15, vTID); p.valu("v_lshrrev_b32", g_, 4, vTID)
    p.valu("v_and_b32", tq, 3, n_); p.valu("v_cmp_eq_u32", "vcc", tq, g_)
    p.valu("v_lshrrev_b32", c, 2, n_); p.mov(tq, 63); p.valu("v_cndmask_b32", c, tq, c, "vcc")
    p.mov(n_, 0x3f80)
    for q in range(4):
        p.valu("v_cmp_eq_u32", "vcc", q, c)
        p.valu("v_cndmask_b32", tq, 0, n_, "vcc"); p.accw(SEL[0][q], tq)
        p.valu("v_lshlrev_b32", t1, 16, tq); p.accw(SEL[1][q], t1)

def gen_out_offsets(p):
    n_ = TMP[0]; g_ = TMP[1]; tq = TMP[2]; rr = TMP[3]; cc = TMP[4]
    p.valu("v_and_b32", n_, 15, vTID); p.valu("v_lshrrev_b32", g_, 4, vTID)
    p.salu("s_add_u32", sT[0], sY0, sWY7); p.salu("s_mul_i32", sT[0], sT[0], ROWB)
    p.salu("s_add_u32", sT[1], sX0, sWX7); p.salu("s_mul_i32", sT[1], sT[1], 768); p.salu("s_add_u32", sT[0], sT[0], sT[1])
    p.salu("s_mov_b32", sT[2], ROWB)
    p.valu("v_lshlrev_b32", n_, 3, n_); p.valu("v_add_u32", n_, sT[0], n_); p.valu("v_lshlrev_b32", g_, 2, g_)
    for t in range(3):
        for r in range(4):
            p.valu("v_add_u32", tq, 16 * t + r + 1, g_)
            p.valu("v_subrev_u32", rr, sSkip1, tq); p.valu("v_lshrrev_b32", rr, 31, rr); p.valu("v_sub_u32", tq, tq, rr)
            p.valu("v_mul_u32_u24", rr, 37, tq); p.valu("v_lshrrev_b32", rr, 8, rr)
            p.valu("v_mul_u32_u24", cc, 7, rr); p.valu("v_sub_u32", cc, tq, cc)
            p.valu("v_mul_lo_u32", rr, rr, sT[2]); p.valu("v_mul_u32_u24", cc, 768, cc)
            p.valu("v_add3_u32", vOUT[t][r], rr, cc, n_)

OE = [v(120 + kb * 4, 4) for kb in range(7)] + [v(184 + kb * 4, 4) for kb in range(5)]
XEF = [v(112, 4), v(116, 4), v(236, 4), v(240, 4), v(12, 4), v(16, 4)]
vOE = v(206); vOUTE = v(207); ETMP = [v(212), v(213), v(215), v(5)]; SELW = v(8, 4); vXBL = v(214)

TABLAT = int(os.environ.get("TABLAT", "2200"))
BARKS = int(os.environ.get("BARKS", "16"))
def out_tiles(p, fs, cc, base, tile, dwf=None, extra=None, pre=None):
    G = cc >> 1
    hook = p.pacer.tick
    dgs = [dwf(0, hook), dwf(1, hook)] if dwf else []
    def step():
        while dgs:
            try:
                next(dgs[0]); return
            except StopIteration: dgs.pop(0)
    barks = BARKS if dwf else 11
    last = int(os.environ.get("DWLAST", "11"))
    units = [round(1 + (last - 1) * k / 5) for k in range(6)] if dwf else []
    accs = [ACC3[tile[0] % 3], ACC3[(tile[0] + 1) % 3]]; tile[0] += 2
    if cc == 0:
        order = [(0, kb) for kb in range(9)] + [(1, kb) for kb in range(9)] + [(0, kb) for kb in range(9, 12)] + [(1, kb) for kb in range(9, 12)]
    else:
        order = [(e, kb) for e in range(2) for kb in range(12)]
    for ks, (e, kb) in enumerate(order):
        acc = accs[e]
        if kb == 0:
            for t in range(3): hook(p.mfma(acc[t], X(2 * G + (cc & 1), t), SEL[e], None))
        if pre and ks in pre:
            for f in pre[ks]: f()
        res = [("ch", cc)] + ([("last", 0)] if cc == 11 else [])
        w = fs.get(base, e * TILE_B + kb * 1024, res)
        for t in range(3):
            i = p.mfma(acc[t], OH(kb // 3, kb % 3, t), w, acc[t])
            if ks == (barks if dwf else TAGK) and t == 0: i.wr.append(("T", cc))
            hook(i)
        for _ in range(units.count(ks)): step()
        if extra is not None and ks < 12: next(extra)
        if ks == 11 and extra is not None:
            for _ in extra: pass
        if ks == barks:
            while dgs: step()
            yield ks

def blk_parkload():
    p = Prog("parkld")
    for kb in range(3):
        for t in range(3): p.dsr(OH0(kb, t), vPK, (kb * 3 + t) * 1024, res=[("park", 0)])
    return p

ACCE2 = v(232, 4)
def blk_out(r0, last):
    from prep2 import sp_index
    p = Prog("out" + ("x" if r0 else "") + ("l" if last else ""))
    if os.environ.get("FINE") == p.name: p.fine = [207 if not last else 215, 0]; p.raw("s_memtime s[88:89]", "salu")
    fs = FragStream(p, NPRE); p.pacer = Pacer(p)
    roll = not last
    OPV = [int(x) for x in os.environ.get("OPV", "-1,-1,12,16").split(",")]
    n0 = len(p.ins); gen_sel(p)
    for i in p.ins[n0:]: i.prio = -10**6
    pv_start(p, 3)
    OUTT = [v(224, 4), v(228, 4), v(60, 4)]
    p.salu("s_add_u32", sU[4], sTab, 4096)
    for t in range(3):
        i = p.vld(OUTT[t], vL16, SRD_WS, sU[4], 1024 * t, res=[("tab", 0)]); i.lat = TABLAT
    p.salu("s_add_u32", sT[0], sY0, sWY7); p.salu("s_mul_i32", sT[0], sT[0], ROWB)
    p.salu("s_add_u32", sT[1], sX0, sWX7); p.salu("s_mul_i32", sT[1], sT[1], 768); p.salu("s_add_u32", sT[2], sT[0], sT[1])
    for t in range(3):
        for r in range(4): p.valu("v_add_u32", vOUT[t][r], sT[2], vOUT[t][r])
    if roll:
        p.salu("s_add_u32", sY0n, sY0, 14)
        gen_x_rows(p, sY0n)
        gen_x_cols(p, XVO, TMP)
        p.bar(wr=[("park", 0), ("ch", -1), ("xfr", 0), ("xfr", 1), ("xfr", 2), ("dfr", 0), ("dfr", 1)])
        for j in range(3): x_dma(p, XVO, j, XSB + xslot(j), [("xb", j)], [("xfr", j)], prio=-int(os.environ.get("XPRIO", "200")))
        for j in range(2): dwfrag_dma(p, j, DSL[j], [("dw", j)], [("dfr", j)])
    for k in range(4):
        if OPV[k] < 0: pv_group(p, 3, False, k)
    DD = []
    def post_pv_setup():
        if roll:
            for k in range(4):
                i = p.vld(DWA[4 * k:4 * k + 4], vL16, SRD_WS, sTab, k * 1024, res=[("tab", 0)]); i.lat = TABLAT
            sp_index(p, vIDX, TMP[6])
            p.valu("v_add_u32", vDAb, DSL[0], vL16)
            DD.append(roll_regs())
        else:
            n_ = TMP[0]; g_ = TMP[1]; ye = TMP[3]; xe = TMP[4]; tq = TMP[2]
            p.valu("v_and_b32", n_, 15, vTID); p.valu("v_lshrrev_b32", g_, 4, vTID)
            p.valu("v_min_u32", tq, 11, n_); p.valu("v_mul_u32_u24", vOE, STOK, tq); p.valu("v_lshl_add_u32", vOE, g_, 4, vOE); p.valu("v_add_u32", vOE, STASH, vOE)
            p.valu("v_lshrrev_b32", ye, 2, n_); p.valu("v_add_u32", ye, sSR3, ye); p.valu("v_mul_u32_u24", ye, 14, ye)
            p.valu("v_bfe_u32", tq, n_, 1, 1); p.valu("v_add3_u32", ye, ye, tq, 6)
            p.valu("v_and_b32", tq, 1, n_); p.valu("v_add3_u32", xe, tq, sX0, 6)
            p.salu("s_mov_b32", sT[3], ROWB)
            p.valu("v_mul_lo_u32", ye, ye, sT[3]); p.valu("v_mul_u32_u24", xe, 768, xe)
            p.salu("s_lshl_b32", sT[3], sW, 1); p.salu("s_and_b32", sT[4], sW, 1)
            p.valu("v_lshlrev_b32", tq, 5, g_); p.valu("v_add3_u32", vOUTE, ye, xe, tq); p.valu("v_add_u32", vOUTE, sT[3], vOUTE)
            p.mov(tq, OOB); p.valu("v_cndmask_b32", vOUTE, tq, vOUTE, sEx)
            p.valu("v_cmp_eq_u32", s(82, 2), 1, sT[4])
            for q in range(4):
                p.accr(SELW[q], SEL[0][q]); p.accr(tq, SEL[1][q]); p.valu("v_cndmask_b32", SELW[q], SELW[q], tq, s(82, 2))
            for j in range(6):
                p.salu("s_add_u32", sT[8], sXS, j * 1024)
                i = p.vld(XEF[j], vL16, SRD_WS, sT[8], 0, res=[("xs", 0)]); i.lat = TABLAT

    def pvk(k):
        pv_group(p, 3, False, k)
        if k == 3: post_pv_setup()
    pre0 = {}
    for k in range(4):
        if OPV[k] >= 0: pre0.setdefault(OPV[k], []).append(lambda k=k: pvk(k))
    if OPV[3] < 0: post_pv_setup()
    tile = [0]
    W0, WS_, X0_, XS_, D0_, S0, SS_ = [int(x) for x in os.environ.get("PACE", "6,6,46,6,1,4,7").split(",")]
    for cc in range(12):
        slot = (cc % 3) * SLOT if roll else (cc & 3) * SLOT
        br = vWB[cc % 3]
        if cc > 0: p.valu("v_add_u32", br, slot, vL16)
        t0 = tile[0]
        dwf = None
        if roll and cc >= 2:
            dwf = lambda hh, hook, j=cc - 2: dw_ctile_gen(p, DD[0], j, hh, vDAb, (j % 2) * 6144, xslot(j) + hh * 512, [("dw", j), ("xb", j)], hook)
        ex = None
        if last and cc % 2 == 1:
            def exgen(cc=cc):
                j = cc // 2
                if cc == 1:
                    for kb in range(12): p.dsr(OE[kb], vOE, kb * 64, res=[("sO", 0)])
                p.salu("s_cmp_ge_u32", sW, 2); p.salu("s_mov_b32", sT[1], ((cc - 1) & 3) * SLOT); p.salu("s_cselect_b32", sT[0], (cc & 3) * SLOT, sT[1])
                p.salu("s_add_u32", sT[0], sT[0], sW1)
                p.valu("v_add_u32", vXBL, sT[0], vL16)
                p.mfma(ACCE2, SELW, XEF[j], None)
                for kb in range(12):
                    w = fs.get(vXBL, kb * 1024, [("ch", cc - 1), ("ch", cc)])
                    p.pacer.tick(p.mfma(ACCE2, w, OE[kb], ACCE2))
                    yield kb
                sts = []
                for r in range(4):
                    p.cvtpk(ETMP[r], ACCE2[r], ACCE2[r])
                    def st(tag=None, r=r, j=j):
                        i = p.vst(ETMP[r], vOUTE, SRD_OUT, 0, j * 128 + r * 8, op="buffer_store_short")
                        if tag is not None: i.rd.append(tag)
                    sts.append(st)
                p.pacer.add(sts, 6, 6)
            ex = exgen()
        g = out_tiles(p, fs, cc, br, tile, dwf, ex, pre0 if cc == 0 else None)
        next(g)
        if roll:
            wr = [("ch", cc + 1), ("ch", cc - 1), ("fr", cc + 2)]
            if cc >= 1: wr += [("xb", cc - 1), ("dw", cc - 1)]
            if cc >= 2: wr += [("xb", cc - 2), ("xfr", cc + 1), ("dw", cc - 2), ("dfr", cc)]
            if cc == 10: wr += [("fr", 100)]
            if cc == 11: wr += [("fr", 101), ("ch", 100)]
            p.bar(rd=[("T", cc)], wr=wr)
            if 2 <= cc <= 11: p.pacer.add(dwfrag_list(p, cc, DSL[cc % 2], [("dw", cc)], [("dfr", cc)]), D0_, 2)
            if not os.environ.get("NOWDMA"):
                if 1 <= cc <= 9: p.pacer.add(ring_dma_list(p, cc + 2, slot=((cc + 2) % 3) * SLOT), W0, WS_)
            if cc == 10: p.pacer.add(ring_dma_list(p, 100, first=True, slot=0), W0, WS_)
            if cc == 11: p.pacer.add(ring_dma_list(p, 101, slot=SLOT), W0, 5)
            if 2 <= cc <= 10: p.pacer.add(x_dma_list(p, XVO, cc + 1, XSB + xslot(cc + 1), [("xb", cc + 1)], [("xfr", cc + 1)]), X0_, XS_)
            if cc == 8: code_touch(p, "L_round", "L_out", [v(212), v(213), v(214)], aDUM[2])
            if cc in [int(x) for x in os.environ.get("RETOUCH", "").split(",") if x]: code_touch(p, "L_out", "L_outl", [v(212), v(213), v(214)], aDUM[2])
        else:
            if cc in [int(x) for x in os.environ.get("RETOUCHL", "").split(",") if x]: code_touch(p, "L_outl", "L_codeend", [v(6), v(7), v(21)], aDUM[2])
            if cc < 11:
                wr = [("ch", cc + 1), ("ch", cc - 1), ("fr", cc + 3)]
                if cc == 0: wr += [("sO", 0)]
                p.bar(rd=[("T", cc)], wr=wr)
                if cc + 3 <= 11 and not os.environ.get("NOWDMA"): p.pacer.add(ring_dma_list(p, cc + 3, slot=((cc + 3) & 3) * SLOT), 1, 11)
        for _ in g: pass
        accs = [ACC3[t0 % 3], ACC3[(t0 + 1) % 3]]
        h = cc & 1; G = cc >> 1
        sts = []
        for t in range(3):
            for r in range(4):
                p.cvtpk(PK(t, r)[h], accs[0][t][r], accs[1][t][r])
                if h == 1 and not os.environ.get("NOSTORE"):
                    def st(tag=None, t=t, r=r, G=G):
                        i = p.vst(PK(t, r), vOUT[t][r], SRD_OUT, 0, G * 128, mods=os.environ.get("STMOD", "").replace("_", " "))
                        if tag is not None: i.rd.append(tag)
                    sts.append(st)
        p.pacer.add(sts, S0, SS_ if roll else 5)
    p.pacer.flush()
    if roll:
        round_setup(p, True)
        p.valu("v_add_u32", vWB[0], 0, vL16)
        for f in range(NPRE): p.dsr(WR(f), vWB[0], f * 1024, res=[("ch", 100)])
    return p
```

```python
from ir import *
from regs import *
from prep import WS_WO, WS_DW, WS_END, WS_XS, WS_TAB, WS_USED, TILE_B, dw_off
import math, os, struct

XBYTES = 378 * 378 * 768
ROWB = 378 * 768
OOB = 0x80000000
C_LOG2 = math.log2(math.e) / math.sqrt(96.0)
def f2u(x): return struct.unpack("<I", struct.pack("<f", x))[0]
NPRE = 4
XMOD = os.environ.get("XMOD", "_nt").replace("_", " ")
XMOD2 = os.environ.get("XMOD2", "").replace("_", " ")
TAGK = int(os.environ.get("TAGK", "7"))

def ex_bundle(p, mask, fn, kind, rd, wr, cost):
    q = Prog("tmp"); fn(q)
    txt = f"s_mov_b64 exec, {mask}\n" + "\n".join(i.text for i in q.ins) + "\ns_mov_b64 exec, -1"
    rds = [r for i in q.ins for r in i.rd] + mask.regs(); wrs = [r for i in q.ins for r in i.wr]
    return p.add(I(txt, kind, rds + list(rd), wrs + list(wr), cost=cost))

_cp = [0]
def code_touch(p, lab_from, lab_to, T, dst, sel=None, prio=0):
    if os.environ.get("NOCODE"): return
    _cp[0] += 1
    L = f"L_cp{_cp[0]}"
    A = v(T[0].b, 2); t = T[2]
    s96, s97, s98, s99, s100, s101 = [s(96 + i) for i in range(6)]
    p.add(I(f"s_getpc_b64 s[96:97]\n{L}:", "salu", [], [s(96, 2)], prio=prio))
    p.add(I(f"s_mov_b32 s98, {lab_from}-{L}", "salu", [], [s98], prio=prio))
    p.add(I(f"s_mov_b32 s99, {lab_to}-{lab_from}", "salu", [], [s99], prio=prio))
    if sel is not None:
        sr, val, f2, t2 = sel
        p.add(I(f"s_mov_b32 s100, {f2}-{L}", "salu", [], [s100], prio=prio))
        p.add(I(f"s_mov_b32 s101, {t2}-{f2}", "salu", [], [s101], prio=prio))
        p.salu("s_cmp_eq_u32", sr, val, prio=prio); p.salu("s_cselect_b32", s98, s100, s98, prio=prio); p.salu("s_cselect_b32", s99, s101, s99, prio=prio)
    p.salu("s_ashr_i32", s100, s98, 31, scc_w=True, prio=prio)
    p.salu("s_add_u32", s96, s96, s98, prio=prio); p.salu("s_addc_u32", s97, s97, s100, prio=prio)
    p.salu("s_lshr_b32", s100, S_WG, 3, prio=prio); p.salu("s_and_b32", s100, s100, 31, prio=prio); p.salu("s_lshl_b32", s100, s100, 13, prio=prio)
    p.salu("s_add_u32", s101, s99, 8191, prio=prio); p.salu("s_and_b32", s101, s101, 0xffffe000, prio=prio)
    for sh in (3, 2, 1, 0):
        p.salu("s_lshl_b32", s98, s101, sh, prio=prio); p.salu("s_cmp_ge_u32", s100, s98, prio=prio)
        p.salu("s_cselect_b32", s98, s98, 0, prio=prio); p.salu("s_sub_u32", s100, s100, s98, prio=prio)
    p.salu("s_sub_u32", s99, s99, 4, prio=prio)
    p.valu("v_lshlrev_b32", t, 7, vTID, prio=prio); p.valu("v_add_u32", t, s100, t, prio=prio); p.valu("v_min_u32", t, s99, t, prio=prio)
    p.add(I(f"v_add_co_u32 {A[0]}, vcc, s96, {t}", "valu", [s96, t], [A[0], "vcc"], prio=prio))
    p.mov(A[1], s97, prio=prio)
    p.add(I(f"v_addc_co_u32 {A[1]}, vcc, 0, {A[1]}, vcc", "valu", [A[1], "vcc"], [A[1], "vcc"], prio=prio))
    p.add(I(f"global_load_dword {dst}, {A}, off", "vld", [A], [dst], cost=8, prio=prio))

SRD_DBG = s(4, 4); SRD_DW = s(96, 4)
NPREP = 12; NWG = NPREP + 243
def blk_entry():
    p = Prog("entry")
    p.raw(f"s_cmp_lt_u32 s2, {NWG}\ns_cbranch_scc1 L_go\ns_endpgm\nL_go:", "br", rd=[s(2)], wr=["scc"])
    p.raw("s_load_dwordx2 s[4:5], s[0:1], 40\ns_load_dwordx2 s[6:7], s[0:1], 32\ns_load_dwordx2 s[38:39], s[0:1], 48\n"
          "s_load_dwordx4 s[40:43], s[0:1], 8\ns_load_dwordx2 s[44:45], s[0:1], 24\ns_load_dwordx2 s[46:47], s[0:1], 0\ns_waitcnt lgkmcnt(0)",
          "salu", wr=[s(4, 2), s(6, 2), s(38, 2), s(40, 4), s(44, 2), s(46, 2)])
    for dst, src, n in ((8, 46, XBYTES), (16, 6, XBYTES), (12, 38, WS_USED)):
        p.salu("s_mov_b32", s(dst), s(src)); p.salu("s_mov_b32", s(dst + 1), s(src + 1))
        p.salu("s_mov_b32", s(dst + 2), n); p.salu("s_mov_b32", s(dst + 3), 0x20000)
    p.salu("s_mov_b32", s(6), 256); p.salu("s_mov_b32", s(7), 0x20000)
    p.valu("v_lshrrev_b32", TMP[0], 6, vTID)
    p.valu("v_and_b32", vTID, 63, vTID)
    p.valu("v_readfirstlane_b32", sW, TMP[0])
    p.valu("v_lshlrev_b32", vL16, 4, vTID)
    p.raw(f"s_cmp_ge_u32 s2, {NPREP}\ns_cbranch_scc1 L_main", "br", rd=[s(2)], wr=["scc"])
    p1 = p; p = Prog("entry2"); p.label("L_main")
    p.salu("s_mov_b32", s(96), s(40)); p.salu("s_mov_b32", s(97), s(41)); p.salu("s_mov_b32", s(98), 9 * 768); p.salu("s_mov_b32", s(99), 0x20000)
    p.salu("s_and_b32", sT[11], S_WG, 7)
    p.salu("s_lshr_b32", s(49), S_WG, 3)
    p.salu("s_cmp_lt_u32", sT[11], 4); p.salu("s_cselect_b32", s(62), 2, 1); p.salu("s_sub_u32", s(49), s(49), s(62))
    p.salu("s_mul_i32", s(62), sT[11], 30); p.salu("s_add_u32", s(49), s(49), s(62))
    p.salu("s_max_u32", s(62), sT[11], 4); p.salu("s_sub_u32", s(62), s(62), 4); p.salu("s_add_u32", sWG, s(49), s(62))
    p.salu("s_mul_i32", sT[0], sWG, 2428); p.salu("s_lshr_b32", sT[0], sT[0], 16)
    p.salu("s_mul_i32", sT[1], sT[0], 27); p.salu("s_sub_u32", sQX, sWG, sT[1])
    p.salu("s_mul_i32", sSR3, sT[0], 3); p.salu("s_mul_i32", sX0, sQX, 14)
    p.salu("s_mul_i32", sW6, sW, 6144); p.salu("s_lshl_b32", sW4k, sW, 12)
    p.salu("s_mov_b32", sC, f2u(C_LOG2)); p.salu("s_mov_b32", sNegC, f2u(-C_LOG2))
    p.salu("s_mov_b32", sI384, f2u(1.0 / 384)); p.salu("s_mov_b32", sEps, f2u(1e-5))
    p.salu("s_mov_b32", sRound, 0)
    p.salu("s_lshl_b32", sXS, sWG, 2); p.salu("s_add_u32", sXS, sXS, sW); p.salu("s_mul_i32", sXS, sXS, 6144); p.salu("s_add_u32", sXS, sXS, WS_XS)
    p.salu("s_lshl_b32", sT[0], sWG, 2); p.salu("s_add_u32", sT[0], sT[0], sW); p.salu("s_lshl_b32", sT[0], sT[0], 13); p.salu("s_add_u32", sTab, sT[0], WS_TAB)
    p.salu("s_and_b32", sT[1], sW, 1); p.salu("s_mul_i32", sW1, sT[1], 12288); p.salu("s_mul_i32", sWX7, sT[1], 7)
    p.salu("s_lshr_b32", sT[1], sW, 1); p.salu("s_mul_i32", sWY7, sT[1], 7)
    p.salu("s_mov_b32", sSkip1, 49)
    for w, val in ((1, 43), (2, 7), (3, 1)):
        p.salu("s_cmp_eq_u32", sW, w); p.salu("s_cselect_b32", sSkip1, val, sSkip1)
    n_ = TMP[1]; g_ = TMP[2]
    p.valu("v_and_b32", n_, 15, vTID); p.valu("v_lshrrev_b32", g_, 4, vTID)
    p.valu("v_and_b32", TMP[3], 3, n_)
    if os.environ.get("ZM"):
        assert os.environ.get("VSTAT"), "ZM reuses sM3"
        p.valu("v_cmp_eq_u32", sM3, 0, g_)
    else:
        p.valu("v_cmp_eq_u32", sM1, 1, TMP[3]); p.valu("v_cmp_eq_u32", sM2, 2, TMP[3]); p.valu("v_cmp_eq_u32", sM3, 3, TMP[3])
    p.valu("v_cmp_gt_u32", sEx, 12, n_); p.valu("v_cmp_eq_u32", sEx0, 0, n_)
    p.valu("v_cmp_eq_u32", "vcc", 0, g_)
    p.valu("v_cndmask_b32", vGM, 0, 1.0, "vcc")
    p.valu("v_mul_u32_u24", vSW, STOK, n_); p.valu("v_lshl_add_u32", vSW, g_, 4, vSW); p.valu("v_add_u32", vSW, STASH, vSW)
    for j in range(5):
        vals = []
        for w in range(4):
            u = 4 * j + w if j < 4 else 16 + (w & 1)
            ty, a_ = divmod(u, 6)
            vals.append([768, 0, 1536][ty] + (a_ >> 1) * 64 + (a_ & 1) * 8)
        d = sEoff[j]
        p.salu("s_mov_b32", d, vals[0])
        for w in range(1, 4):
            p.salu("s_cmp_eq_u32", sW, w); p.salu("s_cselect_b32", d, vals[w], d)
    return p1, p

def round_setup(p, next_round):
    if next_round: p.salu("s_add_u32", sRound, sRound, 1)
    p.salu("s_add_u32", sT[0], sSR3, sRound); p.salu("s_mul_i32", sY0, sT[0], 14)
    p.salu("s_lshl_b32", sT[2], sRound, 2); p.salu("s_add_u32", sT[2], sT[2], sW)
    p.salu("s_mul_i32", sT[2], sT[2], STOK); p.salu("s_add_u32", sT[2], sT[2], STASH)
    n_ = TMP[1]; g_ = TMP[2]
    p.valu("v_and_b32", n_, 15, vTID); p.valu("v_lshrrev_b32", g_, 4, vTID)
    p.valu("v_lshlrev_b32", vSQ, 4, g_); p.valu("v_add_u32", vSQ, sT[2], vSQ)
    p.valu("v_lshrrev_b32", TMP[3], 2, n_); p.valu("v_lshlrev_b32", TMP[3], 4, TMP[3])
    p.valu("v_and_b32", TMP[4], 3, n_); p.valu("v_lshl_add_u32", TMP[3], TMP[4], 1, TMP[3])
    p.salu("s_add_u32", sT[2], sT[2], 1536)
    p.valu("v_add_u32", vSV, sT[2], TMP[3])

def tap_dydx(tap):
    if tap == 9: tap = 4
    return tap // 3 - 1, tap % 3 - 1

def gen_dw_addrs(p, dst, T):
    n_, g_, hi, b16, R0, C0, tR, tC, tL, tq = T
    p.valu("v_and_b32", n_, 15, vTID); p.valu("v_lshrrev_b32", g_, 4, vTID)
    p.valu("v_lshrrev_b32", hi, 1, g_)
    p.valu("v_and_b32", b16, 1, g_); p.valu("v_lshlrev_b32", b16, 4, b16)
    p.valu("v_cmp_eq_u32", "vcc", 1, hi)
    for t in range(3):
        p.valu("v_add_u32", tq, 16 * t + 1, n_)
        p.valu("v_subrev_u32", R0, sSkip1, tq); p.valu("v_lshrrev_b32", R0, 31, R0); p.valu("v_sub_u32", tq, tq, R0)
        p.valu("v_mul_u32_u24", R0, 37, tq); p.valu("v_lshrrev_b32", R0, 8, R0)
        p.valu("v_mul_u32_u24", C0, 7, R0); p.valu("v_sub_u32", C0, tq, C0)
        p.salu("s_add_u32", sT[0], sWY7, 1); p.salu("s_add_u32", sT[1], sWX7, 1)
        p.valu("v_add_u32", R0, sT[0], R0); p.valu("v_add_u32", C0, sT[1], C0)
        for pp in range(5):
            dy0, dx0 = tap_dydx(2 * pp); dy1, dx1 = tap_dydx(2 * pp + 1)
            p.mov(tR, dy0); p.mov(tq, dy1); p.valu("v_cndmask_b32", tR, tR, tq, "vcc"); p.valu("v_add_u32", tR, tR, R0)
            p.mov(tC, dx0); p.mov(tq, dx1); p.valu("v_cndmask_b32", tC, tC, tq, "vcc"); p.valu("v_add_u32", tC, tC, C0)
            p.valu("v_mul_u32_u24", tL, 7, tR); p.valu("v_add_u32", tL, tL, tC); p.valu("v_and_b32", tL, 7, tL)
            d = dst(t, pp)
            p.valu("v_lshlrev_b32", d, 10, tR)
            p.valu("v_lshl_add_u32", d, tL, 5, d)
            p.valu("v_lshrrev_b32", tC, 3, tC)
            p.valu("v_lshl_add_u32", d, tC, 8, d)
            p.valu("v_add_u32", d, d, b16)

def gen_x_cols(p, xvo, T):
    u, be, hh, chi, kap, base, cc, xx, t8 = T[:9]
    p.valu("v_lshrrev_b32", u, 4, vTID); p.valu("v_and_b32", be, 15, vTID)
    p.valu("v_lshrrev_b32", hh, 1, u); p.valu("v_and_b32", chi, 1, u)
    p.valu("v_lshrrev_b32", kap, 1, be)
    p.valu("v_and_b32", base, 1, be); p.valu("v_lshlrev_b32", base, 4, base)
    p.valu("v_lshl_add_u32", base, hh, 5, base)
    p.valu("v_lshlrev_b32", chi, 3, chi)
    p.salu("s_lshl_b32", sU[0], sW, 2)
    p.salu("s_sub_u32", sU[2], sX0, 1); p.salu("s_mov_b32", sU[5], 378)
    p.mov(t8, OOB)
    for i in range(4):
        p.salu("s_add_u32", sU[1], sU[0], i)
        p.valu("v_add_u32", cc, sU[1], kap); p.valu("v_and_b32", cc, 7, cc); p.valu("v_add_u32", cc, cc, chi)
        p.valu("v_add_u32", xx, sU[2], cc)
        p.valu("v_mul_u32_u24", xvo[i], 768, xx); p.valu("v_add_u32", xvo[i], xvo[i], base)
        p.valu("v_cmp_gt_u32", "vcc", sU[5], xx)
        p.valu("v_cndmask_b32", xvo[i], t8, xvo[i], "vcc")

def gen_x_rows(p, sy0):
    p.salu("s_lshl_b32", sU[0], sW, 2); p.salu("s_add_u32", sU[0], sU[0], sy0); p.salu("s_sub_u32", sU[0], sU[0], 1)
    for i in range(4):
        p.salu("s_add_u32", sU[1], sU[0], i); p.salu("s_mul_i32", sRow[i], sU[1], ROWB)
        p.salu("s_cmp_lt_u32", sU[1], 378); p.salu("s_cselect_b32", sRow[i], sRow[i], OOB)

def x_dma_list(p, xvo, j, ldsbase, res, rd_res, prio=0):
    if os.environ.get("NOXDMA") and p.name != "pro": return []
    xm = XMOD if p.name == "pro" else XMOD2
    def one(i):
        def f(tag=None):
            a_ = p.salu("s_add_u32", "m0", sW4k, ldsbase + i * 1024, prio=prio)
            if tag is not None: a_.rd.append(tag)
            p.salu("s_add_u32", sU[0], sRow[i], j * 64, prio=prio)
            p.dma(xvo[i], SRD_X, sU[0], 0, res=res, rd_res=rd_res, prio=prio, mods=xm)
        return f
    return [one(i) for i in range(4)]
def x_dma(p, xvo, j, ldsbase, res, rd_res, prio=0):
    for f in x_dma_list(p, xvo, j, ldsbase, res, rd_res, prio): f()

def dwfrag_list(p, j, ldsbase, res, rd_res, prio=0):
    src = dw_off(j)
    def mk(k):
        def f(tag=None):
            if k == 0: a_ = p.salu("s_lshl_b32", sT[7], sW, 10, prio=prio)
            else:
                a_ = p.salu("s_and_b32", sT[7], sW, 1, prio=prio); p.salu("s_lshl_b32", sT[7], sT[7], 10, prio=prio)
            if tag is not None: a_.rd.append(tag)
            p.salu("s_add_u32", sT[8], sT[7], src + k * 4096, prio=prio); p.salu("s_add_u32", "m0", sT[7], ldsbase + k * 4096, prio=prio)
            p.dma(vL16, SRD_WS, sT[8], 0, res=res, rd_res=rd_res, prio=prio)
        return f
    return [mk(0), mk(1)]
def dwfrag_dma(*a, **k):
    for f in dwfrag_list(*a, **k): f()

class DwRegs:
    def __init__(self, addr, A, B8, B4, acc, T, sumv, ssq, idx):
        self.addr, self.A, self.B8, self.B4, self.acc, self.T, self.sumv, self.ssq, self.idx = addr, A, B8, B4, acc, T, sumv, ssq, idx
        self.b8 = 0; self.b4 = 0; self.ai = 0; self.ti = 0; self.ci = 0

def dw_ctile_gen(p, D, j, hh, abase, aoff, xoff, res, hook=None):
    nA = len(D.A)
    A = []
    for f in range(3):
        r = D.A[D.ai % nA]; D.ai += 1
        if abase is None: build_afrag(p, r, f, 2 * j + hh)
        else: p.dsr(r, abase, aoff + hh * 3072 + f * 1024, res=res)
        A.append(r)
    for t in range(getattr(D, "ntile", 3)):
        acc = D.acc[D.ci % len(D.acc)]; D.ci += 1
        def rd(dst, pp):
            if t < 3: p.dsr(dst, D.addr(t, pp), xoff, res=res)
            else: p.dsr(dst, D.eaddr(pp), j * 64 + hh * 32, res=[("est", 0)])
        B = D.B4[D.b4 % len(D.B4)]; D.b4 += 1
        rd(B, 4)
        i = p.mfma(acc, A[2], B, None)
        if hook: hook(i)
        for sx in range(2):
            B = D.B8[D.b8 % len(D.B8)]; D.b8 += 1
            rd(B[0:4], 2 * sx); rd(B[4:8], 2 * sx + 1)
            i = p.smfmac(acc, A[sx], B, D.idx)
            if hook: hook(i)
        first = (j == 0 and hh == 0)
        if not getattr(D, "stats", True): pass
        elif first:
            p.valu("v_add_f32", D.sumv[t], acc[0], acc[1]); p.valu("v_mul_f32", D.ssq[t], acc[0], acc[0])
            p.valu("v_add_f32", D.sumv[t], D.sumv[t], acc[2]); p.valu("v_fma_f32", D.ssq[t], acc[1], acc[1], D.ssq[t])
            p.valu("v_add_f32", D.sumv[t], D.sumv[t], acc[3]); p.valu("v_fma_f32", D.ssq[t], acc[2], acc[2], D.ssq[t])
            p.valu("v_fma_f32", D.ssq[t], acc[3], acc[3], D.ssq[t])
        else:
            for r in range(4):
                p.valu("v_add_f32", D.sumv[t], D.sumv[t], acc[r]); p.valu("v_fma_f32", D.ssq[t], acc[r], acc[r], D.ssq[t])
        t0 = D.T[D.ti % len(D.T)]; t1 = D.T[(D.ti + 1) % len(D.T)]; D.ti += 2
        p.cvtpk(t0, acc[0], acc[1]); p.cvtpk(t1, acc[2], acc[3])
        ct = 2 * j + hh; G = ct >> 2; u = ct & 3
        XX = (lambda kb: X(kb, t)) if t < 3 else XE
        p.accw(XX(2 * G)[u], t0); p.accw(XX(2 * G + 1)[u], t1)
        yield t

def dw_ctile(*a, **k):
    for _ in dw_ctile_gen(*a, **k): pass

def stats_mfma(p, kbs, S, G, ONE):
    for kb in kbs:
        for t in range(3):
            p.mfma(S[t], ONE, X(kb, t), None if kb == 0 else S[t])
            p.mfma(G[t], X(kb, t), X(kb, t), None if kb == 0 else G[t])

def stats_mfma_fin(p, S, G, T):
    t0, t1, t2, adr, g16 = T[:5]
    p.valu("v_and_b32", t0, 15, vTID); p.valu("v_lshrrev_b32", t1, 2, t0)
    p.valu("v_lshl_add_u32", adr, t1, 4, t0); p.valu("v_lshlrev_b32", adr, 2, adr)
    for t in range(3):
        g = G[t]
        p.valu("v_cndmask_b32", t0, g[0], g[1], sM1); p.valu("v_cndmask_b32", t0, t0, g[2], sM2); p.valu("v_cndmask_b32", t0, t0, g[3], sM3)
        p.bperm(t1, adr, t0)
        p.valu("v_mul_f32", t2, sI384, S[t][0]); p.valu("v_mul_f32", t2, t2, t2)
        p.valu("v_fma_f32", t1, t1, sI384, Neg(t2)); p.valu("v_max_f32", t1, 0, t1); p.valu("v_add_f32", t1, sEps, t1)
        p.trans("v_rsq_f32", RC[t], t1)
    p.valu("v_lshrrev_b32", g16, 4, vTID); p.valu("v_lshlrev_b32", g16, 4, g16)
    for t in range(3):
        for r in range(4):
            i = p.bperm(RK(t, r), g16, RC[t]); i.text += f" offset:{4*r}"

def stats_valu(p, D, T):
    t2, t0, g16 = T[:3]
    for t in range(getattr(D, "ntile", 3)):
        for x in (D.sumv[t], D.ssq[t]):
            p.mov(t2, x); p.swap16(x, t2); p.valu("v_add_f32", x, x, t2)
            p.mov(t2, x); p.swap32(x, t2); p.valu("v_add_f32", x, x, t2)
        p.valu("v_mul_f32", t2, sI384, D.sumv[t])
        p.valu("v_mul_f32", t0, t2, t2)
        p.valu("v_fma_f32", t0, D.ssq[t], sI384, Neg(t0))
        p.valu("v_max_f32", t0, 0, t0); p.valu("v_add_f32", t0, sEps, t0)
        p.trans("v_rsq_f32", RC[t] if t < 3 else RCE, t0)
    p.valu("v_lshrrev_b32", g16, 4, vTID); p.valu("v_lshlrev_b32", g16, 4, g16)
    for t in range(3):
        for r in range(4):
            i = p.bperm(RK(t, r), g16, RC[t]); i.text += f" offset:{4*r}"

def slots_setup(p, reset=False, adv=0):
    if reset: p.salu("s_mov_b32", sS0, 0)
    if adv: p.salu("s_add_u32", sS0, sS0, adv)
    for k in range(4):
        p.salu("s_add_u32", sT[0], sS0, k); p.salu("s_and_b32", sT[0], sT[0], 3); p.salu("s_mul_i32", sSl[k], sT[0], SLOT)

def ring_dma_list(p, cid, first=False, prio=0, slot=None):
    sl = sSl[cid & 3] if slot is None else slot
    def mk(k):
        def f(tag=None):
            if k == 0:
                if first: p.salu("s_mov_b32", sSrc, sW6)
                if isinstance(sl, R): p.salu("s_add_u32", sRB, sl, sW6, prio=prio)
                else: p.salu("s_add_u32", sRB, sW6, sl, prio=prio)
            if k == 4: p.salu("s_add_u32", sSrc2, sSrc, 4096, prio=prio)
            if k < 4: p.salu("s_mov_b32", "m0", sRB, prio=prio)
            else: p.salu("s_add_u32", "m0", sRB, 4096, prio=prio)
            i = p.dma(vL16, SRD_WS, sSrc if k < 4 else sSrc2, (k % 4) * 1024, res=[("ch", cid)], rd_res=[("fr", cid)], prio=prio)
            if tag is not None: i.rd.append(tag)
            if k == 5: p.salu("s_add_u32", sSrc, sSrc, SLOT, prio=prio)
        return f
    return [mk(k) for k in range(6)]
def ring_dma(p, cid, first=False, prio=0, slot=None):
    for f in ring_dma_list(p, cid, first, prio, slot): f()

class Pacer:
    cnt = [0]
    def __init__(self, p): self.n = 0; self.q = []; self.p = p
    def add(self, items, start, step, kind=None):
        for k, f in enumerate(items):
            f.kind = kind
            self.q.append((self.n + start + k * step, f))
        self.q.sort(key=lambda x: x[0])
    def flush_kind(self, kind):
        rest = []
        for it in self.q:
            if getattr(it[1], "kind", None) == kind: it[1](None)
            else: rest.append(it)
        self.q = rest
    def tick(self, i):
        self.n += 1
        while self.q and self.q[0][0] <= self.n:
            Pacer.cnt[0] += 1
            tag = ("TP", Pacer.cnt[0]); i.wr.append(tag)
            n0 = len(self.p.ins)
            self.q.pop(0)[1](tag)
            for x in self.p.ins[n0:]: x.pin = i
    def flush(self):
        while self.q: self.q.pop(0)[1](None)

PADDR = v(100, 16)
PXVO = [v(116 + i) for i in range(4)]
PDA = [v(120 + i * 4, 4) for i in range(6)]
PDB8 = [v(144 + i * 8, 8) for i in range(6)]
PDB4 = [v(192 + i * 4, 4) for i in range(2)]
PIDX = v(88); vTS = v(89); MS = [v(90 + q) for q in range(4)]
PACC = [v(200 + i * 4, 4) for i in range(6)]
PSUM = [v(224 + i) for i in range(4)]; PSSQ = [v(228 + i) for i in range(4)]
PDT = [v(70 + i) for i in range(6)]
EADDR = [v(82 + i) for i in range(5)]
vTA = v(68); AM = [v(60 + q) for q in range(4)]
ATMP = [v(76), v(77), v(78), v(79), v(80)]
EVS = [v(36 + i) for i in range(10)]

_at = [0]
def build_afrag(p, dst, f, ct):
    tmp = ATMP[_at[0] % len(ATMP)]; _at[0] += 1
    if f < 2:
        p.dsr(tmp, vTS, f * 3072 + ct * 32, res=[("tbl", 0)], op="ds_read_u16")
        for q in range(4): p.valu("v_and_b32", dst[q], tmp, MS[q])
    else:
        p.dsr(tmp, vTA, 4 * 1536 + ct * 32, res=[("tbl", 0)], op="ds_read_u16")
        p.valu("v_lshl_or_b32", tmp, tmp, 16, tmp)
        for q in range(4): p.valu("v_and_b32", dst[q], tmp, AM[q])

def stage_calc(p):
    u, q, tk, pc, t5 = TMP[0], TMP[1], TMP[2], TMP[3], TMP[4]
    p.salu("s_mul_i32", sU[0], sW, 640)
    p.salu("s_mov_b32", sU[3], 14 * ROWB); p.salu("s_mov_b32", sU[4], ROWB)
    for k in range(10):
        p.valu("v_add_u32", u, sU[0], vTID); p.valu("v_add_u32", u, 64 * k, u)
        p.valu("v_mul_u32_u24", tk, 1338, u); p.valu("v_lshrrev_b32", tk, 16, tk)
        p.valu("v_mul_u32_u24", t5, 49, tk); p.valu("v_sub_u32", pc, u, t5)
        p.valu("v_lshrrev_b32", q, 4, tk)
        d = EVS[k]
        p.valu("v_mul_lo_u32", d, q, sU[3])
        p.valu("v_bfe_u32", t5, tk, 2, 2); p.valu("v_mul_lo_u32", t5, t5, sU[4]); p.valu("v_add_u32", d, d, t5)
        p.valu("v_and_b32", t5, 3, tk); p.valu("v_mul_u32_u24", t5, 768, t5); p.valu("v_add_u32", d, d, t5)
        p.valu("v_lshl_add_u32", d, pc, 4, d)
        p.valu("v_cmp_gt_u32", "vcc", 48, tk); p.mov(t5, OOB); p.valu("v_cndmask_b32", d, t5, d, "vcc")
        p.valu("v_cmp_gt_u32", "vcc", 48, pc); p.valu("v_cndmask_b32", d, t5, d, "vcc")
def stage_dma(p):
    p.salu("s_mul_i32", sU[0], sW, 640)
    p.salu("s_mul_i32", sU[2], sSR3, 14); p.salu("s_add_u32", sU[2], sU[2], 5); p.salu("s_mul_i32", sU[2], sU[2], ROWB)
    p.salu("s_add_u32", sU[3], sX0, 5); p.salu("s_mul_i32", sU[3], sU[3], 768); p.salu("s_add_u32", sT[11], sU[2], sU[3])
    for k in range(10):
        p.salu("s_mul_i32", sU[5], sW, 640 * 16); p.salu("s_add_u32", "m0", sU[5], EST + 1024 * k)
        p.dma(EVS[k], SRD_X, sT[11], 0, res=[("est", 0)], mods=XMOD)

def gen_eaddr(p):
    n_, g_, hi, base, pr, pc, tq = TMP[0:7]
    p.valu("v_and_b32", n_, 15, vTID); p.valu("v_min_u32", n_, 11, n_); p.valu("v_lshrrev_b32", g_, 4, vTID); p.valu("v_lshrrev_b32", hi, 1, g_)
    p.valu("v_lshrrev_b32", tq, 2, n_); p.valu("v_mul_u32_u24", base, ESTQ, tq)
    p.valu("v_and_b32", tq, 1, g_); p.valu("v_lshl_add_u32", base, tq, 4, base); p.valu("v_add_u32", base, EST, base)
    p.valu("v_cmp_eq_u32", "vcc", 1, hi)
    for pp in range(5):
        dy0, dx0 = tap_dydx(2 * pp); dy1, dx1 = tap_dydx(2 * pp + 1)
        p.mov(pr, dy0 + 1); p.mov(tq, dy1 + 1); p.valu("v_cndmask_b32", pr, pr, tq, "vcc")
        p.valu("v_bfe_u32", tq, n_, 1, 1); p.valu("v_add_u32", pr, pr, tq)
        p.mov(pc, dx0 + 1); p.mov(tq, dx1 + 1); p.valu("v_cndmask_b32", pc, pc, tq, "vcc")
        p.valu("v_and_b32", tq, 1, n_); p.valu("v_add_u32", pc, pc, tq)
        p.valu("v_lshl_add_u32", pr, pr, 2, pc); p.valu("v_mul_u32_u24", pr, 784, pr); p.valu("v_add_u32", EADDR[pp], pr, base)

PADDR2 = v(240, 16)
CHK = int(os.environ.get("CHK", "9"))
def gen_out_rel(p, dst, T):
    n_, g_, tq, rr, cc = T
    p.valu("v_and_b32", n_, 15, vTID); p.valu("v_lshrrev_b32", g_, 4, vTID)
    p.salu("s_mov_b32", sT[2], ROWB)
    p.valu("v_lshlrev_b32", n_, 3, n_); p.valu("v_lshlrev_b32", g_, 2, g_)
    for t in range(3):
        for r in range(4):
            p.valu("v_add_u32", tq, 16 * t + r + 1, g_)
            p.valu("v_subrev_u32", rr, sSkip1, tq); p.valu("v_lshrrev_b32", rr, 31, rr); p.valu("v_sub_u32", tq, tq, rr)
            p.valu("v_mul_u32_u24", rr, 37, tq); p.valu("v_lshrrev_b32", rr, 8, rr)
            p.valu("v_mul_u32_u24", cc, 7, rr); p.valu("v_sub_u32", cc, tq, cc)
            p.valu("v_mul_lo_u32", rr, rr, sT[2]); p.valu("v_mul_u32_u24", cc, 768, cc)
            p.valu("v_add3_u32", dst(t, r), rr, cc, n_)

def blk_pro():
    from prep2 import dw_masks, sp_masks, sp_index
    p = Prog("pro")
    if os.environ.get("FINE") == "pro": p.fine = [99, 0]; p.raw("s_memtime s[88:89]", "salu")
    round_setup(p, False)
    slots_setup(p, reset=True)
    gen_x_rows(p, sY0)
    gen_x_cols(p, PXVO, TMP)
    for k in range(2):
        p.salu("s_lshl_b32", sT[7], sW, 10); p.salu("s_add_u32", sT[8], sT[7], k * 4096); p.salu("s_add_u32", "m0", sT[8], TBL)
        p.dma(vL16, SRD_DW, sT[8], 0, res=[("tbl", 0)], prio=-7000)
    def pair_items(G, first=False):
        a_ = x_dma_list(p, PXVO, 2 * G, PXS[(2 * G) % 6], [("xb", 2 * G)], [] if first else [("xfr", 2 * G)], prio=-9000 if first else 0)
        b_ = x_dma_list(p, PXVO, 2 * G + 1, PXS[(2 * G + 1) % 6], [("xb", 2 * G + 1)], [] if first else [("xfr", 2 * G + 1)], prio=-9000 if first else 0)
        return [f for ab in zip(a_, b_) for f in ab]
    for f in pair_items(0, True): f()
    stage_calc(p)
    stage_dma(p)
    for f in pair_items(1, True): f()
    gen_dw_addrs(p, lambda t, pp: PADDR[t * 5 + pp], TMP)
    p.mov(PADDR[15], 0)
    for k in range(15): p.valu("v_add_u32", PADDR2[k], 65536, PADDR[k])
    gen_eaddr(p)
    i_, g_ = TMP[0], TMP[1]
    p.valu("v_and_b32", i_, 15, vTID); p.valu("v_lshrrev_b32", g_, 4, vTID)
    dw_masks(p, i_, g_, AM, TMP[2:7])
    p.valu("v_lshrrev_b32", TMP[2], 1, g_); p.valu("v_mul_u32_u24", vTA, 768, TMP[2]); p.valu("v_lshl_add_u32", vTA, i_, 1, vTA); p.valu("v_add_u32", vTA, TBL, vTA)
    sp_masks(p, i_, MS, TMP[2]); sp_index(p, PIDX, TMP[2])
    p.valu("v_mul_u32_u24", vTS, 768, g_); p.valu("v_lshl_add_u32", vTS, i_, 1, vTS); p.valu("v_add_u32", vTS, TBL, vTS)
    p.bar(wr=[("tbl", 0)])
    p.mov(TMP[3], 0x3f803f80); p.valu("v_lshlrev_b32", TMP[4], 2, vTID); p.valu("v_add_u32", TMP[4], TBL + 9 * 768, TMP[4])
    for k in range(3): p.dsw(TMP[4], TMP[3], k * 256, res=[("tbl", 0)])
    D = DwRegs(lambda t, pp: PADDR[t * 5 + pp], PDA, PDB8, PDB4, PACC, PDT, PSUM, PSSQ, PIDX)
    D.ntile = 4; D.eaddr = lambda pp: EADDR[pp]
    progs = [p]
    p.pacer = Pacer(p)
    for j in range(12):
        if j == CHK:
            p.pacer.flush()
            p = Prog("pro_b"); progs.append(p); p.pacer = Pacer(p)
            if progs[0].__dict__.get("fine") is not None: p.fine = progs[0].fine
        wr = [("xb", j)]
        if j == 0: wr += [("tbl", 0), ("est", 0)]
        if j >= 1: wr.append(("xb", j - 1))
        G = (j + 4) // 2
        if j % 2 == 0 and G <= 5: wr += [("xfr", 2 * G), ("xfr", 2 * G + 1)]
        if j == CHK: wr.append(("fr", 0))
        if j == CHK + 1: wr.append(("fr", 1))
        if j == 11: wr.append(("fr", 2))
        p.bar(wr=wr)
        if j % 2 == 0 and G <= 5:
            items = pair_items(G)
            ps = int(os.environ.get("PSTEP", "6"))
            if j + 1 == CHK: p.pacer.add(items, 2, min(ps, 3))
            else: p.pacer.add(items, 1, ps)
        if j == 1: code_touch(p, "L_pro_b", "L_round", [v(it) for it in (232, 233, 234)], aDUM[2])
        if j == int(os.environ.get("TABJ", "3")):
            TBQ = [v(b, 4) for b in (36, 40, 44, 48, 52, 56, 64, 10)]
            TB = lambda k: TBQ[k >> 2][k & 3]
            for k in range(16): p.valu("v_add_u32", TB(k), XSB, PADDR[k])
            gen_out_rel(p, lambda t, r: TB(16 + 4 * t + r), [v(94), v(95), v(96), v(97), v(98)])
            p.salu("s_add_u32", sT[11], sTab, 4096)
            def st(k):
                def f(tag=None):
                    i = p.vst(TBQ[k], vL16, SRD_WS, sTab if k < 4 else sT[11], (k % 4) * 1024, res=[("tab", 0)])
                    if tag is not None: i.rd.append(tag)
                return f
            p.pacer.add([st(k) for k in range(7)], 3, 5)
        if j == CHK - 2: p.vld(vFLAG, vZERO(p), SRD_DBG, 0, 0, mods=" sc1")
        if j == CHK: p.pacer.add(ring_dma_list(p, 0, first=True), 1, 4)
        if j == CHK + 1: p.pacer.add(ring_dma_list(p, 1), 1, 4)
        if j == 11: p.pacer.add(ring_dma_list(p, 2), 1 if CHK + 1 < 11 else 1, 4)
        hi = (j % 6) >= 4
        D.addr = (lambda t, pp: PADDR2[t * 5 + pp]) if hi else (lambda t, pp: PADDR[t * 5 + pp])
        for hh in range(2):
            dw_ctile(p, D, j, hh, None, 0, PXS[j % 6] - (65536 if hi else 0) + hh * 512, [("xb", j)], hook=p.pacer.tick)
    p.pacer.flush()
    stats_valu(p, D, TMP[5:8])
    p.bar(wr=[("ch", 0), ("xb", 11), ("tbl", 0), ("est", 0)])
    p.valu("v_add_u32", vWB[0], sSl[0], vL16)
    for f in range(NPRE): p.dsr(WR(f), vWB[0], f * 1024, res=[("ch", 0)])
    return progs

def blk_park_xe():
    p = Prog("parkxe")
    def variant(par):
        t = ""
        for j in range(6):
            t += f"s_add_u32 s49, s{sXS.b}, {j*1024}\nbuffer_store_dwordx4 {XE(2*j+par)}, v{vL16.b}, s[12:15], s49 offen\n"
        return t
    txt = f"s_cmp_ge_u32 s{sW.b}, 2\ns_cbranch_scc1 L_pxe1\n" + variant(0) + "s_branch L_pxe2\nL_pxe1:\n" + variant(1) + "L_pxe2:"
    for j in range(6):
        i = I(txt if j == 0 else "", "vst", [XE(2*j), XE(2*j+1), vL16, SRD_WS, sXS, sW], [("xs", 0), s(49), "scc"], cost=24)
        p.add(i)
    return p

vFLAG = v(8)
def vZERO(p):
    p.mov(v(9), 0, prio=-20000); return v(9)

def flag_check(name, vflag, dword, target):
    p = Prog(name)
    if os.environ.get("NOCHK"): return p
    p.valu("v_readfirstlane_b32", s(49), vflag)
    L = f"L_{name}"
    p.raw(f"s_cmp_ge_u32 s49, {target}\ns_cbranch_scc1 {L}_ok\ns_mov_b32 s62, 0\n{L}_spin:\n"
          f"v_mov_b32 {vflag}, {4*dword}\ns_nop 1\nbuffer_load_dword {vflag}, {vflag}, s[4:7], 0 offen sc1\ns_waitcnt vmcnt(0)\n"
          f"v_readfirstlane_b32 s49, {vflag}\ns_add_u32 s62, s62, 1\ns_nop 3\ns_cmp_ge_u32 s49, {target}\ns_cbranch_scc1 {L}_ok\n"
          f"s_cmp_lt_u32 s62, 0x40000\ns_cbranch_scc1 {L}_spin\n{L}_ok:", "br", rd=[s(49), vflag], wr=[s(49), s(62), "scc", vflag])
    return p
```

```python
from kv2 import *

def wbase(p, cc):
    r = vWB[cc % 3]
    p.valu("v_add_u32", r, sSl[cc & 3], vL16)
    return r

class FragStream:
    def __init__(self, p, pre): self.p = p; self.n = 0; self.pre = pre
    def get(self, base, off, res):
        w = WR(self.n)
        if self.n >= self.pre: self.p.dsr(w, base, off, res=res)
        self.n += 1
        return w

def gemm_tile(p, fs, base, toff, cres, kind, accset, tagk=None, tag=None, extra=None):
    acc = ACC[accset]
    skip = max(0, fs.pre - fs.n)
    for kb in range(12):
        w = fs.get(base, toff + kb * 1024, [cres])
        for t in range(3):
            c = None if kb == 0 else acc[t]
            if kind == "kq": i = p.mfma(acc[t], w, X(kb, t), c)
            else: i = p.mfma(acc[t], X(kb, t), w, c)
            if tag is not None and kb == tagk and t == 0: i.wr.append(tag)
            if getattr(p, "pacer", None): p.pacer.tick(i)
        if extra is not None and kb >= skip: next(extra)
    if extra is not None:
        for _ in extra: pass

def epi_kq(p, accset, a_, dstf):
    acc = ACC[accset]
    for t in range(3):
        if not os.environ.get("NOEPI"):
            for r in range(4): p.valu("v_mul_f32", acc[t][r], RC[t], acc[t][r])
        d = dstf(t, a_ >> 1)
        p.cvtpk(d[2 * (a_ & 1)], acc[t][0], acc[t][1]); p.cvtpk(d[2 * (a_ & 1) + 1], acc[t][2], acc[t][3])

def epi_v(p, accset, a_):
    acc = ACC[accset]
    for t in range(3):
        d = Vf(a_, t >> 1); o = (t & 1) * 2
        p.cvtpk(d[o], acc[t][0], acc[t][1]); p.cvtpk(d[o + 1], acc[t][2], acc[t][3])

def extra_block(p, fs, j, cc_a, cc_b, stash_res):
    if cc_a != cc_b:
        p.salu("s_cmp_ge_u32", sW, 2); p.salu("s_cselect_b32", sT[0], sSl[cc_b & 3], sSl[cc_a & 3])
        p.salu("s_add_u32", sT[0], sT[0], sW1)
    else:
        p.salu("s_add_u32", sT[0], sSl[cc_a & 3], sW1)
    p.valu("v_add_u32", vXB, sT[0], vL16)
    for kb in range(12):
        w = fs.get(vXB, kb * 1024, [("ch", cc_a), ("ch", cc_b)])
        p.mfma(ACCE, w, XE(kb), None if kb == 0 else ACCE)
        yield kb
    for r in range(4): p.valu("v_mul_f32", ACCE[r], RCE, ACCE[r])
    t = v(TMP[8].b, 2)
    p.cvtpk(t[0], ACCE[0], ACCE[1]); p.cvtpk(t[1], ACCE[2], ACCE[3])
    p.salu("s_add_u32", sT[1], sEoff[j], sH192)
    p.valu("v_add_u32", TMP[7], sT[1], vSW)
    ex_bundle(p, sEx, lambda q: q.dsw(TMP[7], t, 0), "dsw", [], [stash_res], 20)

def extra_for(p, fs, cc, r0):
    if not r0: return None
    if cc in (1, 3, 5, 7): return extra_block(p, fs, (cc - 1) // 2, cc - 1, cc, ("sKQ", 0) if cc < 7 else ("sV", 0))
    if cc == 8: return extra_block(p, fs, 4, 8, 8, ("sV", 0))
    return None

QORD = [3, 0, 1, 2]
ZM = bool(os.environ.get("ZM"))
vNM = v(255)
sG0 = s(92, 2) if False else s(54, 2)
def s_phase(p):
    order = [(3, 3), (3, 2), (0, 3), (1, 3), (2, 3), (3, 0), (3, 1),
             (0, 2), (1, 2), (2, 2), (0, 0), (1, 0), (2, 0), (0, 1), (1, 1), (2, 1)]
    for (kt, qt) in order:
        d = Sf(kt, qt)
        for s3 in range(3):
            A = KE(s3) if kt == 3 else Kf(kt, s3)
            B = QE(s3) if qt == 3 else Qf(qt, s3)
            p.mfma(d, A, B, None if s3 == 0 else d)

def softmax(p, qt, k, part="AB"):
    if part == "B": return softmax_b(p, qt)
    m = TMP[(k % 2) * 3]; m2 = TMP[(k % 2) * 3 + 1]; ng = TMP[(k % 2) * 3 + 2]; l = LINV[qt]; l2 = TMP[6]
    vals = [Sf(kt, qt)[r] for kt in range(3) for r in range(4)] + [Sf(3, qt)[0]]
    if ZM: p.valu("v_cndmask_b32", vals[12], vals[0], vals[12], sG0)
    p.valu("v_max3_f32", m, vals[0], vals[1], vals[2])
    for i in range(3, 13, 2): p.valu("v_max3_f32", m, m, vals[i], vals[i + 1])
    p.mov(m2, m); p.swap16(m, m2); p.valu("v_max_f32", m, m, m2)
    p.mov(m2, m); p.swap32(m, m2); p.valu("v_max_f32", m, m, m2)
    p.valu("v_mul_f32", ng, sNegC, m)
    for x in vals:
        p.valu("v_fma_f32", x, x, sC, ng)
        p.trans("v_exp_f32", x, x)
    e = vals[12]
    p.valu("v_mul_f32", e, vGM, e)
    p.valu("v_add_f32", l, vals[0], vals[1])
    for x in vals[2:]: p.valu("v_add_f32", l, l, x)
    p.mov(l2, l); p.swap16(l, l2); p.valu("v_add_f32", l, l, l2)
    p.mov(l2, l); p.swap32(l, l2); p.valu("v_add_f32", l, l, l2)
    p.trans("v_rcp_f32", l, l)
    if ZM and qt == 3: p.valu("v_and_b32", l, vNM, l)
    if "B" in part: softmax_b(p, qt)

def softmax_b(p, qt):
    l = LINV[qt]; e = Sf(3, qt)[0]
    for kt in range(3):
        sf = Sf(kt, qt)
        for r in range(4): p.valu("v_mul_f32", sf[r], RK(kt, r), sf[r])
        for r in range(4): p.valu("v_mul_f32", sf[r], l, sf[r])
        d = Pf(qt, kt >> 1); o = (kt & 1) * 2
        p.cvtpk(d[o], sf[0], sf[1]); p.cvtpk(d[o + 1], sf[2], sf[3])
    d = Pf(qt, 1)
    p.valu("v_mul_f32", e, l, e)
    p.cvtpk(d[2], e, 0); p.mov(d[3], 0)

vPK = v(254)
NSM = int(os.environ.get("NSM", "2"))
SMPART = os.environ.get("SMPART", "AB")
def pv_group(p, h, park, k):
    qt = QORD[k]
    oa = OACC[k % 2]
    for a_ in range(6): p.mfma(oa[a_], Vf(a_, 0), Pf(qt, 0), None)
    for a_ in range(6): p.mfma(oa[a_], Vf(a_, 1), Pf(qt, 1), oa[a_])
    for a_ in range(6):
        o = oa[a_]
        if qt == 3:
            t = v(TMP[8].b, 2)
            p.cvtpk(t[0], o[0], o[1]); p.cvtpk(t[1], o[2], o[3])
            off = h * 192 + (a_ >> 1) * 64 + (a_ & 1) * 8
            ex_bundle(p, sEx0, lambda q: q.dsw(vSQ, t, off), "dsw", [], [("sO", 0)], 20)
        else:
            home = OH(h, a_ >> 1, qt); hh = (a_ & 1) * 2
            if h == 0 and park:
                t = v(TMP[8].b, 2)
                p.cvtpk(t[0], o[0], o[1]); p.cvtpk(t[1], o[2], o[3])
                p.dsw(vPK, t, ((a_ >> 1) * 3 + qt) * 1024 + (a_ & 1) * 8, res=[("park", 0)])
            elif home.c == "a":
                t0, t1 = TMP[8], TMP[9]
                p.cvtpk(t0, o[0], o[1]); p.cvtpk(t1, o[2], o[3])
                p.accw(home[hh], t0); p.accw(home[hh + 1], t1)
            else:
                p.cvtpk(home[hh], o[0], o[1]); p.cvtpk(home[hh + 1], o[2], o[3])

def pv_start(p, h):
    n0 = len(p.ins)
    epi_v(p, 1, 5)
    for a_ in range(6):
        p.dsr(Vf(a_, 1)[2], vSV, h * 192 + (a_ >> 1) * 64 + (a_ & 1) * 8, res=[("sV", 0)], op="ds_read_u16")
    for i in p.ins[n0:]: i.prio = -10**6
    for k in range(NSM, 4): softmax(p, QORD[k], k, SMPART)

def pv_phase(p, h, park):
    pv_start(p, h)
    for k in range(4): pv_group(p, h, park, k)

def chunk_mid(p, cc, r0, fs, extra_wr=(), extra_rd=()):
    wr = [("ch", cc + 1), ("ch", cc - 1), ("fr", cc + 3)] + list(extra_wr)
    if not os.environ.get("NOBAR"): p.bar(rd=[("T", cc)] + list(extra_rd), wr=wr)
    if not os.environ.get("NORING"):
        last = cc in (2, 8)
        st = int(os.environ.get("RSTEP", "11"))
        p.pacer.add(ring_dma_list(p, cc + 3), 1, 6 if last else st)

def prefetch_next(p, cc_next):
    base = wbase(p, cc_next)
    for f in range(NPRE): p.dsr(WR(f), base, f * 1024, res=[("ch", cc_next)])

MSTAT = bool(os.environ.get("MSTAT"))
def roll_regs():
    D = DwRegs(DWADDR, DA, DB8 if MSTAT else DB8[:3], DB4, DACC, DT, SUMV, SSQ, vIDX)
    D.stats = not MSTAT
    return D
MS_S = [v(216 + 4 * t, 4) for t in range(3)]; MS_ONE = v(228, 4); MS_G = [v(204, 4), v(208, 4), v(244, 4)]

def blk_b1(hprev, r0):
    roll_tail = (hprev is None and not r0)
    p = Prog(f"b1{'x' if r0 else ''}_{'a' if hprev is None else hprev}")
    if os.environ.get("FINE") == p.name: p.fine = [255, 0]; p.raw("s_memtime s[88:89]", "salu")
    if hprev is None:
        p.salu("s_mov_b32", sH192, 0)
    else:
        slots_setup(p, adv=9)
        p.salu("s_add_u32", sH192, sH192, 192)
    if r0 and hprev == 0:
        p.salu("s_mul_i32", sT[0], sW, 9216); p.salu("s_add_u32", sT[0], sT[0], PARK); p.valu("v_add_u32", vPK, sT[0], vL16)
    fs = FragStream(p, NPRE); p.pacer = Pacer(p)
    if r0 and hprev == 1:
        p.mov(v(253), 4); p.vld(v(255), v(253), SRD_DBG, 0, 0, mods=" sc1")
    PVAT = [int(x) for x in os.environ.get("PVAT", "0,1,2,4").split(",")]
    if hprev is not None: pv_start(p, hprev)
    tile = 0
    if roll_tail:
        slots_setup(p, reset=True)
        D = roll_regs()
        base = vWB[0]
        def part(tt, kbs, tag=None):
            acc = ACC[tt]
            for kb in kbs:
                w = fs.get(base, tt * TILE_B + kb * 1024, [("ch", 0)])
                for t in range(3):
                    i = p.mfma(acc[t], w, X(kb, t), None if kb == 0 else acc[t])
                    if tag is not None and kb == kbs[-1] and t == 0: i.wr.append(tag)
                    p.pacer.tick(i)
        p.valu("v_add_u32", vDAb, DSL[0], vL16)
        if MSTAT:
            for q in range(4): p.mov(MS_ONE[q], 0x3f803f80)
            stats_mfma(p, range(10), MS_S, MS_G, MS_ONE)
        for hh in range(2): dw_ctile(p, D, 10, hh, vDAb, 0, xslot(10) + hh * 512, [("xb", 10), ("dw", 10)])
        part(0, list(range(10)), ("T", 0))
        p.bar(rd=[("T", 0)], wr=[("ch", 1), ("last", 0), ("fr", 2), ("dw", 11), ("xb", 11)])
        p.pacer.add(ring_dma_list(p, 2), 1, 5)
        for hh in range(2): dw_ctile(p, D, 11, hh, vDAb, 6144, xslot(11) + hh * 512, [("xb", 11), ("dw", 11)])
        part(1, list(range(10)), ("T", 50))
        p.bar(rd=[("T", 50)], wr=[("fr", 3), ("dw", 10), ("dw", 11), ("xb", 10), ("xb", 11)])
        if MSTAT:
            stats_mfma(p, (10, 11), MS_S, MS_G, MS_ONE)
            stats_mfma_fin(p, MS_S, MS_G, TMP[0:5])
        else: stats_valu(p, D, [TMP[0], TMP[1], TMP[2]])
        p.pacer.add(ring_dma_list(p, 3), 1, 8)
        part(0, [10, 11]); part(1, [10, 11])
        epi_kq(p, 0, 0, Kf); epi_kq(p, 1, 1, Kf)
        tile = 2
    for cc in range(1 if roll_tail else 0, 3):
        base = vWB[cc % 3] if cc == 0 else wbase(p, cc)
        for tt in range(2):
            a_ = cc * 2 + tt
            if hprev is not None:
                for k in range(4):
                    if PVAT[k] == a_: pv_group(p, hprev, r0, k)
            gemm_tile(p, fs, base, tt * TILE_B, ("ch", cc), "kq", tile % 2, tagk=TAGK, tag=("T", cc) if tt == 0 else None, extra=extra_for(p, fs, cc, r0) if tt == 0 else None)
            if a_ < 5: epi_kq(p, tile % 2, a_, Kf)
            tile += 1
            if tt == 0: chunk_mid(p, cc, r0, fs)
    p.pacer.flush()
    prefetch_next(p, 3)
    return p

def touch(p, i):
    idx, row, col, t3 = TMP[7], TMP[8], TMP[9], v(253)
    if i == 0:
        p.salu("s_lshr_b32", sU[2], sH192, 6); p.salu("s_mul_i32", sU[2], sU[2], 86); p.salu("s_lshr_b32", sU[2], sU[2], 8)
        p.salu("s_mul_i32", sPf, sU[2], 6)
        p.salu("s_add_u32", sU[3], sY0, 13); p.salu("s_mul_i32", sU[4], sU[3], ROWB)
        p.salu("s_mul_i32", sU[5], sX0, 768); p.salu("s_add_u32", sU[4], sU[4], sU[5]); p.salu("s_sub_u32", sPfB, sU[4], 768)
    p.salu("s_add_u32", sU[2], sPf, i)
    p.salu("s_and_b32", sU[3], sU[2], 3); p.salu("s_lshl_b32", sU[2], sU[2], 6)
    p.salu("s_cmp_eq_u32", sU[3], sW); p.salu("s_cselect_b32", sU[4], 378, 0)
    p.salu("s_cmp_eq_u32", sRound, 2); p.salu("s_cselect_b32", sU[4], 0, sU[4])
    p.valu("v_add_u32", idx, sU[2], vTID)
    p.valu("v_mul_u32_u24", row, 683, idx); p.valu("v_lshrrev_b32", row, 16, row)
    p.valu("v_mul_u32_u24", col, 96, row); p.valu("v_sub_u32", col, idx, col)
    p.salu("s_mov_b32", sU[5], ROWB)
    p.valu("v_mul_lo_u32", idx, row, sU[5]); p.valu("v_lshl_add_u32", idx, col, 7, idx); p.valu("v_add_u32", idx, sPfB, idx)
    p.salu("s_add_u32", sU[3], sY0, 13)
    p.valu("v_add_u32", row, sU[3], row)
    p.valu("v_cmp_gt_u32", "vcc", sU[4], row)
    p.mov(t3, OOB); p.valu("v_cndmask_b32", idx, t3, idx, "vcc")
    p.vld(aDUM[i % 2], idx, SRD_X, 0, 0)

CT = [v(62), v(63), v(61)]
def blk_b2(r0):
    p = Prog(f"b2{'x' if r0 else ''}")
    if os.environ.get("FINE") == p.name: p.fine = [255, 0]; p.raw("s_memtime s[88:89]", "salu")
    fs = FragStream(p, NPRE); p.pacer = Pacer(p)
    vq = v(252)
    p.valu("v_add_u32", vq, sH192, vSQ)
    epi_kq(p, 1, 5, Kf)
    tile = 6
    for cc in range(3, 9):
        base = vWB[cc % 3] if cc == 3 else wbase(p, cc)
        if cc == 6:
            s_phase(p)
            for a_ in (4, 5): p.mov(Vf(a_, 1)[3], 0)
            for k, qt in enumerate(QORD): (softmax(p, qt, k, "AB") if k < NSM else (softmax(p, qt, k, "A") if SMPART == "B" else None))
        for tt in range(2):
            a_ = (cc % 3) * 2 + tt
            kind = "kq" if cc < 6 else "v"
            gemm_tile(p, fs, base, tt * TILE_B, ("ch", cc), kind, tile % 2, tagk=TAGK, tag=("T", cc) if tt == 0 else None, extra=extra_for(p, fs, cc, r0) if tt == 0 else None)
            if kind == "kq": epi_kq(p, tile % 2, a_, Qf)
            elif a_ < 5: epi_v(p, tile % 2, a_)
            tile += 1
            if tt == 0:
                ew = []
                if r0 and cc == 5: ew = [("sKQ", 0)]
                if r0 and cc == 8: ew = [("sV", 0)]
                chunk_mid(p, cc, r0, fs, extra_wr=ew)
                if not os.environ.get("NOTOUCH"):
                    p.pacer.add([lambda tag=None, i=cc - 3: touch(p, i)], 34 if cc == 8 else int(os.environ.get("TPOS", "62")), 1)
                if cc == 3:
                    if r0: code_touch(p, "L_b1x_a", "L_b2x", [v(253), v(254), v(255)] if False else CT, aDUM[2], sel=(sH192, 576, "L_out", "L_outl"))
                    else: code_touch(p, "L_b1_a", "L_b2", CT, aDUM[2], sel=(sH192, 576, "L_out", "L_codeend"))
                if cc == 5:
                    for s3 in range(3):
                        p.dsr(KE(s3), vq, 768 + s3 * 64, res=[("sKQ", 0)])
                        p.dsr(QE(s3), vq, s3 * 64, res=[("sKQ", 0)])
                    if ZM:
                        p.valu("v_cndmask_b32", vNM, 0, -1, sEx0)
                        for s3 in range(3):
                            for q in range(4):
                                p.valu("v_and_b32", KE(s3)[q], vNM, KE(s3)[q]); p.valu("v_and_b32", QE(s3)[q], vNM, QE(s3)[q])
    p.pacer.flush()
    prefetch_next(p, 9)
    return p

def gen_sel(p):
    n_, g_, tq, c = v(24), v(25), v(60), v(61)
    t1 = v(62)
    p.valu("v_and_b32", n_, 15, vTID); p.valu("v_lshrrev_b32", g_, 4, vTID)
    p.valu("v_and_b32", tq, 3, n_); p.valu("v_cmp_eq_u32", "vcc", tq, g_)
    p.valu("v_lshrrev_b32", c, 2, n_); p.mov(tq, 63); p.valu("v_cndmask_b32", c, tq, c, "vcc")
    p.mov(n_, 0x3f80)
    for q in range(4):
        p.valu("v_cmp_eq_u32", "vcc", q, c)
        p.valu("v_cndmask_b32", tq, 0, n_, "vcc"); p.accw(SEL[0][q], tq)
        p.valu("v_lshlrev_b32", t1, 16, tq); p.accw(SEL[1][q], t1)

def gen_out_offsets(p):
    n_ = TMP[0]; g_ = TMP[1]; tq = TMP[2]; rr = TMP[3]; cc = TMP[4]
    p.valu("v_and_b32", n_, 15, vTID); p.valu("v_lshrrev_b32", g_, 4, vTID)
    p.salu("s_add_u32", sT[0], sY0, sWY7); p.salu("s_mul_i32", sT[0], sT[0], ROWB)
    p.salu("s_add_u32", sT[1], sX0, sWX7); p.salu("s_mul_i32", sT[1], sT[1], 768); p.salu("s_add_u32", sT[0], sT[0], sT[1])
    p.salu("s_mov_b32", sT[2], ROWB)
    p.valu("v_lshlrev_b32", n_, 3, n_); p.valu("v_add_u32", n_, sT[0], n_); p.valu("v_lshlrev_b32", g_, 2, g_)
    for t in range(3):
        for r in range(4):
            p.valu("v_add_u32", tq, 16 * t + r + 1, g_)
            p.valu("v_subrev_u32", rr, sSkip1, tq); p.valu("v_lshrrev_b32", rr, 31, rr); p.valu("v_sub_u32", tq, tq, rr)
            p.valu("v_mul_u32_u24", rr, 37, tq); p.valu("v_lshrrev_b32", rr, 8, rr)
            p.valu("v_mul_u32_u24", cc, 7, rr); p.valu("v_sub_u32", cc, tq, cc)
            p.valu("v_mul_lo_u32", rr, rr, sT[2]); p.valu("v_mul_u32_u24", cc, 768, cc)
            p.valu("v_add3_u32", vOUT[t][r], rr, cc, n_)

OE = [v(120 + kb * 4, 4) for kb in range(7)] + [v(184 + kb * 4, 4) for kb in range(5)]
XEF = [v(112, 4), v(116, 4), v(236, 4), v(240, 4), v(12, 4), v(16, 4)]
vOE = v(206); vOUTE = v(207); ETMP = [v(212), v(213), v(215), v(5)]; SELW = v(8, 4); vXBL = v(214)

TABLAT = int(os.environ.get("TABLAT", "2200"))
BARKS = int(os.environ.get("BARKS", "16"))
def out_tiles(p, fs, cc, base, tile, dwf=None, extra=None, pre=None):
    G = cc >> 1
    hook = p.pacer.tick
    dgs = [dwf(0, hook), dwf(1, hook)] if dwf else []
    def step():
        while dgs:
            try:
                next(dgs[0]); return
            except StopIteration: dgs.pop(0)
    barks = BARKS if dwf else 11
    last = int(os.environ.get("DWLAST", "11"))
    units = [round(1 + (last - 1) * k / 5) for k in range(6)] if dwf else []
    accs = [ACC3[tile[0] % 3], ACC3[(tile[0] + 1) % 3]]; tile[0] += 2
    if cc == 0:
        order = [(0, kb) for kb in range(9)] + [(1, kb) for kb in range(9)] + [(0, kb) for kb in range(9, 12)] + [(1, kb) for kb in range(9, 12)]
    else:
        order = [(e, kb) for e in range(2) for kb in range(12)]
    for ks, (e, kb) in enumerate(order):
        acc = accs[e]
        if kb == 0:
            for t in range(3): hook(p.mfma(acc[t], X(2 * G + (cc & 1), t), SEL[e], None))
        if pre and ks in pre:
            for f in pre[ks]: f()
        res = [("ch", cc)] + ([("last", 0)] if cc == 11 else [])
        w = fs.get(base, e * TILE_B + kb * 1024, res)
        for t in range(3):
            i = p.mfma(acc[t], OH(kb // 3, kb % 3, t), w, acc[t])
            if ks == (barks if dwf else TAGK) and t == 0: i.wr.append(("T", cc))
            hook(i)
        for _ in range(units.count(ks)): step()
        if extra is not None and ks < 12: next(extra)
        if ks == 11 and extra is not None:
            for _ in extra: pass
        if ks == barks:
            while dgs: step()
            yield ks

def blk_parkload():
    p = Prog("parkld")
    for kb in range(3):
        for t in range(3): p.dsr(OH0(kb, t), vPK, (kb * 3 + t) * 1024, res=[("park", 0)])
    return p

ACCE2 = v(232, 4)
def blk_out(r0, last):
    from prep2 import sp_index
    p = Prog("out" + ("x" if r0 else "") + ("l" if last else ""))
    if os.environ.get("FINE") == p.name: p.fine = [207 if not last else 215, 0]; p.raw("s_memtime s[88:89]", "salu")
    fs = FragStream(p, NPRE); p.pacer = Pacer(p)
    roll = not last
    OPV = [int(x) for x in os.environ.get("OPV", "-1,-1,12,16").split(",")]
    n0 = len(p.ins); gen_sel(p)
    for i in p.ins[n0:]: i.prio = -10**6
    pv_start(p, 3)
    OUTT = [v(224, 4), v(228, 4), v(60, 4)]
    p.salu("s_add_u32", sU[4], sTab, 4096)
    for t in range(3):
        i = p.vld(OUTT[t], vL16, SRD_WS, sU[4], 1024 * t, res=[("tab", 0)]); i.lat = TABLAT
    p.salu("s_add_u32", sT[0], sY0, sWY7); p.salu("s_mul_i32", sT[0], sT[0], ROWB)
    p.salu("s_add_u32", sT[1], sX0, sWX7); p.salu("s_mul_i32", sT[1], sT[1], 768); p.salu("s_add_u32", sT[2], sT[0], sT[1])
    for t in range(3):
        for r in range(4): p.valu("v_add_u32", vOUT[t][r], sT[2], vOUT[t][r])
    if roll:
        p.salu("s_add_u32", sY0n, sY0, 14)
        gen_x_rows(p, sY0n)
        gen_x_cols(p, XVO, TMP)
        p.bar(wr=[("park", 0), ("ch", -1), ("xfr", 0), ("xfr", 1), ("xfr", 2), ("dfr", 0), ("dfr", 1)])
        p.pacer.add(dwfrag_list(p, 0, DSL[0], [("dw", 0)], [("dfr", 0)]) + x_dma_list(p, XVO, 0, XSB + xslot(0), [("xb", 0)], [("xfr", 0)]), 20, 6)
    for k in range(4):
        if OPV[k] < 0: pv_group(p, 3, False, k)
    DD = []
    def post_pv_setup():
        if roll:
            for k in range(4):
                i = p.vld(DWA[4 * k:4 * k + 4], vL16, SRD_WS, sTab, k * 1024, res=[("tab", 0)]); i.lat = TABLAT
            sp_index(p, vIDX, TMP[6])
            p.valu("v_add_u32", vDAb, DSL[0], vL16)
            DD.append(roll_regs())
        else:
            n_ = TMP[0]; g_ = TMP[1]; ye = TMP[3]; xe = TMP[4]; tq = TMP[2]
            p.valu("v_and_b32", n_, 15, vTID); p.valu("v_lshrrev_b32", g_, 4, vTID)
            p.valu("v_min_u32", tq, 11, n_); p.valu("v_mul_u32_u24", vOE, STOK, tq); p.valu("v_lshl_add_u32", vOE, g_, 4, vOE); p.valu("v_add_u32", vOE, STASH, vOE)
            p.valu("v_lshrrev_b32", ye, 2, n_); p.valu("v_add_u32", ye, sSR3, ye); p.valu("v_mul_u32_u24", ye, 14, ye)
            p.valu("v_bfe_u32", tq, n_, 1, 1); p.valu("v_add3_u32", ye, ye, tq, 6)
            p.valu("v_and_b32", tq, 1, n_); p.valu("v_add3_u32", xe, tq, sX0, 6)
            p.salu("s_mov_b32", sT[3], ROWB)
            p.valu("v_mul_lo_u32", ye, ye, sT[3]); p.valu("v_mul_u32_u24", xe, 768, xe)
            p.salu("s_lshl_b32", sT[3], sW, 1); p.salu("s_and_b32", sT[4], sW, 1)
            p.valu("v_lshlrev_b32", tq, 5, g_); p.valu("v_add3_u32", vOUTE, ye, xe, tq); p.valu("v_add_u32", vOUTE, sT[3], vOUTE)
            p.mov(tq, OOB); p.valu("v_cndmask_b32", vOUTE, tq, vOUTE, sEx)
            p.valu("v_cmp_eq_u32", s(82, 2), 1, sT[4])
            for q in range(4):
                p.accr(SELW[q], SEL[0][q]); p.accr(tq, SEL[1][q]); p.valu("v_cndmask_b32", SELW[q], SELW[q], tq, s(82, 2))
            for j in range(6):
                p.salu("s_add_u32", sT[8], sXS, j * 1024)
                i = p.vld(XEF[j], vL16, SRD_WS, sT[8], 0, res=[("xs", 0)]); i.lat = TABLAT

    def pvk(k):
        pv_group(p, 3, False, k)
        if k == 3: post_pv_setup()
    pre0 = {}
    for k in range(4):
        if OPV[k] >= 0: pre0.setdefault(OPV[k], []).append(lambda k=k: pvk(k))
    if OPV[3] < 0: post_pv_setup()
    tile = [0]
    W0, WS_, X0_, XS_, D0_, S0, SS_ = [int(x) for x in os.environ.get("PACE", "6,6,46,6,1,4,8").split(",")]
    for cc in range(12):
        slot = (cc % 3) * SLOT if roll else (cc & 3) * SLOT
        br = vWB[cc % 3]
        if cc > 0: p.valu("v_add_u32", br, slot, vL16)
        t0 = tile[0]
        dwf = None
        if roll and cc >= 2:
            dwf = lambda hh, hook, j=cc - 2: dw_ctile_gen(p, DD[0], j, hh, vDAb, (j % 2) * 6144, xslot(j) + hh * 512, [("dw", j), ("xb", j)], hook)
        ex = None
        if last and cc % 2 == 1:
            def exgen(cc=cc):
                j = cc // 2
                if cc == 1:
                    for kb in range(12): p.dsr(OE[kb], vOE, kb * 64, res=[("sO", 0)])
                p.salu("s_cmp_ge_u32", sW, 2); p.salu("s_mov_b32", sT[1], ((cc - 1) & 3) * SLOT); p.salu("s_cselect_b32", sT[0], (cc & 3) * SLOT, sT[1])
                p.salu("s_add_u32", sT[0], sT[0], sW1)
                p.valu("v_add_u32", vXBL, sT[0], vL16)
                p.mfma(ACCE2, SELW, XEF[j], None)
                for kb in range(12):
                    w = fs.get(vXBL, kb * 1024, [("ch", cc - 1), ("ch", cc)])
                    p.pacer.tick(p.mfma(ACCE2, w, OE[kb], ACCE2))
                    yield kb
                p.pacer.flush_kind("est")
                sts = []
                for r in range(4):
                    p.cvtpk(ETMP[r], ACCE2[r], ACCE2[r])
                    def st(tag=None, r=r, j=j):
                        i = p.vst(ETMP[r], vOUTE, SRD_OUT, 0, j * 128 + r * 8, op="buffer_store_short")
                        if tag is not None: i.rd.append(tag)
                    sts.append(st)
                p.pacer.add(sts, 6, 6, kind="est")
            ex = exgen()
        g = out_tiles(p, fs, cc, br, tile, dwf, ex, pre0 if cc == 0 else None)
        next(g)
        if roll:
            wr = [("ch", cc + 1), ("ch", cc - 1), ("fr", cc + 2)]
            if cc >= 1: wr += [("xb", cc - 1), ("dw", cc - 1)]
            if cc >= 2: wr += [("xb", cc - 2), ("xfr", cc + 1), ("dw", cc - 2), ("dfr", cc)]
            if cc == 10: wr += [("fr", 100)]
            if cc == 11: wr += [("fr", 101), ("ch", 100)]
            p.bar(rd=[("T", cc)], wr=wr)
            if 2 <= cc <= 11: p.pacer.add(dwfrag_list(p, cc, DSL[cc % 2], [("dw", cc)], [("dfr", cc)]), D0_, 2)
            if cc == 0: p.pacer.add(dwfrag_list(p, 1, DSL[1], [("dw", 1)], [("dfr", 1)]), D0_, 2)
            if not os.environ.get("NOWDMA"):
                if 1 <= cc <= 9: p.pacer.add(ring_dma_list(p, cc + 2, slot=((cc + 2) % 3) * SLOT), W0, WS_)
            if cc == 10: p.pacer.add(ring_dma_list(p, 100, first=True, slot=0), W0, WS_)
            if cc == 11: p.pacer.add(ring_dma_list(p, 101, slot=SLOT), W0, 5)
            if 0 <= cc <= 10: p.pacer.add(x_dma_list(p, XVO, cc + 1, XSB + xslot(cc + 1), [("xb", cc + 1)], [("xfr", cc + 1)]), X0_, XS_)
            if cc == 8: code_touch(p, "L_round", "L_out", [v(212), v(213), v(214)], aDUM[2])
            if cc in [int(x) for x in os.environ.get("RETOUCH", "").split(",") if x]: code_touch(p, "L_out", "L_outl", [v(212), v(213), v(214)], aDUM[2])
        else:
            if cc in [int(x) for x in os.environ.get("RETOUCHL", "").split(",") if x]: code_touch(p, "L_outl", "L_codeend", [v(6), v(7), v(21)], aDUM[2])
            if cc < 11:
                wr = [("ch", cc + 1), ("ch", cc - 1), ("fr", cc + 3)]
                if cc == 0: wr += [("sO", 0)]
                p.bar(rd=[("T", cc)], wr=wr)
                if cc + 3 <= 11 and not os.environ.get("NOWDMA"): p.pacer.add(ring_dma_list(p, cc + 3, slot=((cc + 3) & 3) * SLOT), 1, 11)
        for _ in g: pass
        accs = [ACC3[t0 % 3], ACC3[(t0 + 1) % 3]]
        h = cc & 1; G = cc >> 1
        if h == 0: p.pacer.flush_kind("st")
        sts = []
        for t in range(3):
            for r in range(4):
                p.cvtpk(PK(t, r)[h], accs[0][t][r], accs[1][t][r])
                if h == 1 and not os.environ.get("NOSTORE"):
                    def st(tag=None, t=t, r=r, G=G):
                        i = p.vst(PK(t, r), vOUT[t][r], SRD_OUT, 0, G * 128, mods=os.environ.get("STMOD", "").replace("_", " "))
                        if tag is not None: i.rd.append(tag)
                    sts.append(st)
        p.pacer.add(sts, S0, SS_ if roll else int(os.environ.get("SSL", "5")), kind="st")
    p.pacer.flush()
    if roll:
        round_setup(p, True)
        p.valu("v_add_u32", vWB[0], 0, vL16)
        for f in range(NPRE): p.dsr(WR(f), vWB[0], f * 1024, res=[("ch", 100)])
    return p
```

```python
import sys

def header(grid, block, lds):
    return f"""; microbench
; @launch grid=({grid},1,1) block=({block},1,1) lds={lds}
.amdgcn_target "amdgcn-amd-amdhsa--gfx950"
.text
.globl standalone__window_attn_davit__vision_kernel
.p2align 8
.type standalone__window_attn_davit__vision_kernel,@function
standalone__window_attn_davit__vision_kernel:
"""

def footer(nv=512, acc=256):
    return f"""
s_endpgm
.section .rodata,"a"
.p2align 6
.amdhsa_kernel standalone__window_attn_davit__vision_kernel
  .amdhsa_next_free_vgpr {nv}
  .amdhsa_next_free_sgpr 102
  .amdhsa_accum_offset {acc}
  .amdhsa_group_segment_fixed_size 0
  .amdhsa_kernarg_size 56
  .amdhsa_user_sgpr_count 2
  .amdhsa_user_sgpr_kernarg_segment_ptr 1
  .amdhsa_system_sgpr_workgroup_id_x 1
.end_amdhsa_kernel
"""

def prologue():
    return """
    s_load_dwordx2 s[4:5], s[0:1], 0
    s_load_dwordx2 s[6:7], s[0:1], 16
    s_load_dwordx2 s[20:21], s[0:1], 40
    s_waitcnt lgkmcnt(0)
    s_mov_b32 s8, s4
    s_mov_b32 s9, s5
    s_mov_b32 s10, 109734912
    s_mov_b32 s11, 0x20000
    s_mov_b32 s12, s6
    s_mov_b32 s13, s7
    s_mov_b32 s14, 884736
    s_mov_b32 s15, 0x20000
    s_mov_b32 s16, s20
    s_mov_b32 s17, s21
    s_mov_b32 s18, 256
    s_mov_b32 s19, 0x20000
    v_lshlrev_b32 v1, 4, v0        ; tid*16
    v_and_b32 v2, 63, v0
    v_lshlrev_b32 v2, 4, v2        ; lane*16
    v_lshrrev_b32 v3, 6, v0
    s_nop 1
    v_readfirstlane_b32 s22, v3
"""

def fill_regs(nv_lo, nv_hi):
    s = ""
    s += "    s_lshl_b32 s23, s2, 16\n    v_add_u32 v4, s23, v1\n"
    for r in range(nv_lo, nv_hi, 4):
        s += f"    buffer_load_dwordx4 v[{r}:{r+3}], v4, s[8:11], 0 offen offset:{((r//4)*64)%4096}\n"
        if (r//4) % 16 == 15: s += "    s_waitcnt vmcnt(0)\n"
    s += "    s_waitcnt vmcnt(0)\n"
    return s

def fill_lds(nbytes):
    s = "    v_mov_b32 v5, v1\n"
    for off in range(0, nbytes, 4096):
        s += f"    v_add_u32 v5, {off}, v1\n    ds_write_b128 v5, v[8:11]\n"
    s += "    s_waitcnt lgkmcnt(0)\n    s_barrier\n"
    return s

def stamp_start():
    return "    s_barrier\n    s_memtime s[24:25]\n    s_memrealtime s[26:27]\n    s_waitcnt lgkmcnt(0)\n"

def stamp_end():
    return """
    s_memtime s[28:29]
    s_memrealtime s[30:31]
    s_waitcnt lgkmcnt(0)
    s_sub_u32 s28, s28, s24
    s_sub_u32 s30, s30, s26
    s_cmp_eq_u32 s2, 5
    s_cbranch_scc0 L_nostamp
    v_mov_b32 v6, s28
    v_mov_b32 v7, s30
    s_lshl_b32 s23, s22, 3
    v_mov_b32 v5, s23
    v_cmp_eq_u32 vcc, 0, v2
    s_and_saveexec_b64 s[32:33], vcc
    buffer_store_dwordx2 v[6:7], v5, s[16:19], 0 offen
    s_waitcnt vmcnt(0)
    s_mov_b64 exec, s[32:33]
L_nostamp:
"""

def gen(kind, iters=200, grid=256, dsper=0, valu=0, dma=0, barrier=0, exps=0, unroll=1, ntile=3, waves=4, dmamode="buf"):
    s = header(grid, 64*waves, 160*1024 if waves==4 else 160*1024)
    s += prologue()
    s += fill_regs(8, 256)
    for r in range(0, 192):
        s += f"    v_accvgpr_write_b32 a{r}, v{8 + (r % 200)}\n"
    s += fill_lds(98304)
    s += f"    s_mov_b32 s34, {iters}\n"
    s += "    s_mov_b32 s35, 0\n"
    s += "    s_lshl_b32 s36, s22, 10\n"
    s += "    v_mov_b32 v3, v2\n"
    s += stamp_start()
    s += "    .p2align 6\nL_loop:\n"
    body = ""
    nm = 0
    for u in range(unroll):
      for f in range(24):
        wreg = 8 + 4*(f % 8)
        if dsper:
            body += f"    ds_read_b128 v[{wreg}:{wreg+3}], v3 offset:{(f*1024 + (u%2)*24576) % 65536}\n"
        wuse = 8 + 4*((f+4) % 8)
        if dsper:
            body += f"    s_waitcnt lgkmcnt(4)\n"
        for t in range(ntile):
            if kind == 16:
                acc = 64 + 4*(((f % 2)*ntile + t))
                b = ((f//2) * 4 * 4 + t*4) % 192
                body += f"    v_mfma_f32_16x16x32_bf16 v[{acc}:{acc+3}], v[{wuse}:{wuse+3}], a[{b}:{b+3}], v[{acc}:{acc+3}]\n"
            else:
                acc = 64 + 16*(((f % 2)*ntile + t))
                b = ((f//2) * 4 * 4 + t*4) % 192
                body += f"    v_mfma_f32_32x32x16_bf16 v[{acc}:{acc+15}], v[{wuse}:{wuse+3}], a[{b}:{b+3}], v[{acc}:{acc+15}]\n"
            nm += 1
            for q in range(valu):
                r = 200 + ((nm*valu+q) % 40)
                body += f"    v_fma_f32 v{r}, v{r}, v{241+q}, v{242+q}\n"
            for q in range(exps):
                r = 200 + ((nm*exps+q) % 40)
                body += f"    v_exp_f32 v{r}, v{r}\n"
        if dma and f % 4 == 1:
            j = f // 4
            slot = (j*4096)
            body += f"    s_add_u32 m0, s36, {slot + 49152}\n    s_nop 0\n"
            if dmamode == "buf":
                body += f"    buffer_load_dwordx4 v2, s[12:15], s37 offen lds\n"
            body += f"    s_add_u32 s37, s37, 4096\n"
      if dma:
        body += "    s_cmp_ge_u32 s37, 860160\n    s_cselect_b32 s37, s36, s37\n"
        body += "    s_waitcnt vmcnt(6)\n"
      if barrier:
        body += "    s_barrier\n"
    s = s.replace("    .p2align 6\nL_loop:\n", "    s_mov_b32 s37, s36\n    .p2align 6\nL_loop:\n")
    s += body
    if iters > 1:
        s += "    s_sub_u32 s34, s34, 1\n    s_cmp_lg_u32 s34, 0\n    s_cbranch_scc1 L_loop\n"
    s += "    s_waitcnt vmcnt(0) lgkmcnt(0)\n"
    s += stamp_end()
    s += footer()
    return s, nm*iters

if __name__ == "__main__":
    import itertools
    cfgs = {
      "m16": dict(kind=16),
      "m32": dict(kind=32, ntile=2),
      "m16_ds": dict(kind=16, dsper=1),
      "m32_ds": dict(kind=32, dsper=1, ntile=2),
      "m16_ds_v1": dict(kind=16, dsper=1, valu=1),
      "m16_ds_v2": dict(kind=16, dsper=1, valu=2),
      "m32_ds_v3": dict(kind=32, dsper=1, valu=3, ntile=2),
      "m32_ds_v4": dict(kind=32, dsper=1, valu=4, ntile=2),
      "m32_ds_v5": dict(kind=32, dsper=1, valu=5, ntile=2),
      "m16_ds_dma": dict(kind=16, dsper=1, dma=1, barrier=1),
      "m32_ds_dma": dict(kind=32, dsper=1, dma=1, barrier=1, ntile=2),
      "m16_ds_bar": dict(kind=16, dsper=1, barrier=1),
      "m16_ds_e1": dict(kind=16, dsper=1, exps=1),
      "m16_t4_ds_dma": dict(kind=16, dsper=1, dma=1, barrier=1, ntile=4),
      "m16_long": dict(kind=16, dsper=1, unroll=40, iters=5),
      "m16_long1": dict(kind=16, dsper=1, unroll=200, iters=1),
    }
    for k, c in cfgs.items():
        s, n = gen(**c)
        open(f"t_{k}.s", "w").write(s)
        print(k, "nmfma", n)
```

```python
from gen_mb1 import header, footer, stamp_start, stamp_end, prologue
def gen(pat, mod=" nt"):
    s = header(243, 256, 160*1024) + prologue()
    s += """
    v_and_b32 v10, 63, v0
    s_mul_i32 s50, s2, 2428
    s_lshr_b32 s50, s50, 16
    s_mul_i32 s51, s50, 27
    s_sub_u32 s51, s2, s51
    s_mul_i32 s52, s50, 42
    s_mul_i32 s53, s51, 14
    s_mul_i32 s52, s52, 290304
    s_mul_i32 s53, s53, 768
    s_add_u32 s52, s52, s53
    s_mov_b32 s55, 290304
    s_lshl_b32 s58, s22, 13
"""
    for i in range(4):
        s += f"    s_lshl_b32 s54, s22, 2\n    s_add_u32 s54, s54, {i}\n    s_mul_i32 s54, s54, s55\n    s_add_u32 s{70+i}, s54, s52\n"
    if pat == "p128":
        s += "    v_lshrrev_b32 v15, 3, v10\n    v_mul_u32_u24 v16, 768, v15\n    v_and_b32 v17, 7, v10\n    v_lshl_add_u32 v20, v17, 4, v16\n    v_add_u32 v21, 6144, v20\n"
        seq = [(f"v{20+k}", 70+i, m*128) for m in range(6) for i in range(4) for k in range(2)]
    elif pat in ("p64", "p64far"):
        s += "    v_lshrrev_b32 v15, 2, v10\n    v_mul_u32_u24 v16, 768, v15\n    v_and_b32 v17, 3, v10\n    v_lshl_add_u32 v20, v17, 4, v16\n"
        if pat == "p64": seq = [("v20", 70+i, m*128 + k*64) for m in range(6) for i in range(4) for k in range(2)]
        else: seq = [("v20", 70+i, m*128 + k*64) for m in range(6) for k in range(2) for i in range(4)]
    elif pat == "real":
        s += """    v_lshrrev_b32 v11, 4, v10
    v_and_b32 v12, 15, v10
    v_lshrrev_b32 v13, 1, v11
    v_and_b32 v14, 1, v11
    v_lshrrev_b32 v15, 1, v12
    v_lshl_add_u32 v15, v14, 3, v15
    v_mul_u32_u24 v16, 768, v15
    v_lshl_add_u32 v16, v13, 5, v16
    v_and_b32 v17, 1, v12
    v_lshl_add_u32 v20, v17, 4, v16
"""
        seq = [("v20", 70+i, m*128 + k*64) for m in range(6) for i in range(4) for k in range(2)]
    s += stamp_start()
    for n, (vr, sr, off) in enumerate(seq):
        s += f"    s_add_u32 m0, s58, {(n % 8) * 1024 + (n // 8 % 4) * 32768}\n    s_add_u32 s60, s{sr}, {off}\n    buffer_load_dwordx4 {vr}, s[8:11], s60 offen{mod} lds\n"
    s += "    s_waitcnt vmcnt(0)\n" + stamp_end() + footer(128, 128)
    return s
names = []
for pat in ("p128", "p64", "p64far", "real"):
    open(f"l5_{pat}.s", "w").write(gen(pat)); names.append(f"l5_{pat}.s")
print(" ".join(names))
```
